```python
import torch

def _softmax(x, axis=-1):
    return torch.softmax(x, dim=axis)
def _gelu(x):
    return torch.nn.functional.gelu(x, approximate="tanh")
def _silu(x):
    return torch.nn.functional.silu(x)
def _sigmoid(x):
    return torch.sigmoid(x)
def _layernorm(x, axis=-1, eps=1e-5):
    m = x.mean(dim=axis, keepdim=True)
    v = x.var(dim=axis, keepdim=True, unbiased=False)
    return (x - m) / torch.sqrt(v + eps)
def _scatter_add(tgt, idx, src, axis=0):
    return tgt.clone().index_add_(axis, idx, src)
def _segment_sum(src, seg, n):
    out = torch.zeros((n,) + src.shape[1:], dtype=src.dtype)
    return out.index_add_(0, seg, src)
def _pad(x, pw):
    flat = tuple(v for pair in reversed(pw) for v in pair)
    return torch.nn.functional.pad(x, flat)

kernel_name = 'parallel_sum__grouped_kv_mqa__dense_activation_relu__prompt'

def setup_inputs():

    _w = (lambda a: (lambda t: t.to(torch.bfloat16) if t.is_floating_point() else t)(torch.as_tensor(a)))
    def _A_setup():
        B, S, D, H = 1, 2048, 512, 32
        Dh = D // H
        return {
            "x": _w((lambda *s: torch.randn(*s, dtype=torch.bfloat16) * 0.05)(B, S, D)),
            "wq": _w((lambda *s: torch.randn(*s, dtype=torch.bfloat16) * 0.2)(D, H * Dh)),
            "wk": _w((lambda *s: torch.randn(*s, dtype=torch.bfloat16) * 0.2)(D, Dh)),
            "wv": _w((lambda *s: torch.randn(*s, dtype=torch.bfloat16) * 0.1)(D, Dh)),
            "wo": _w((lambda *s: torch.randn(*s, dtype=torch.bfloat16) * 0.1)(H * Dh, D)),
        }
    _A_in = _A_setup()

    def _B_setup():
        B, S, D, Dff = 1, 2048, 512, 1376
        return {
            "x": _w((lambda *s: torch.randn(*s, dtype=torch.bfloat16) * 0.05)(B, S, D)),
            "w1": _w((lambda *s: torch.randn(*s, dtype=torch.bfloat16) * 0.1)(D, Dff)),
            "w2": _w((lambda *s: torch.randn(*s, dtype=torch.bfloat16) * 0.1)(Dff, D)),
        }
    _B_in = _B_setup()

    return {
        "A_x": _A_in["x"],
        "A_wq": _A_in["wq"],
        "A_wk": _A_in["wk"],
        "A_wv": _A_in["wv"],
        "A_wo": _A_in["wo"],
        "B_x": _B_in["x"],
        "B_w1": _B_in["w1"],
        "B_w2": _B_in["w2"],
    }

def reference(A_x, A_wq, A_wk, A_wv, A_wo, B_x, B_w1, B_w2):
    def _A_ref(x, wq, wk, wv, wo):
        B, S, D = x.shape
        H = 32
        Dh = D // H
        q = (lambda x, *d: x.permute(*d))((x @ wq).reshape(B, S, H, Dh), 0, 2, 1, 3)
        k = x @ wk
        v = x @ wv
        scores = torch.einsum("bhqd,bkd->bhqk", q, k) * (Dh ** -0.5)
        p = _softmax(scores, axis=-1)
        o = torch.einsum("bhqk,bkd->bhqd", p, v)
        return (lambda x, *d: x.permute(*d))(o, 0, 2, 1, 3).reshape(B, S, H * Dh) @ wo

    def _B_ref(x, w1, w2):
        h = torch.einsum("bsd,df->bsf", x, w1)
        zero = torch.zeros_like(h)
        h = torch.maximum(h, zero)
        return torch.einsum("bsf,fd->bsd", h, w2)

    x = A_x
    xn = _layernorm(x, axis=-1)
    return x + _A_ref(xn, A_wq, A_wk, A_wv, A_wo) + _B_ref(xn, B_w1, B_w2)
```

```python
class Asm:
    def __init__(self):
        self.lines = []
        self.vm = []
        self.lg = []
        self._lab = 0
    def __call__(self, s):
        for l in s.split("\n"):
            l = l.strip()
            if l:
                self.lines.append(("" if l.endswith(":") or l.startswith(".") else "    ") + l)
    def c(self, s):
        self.lines.append("    ; " + s)
    def label(self, p="L"):
        self._lab += 1
        return "%s_%d" % (p, self._lab)
    def vmem(self, s, tag=None):
        self(s); self.vm.append(tag)
    def lds(self, s, tag=None):
        self(s); self.lg.append(tag)
    def wait_vm(self, tag):
        idx = max(i for i, t in enumerate(self.vm) if t == tag)
        n = len(self.vm) - 1 - idx
        assert n <= 63, n
        self("s_waitcnt vmcnt(%d)" % n)
        self.vm = self.vm[idx + 1:]
    def wait_lg(self, tag):
        idx = max(i for i, t in enumerate(self.lg) if t == tag)
        n = len(self.lg) - 1 - idx
        assert n <= 15, n
        self("s_waitcnt lgkmcnt(%d)" % n)
        self.lg = self.lg[idx + 1:]
    def has_vm(self, tag): return tag in self.vm
    def has_lg(self, tag): return tag in self.lg
    def wait_vm0(self):
        self("s_waitcnt vmcnt(0)"); self.vm = []
    def wait_lg0(self):
        self("s_waitcnt lgkmcnt(0)"); self.lg = []
    def text(self):
        return "\n".join(self.lines) + "\n"

def v(i, n=1):
    return "v%d" % i if n == 1 else "v[%d:%d]" % (i, i + n - 1)
def s(i, n=1):
    return "s%d" % i if n == 1 else "s[%d:%d]" % (i, i + n - 1)
def mfma(d, a, b, c=None):
    cs = v(d, 16) if c is None else (c if isinstance(c, str) else v(c, 16))
    return "v_mfma_f32_32x32x16_bf16 %s, %s, %s, %s" % (v(d, 16), v(a, 4), v(b, 4), cs)

def srd(A, d, base, nbytes):
    A("s_mov_b32 s%d, s%d" % (d, base))
    A("s_mov_b32 s%d, s%d" % (d + 1, base + 1))
    A("s_mov_b32 s%d, 0x%x" % (d + 2, nbytes))
    A("s_mov_b32 s%d, 0x00020000" % (d + 3))

def kernel_begin(A, name):
    A(".globl %s" % name)
    A(".p2align 8")
    A(".type %s,@function" % name)
    A("%s:" % name)

def kd(name, vgpr, sgpr=102, accum=None):
    accum = accum if accum is not None else ((vgpr + 3) // 4) * 4
    return """.p2align 6
.amdhsa_kernel %s
  .amdhsa_next_free_vgpr %d
  .amdhsa_next_free_sgpr %d
  .amdhsa_accum_offset %d
  .amdhsa_group_segment_fixed_size 0
  .amdhsa_kernarg_size 88
  .amdhsa_user_sgpr_count 2
  .amdhsa_user_sgpr_kernarg_segment_ptr 1
  .amdhsa_system_sgpr_workgroup_id_x 1
  .amdhsa_float_denorm_mode_32 3
.end_amdhsa_kernel
""" % (name, vgpr, sgpr, accum)

HEADER = """; Kernarg layout for this problem (88 bytes, ptrs only, base s[0:1]):
"""
```

```python
import sys, struct
from asmlib import *

def f2u(x): return struct.unpack("<I", struct.pack("<f", x))[0]

QF, KVF, AF, WT = 0x0, 0x200000, 0x300000, 0xB00000
WS_BYTES = 0x1000000
NKS = 118
LN_MODE = int(sys.argv[2]) if len(sys.argv) > 2 else 1

def prologue(A, done):
    A("s_cmp_ge_u32 s2, 256")
    A("s_cbranch_scc1 %s" % done)
    A("s_load_dwordx16 s[4:19], s[0:1], 0")
    A("s_load_dwordx4 s[20:23], s[0:1], 64")
    A("s_load_dwordx2 s[24:25], s[0:1], 80")
    A("s_and_b32 s26, s2, 7")
    A("s_lshl_b32 s26, s26, 2")
    A("s_lshr_b32 s27, s2, 3")
    A("s_and_b32 s27, s27, 3")
    A("s_add_u32 s26, s26, s27")
    A("s_lshr_b32 s27, s2, 5")
    A("v_lshrrev_b32 v1, 6, v0")
    A("s_nop 0")
    A("v_readfirstlane_b32 s28, v1")
    A("v_and_b32 v1, 63, v0")
    A("s_waitcnt lgkmcnt(0)")

def k1(A):
    name = "proj_kernel"
    kernel_begin(A, name)
    done = "K1_DONE"
    prologue(A, done)
    XN_PITCH = 528
    Xn_TT = 64 * XN_PITCH
    RING0 = 2 * Xn_TT
    RING_W = 11264
    NSLOT = 10
    X, F = 16, 48
    srd(A, 32, 4, 2048 * 1024)
    srd(A, 36, 24, WS_BYTES)
    A("v_lshrrev_b32 v2, 3, v1")
    A("v_lshlrev_b32 v2, 10, v2")
    A("v_and_b32 v3, 7, v1")
    A("v_lshl_add_u32 v2, v3, 4, v2")
    A("s_lshl_b32 s29, s26, 6")
    A("s_lshl_b32 s30, s28, 3")
    A("s_add_u32 s29, s29, s30")
    A("s_lshl_b32 s29, s29, 10")
    for i in range(8):
        A.vmem("buffer_load_dwordx4 %s, v2, s[32:35], s29 offen offset:%d" % (v(X + 4 * i, 4), 128 * i), "x")
    A("s_mul_i32 s40, s28, %d" % RING_W)
    A("s_add_u32 s40, s40, %d" % RING0)
    A("s_lshl_b32 s41, s2, 3")
    A("s_add_u32 s41, s41, s28")
    A("s_min_u32 s41, s41, 1887")
    A("s_and_b32 s42, s41, 15")
    A("s_lshr_b32 s43, s41, 4")
    A("s_cmp_lt_u32 s43, 86")
    A("s_cselect_b32 s44, s18, s12")
    A("s_cselect_b32 s45, s19, s13")
    A("s_cselect_b32 s46, 0, 86")
    A("s_sub_u32 s46, s43, s46")
    A("s_lshl_b32 s46, s46, 14")
    A("s_lshl_b32 s47, s42, 6")
    A("s_add_u32 s46, s46, s47")
    A("s_add_u32 s44, s44, s46")
    A("s_addc_u32 s45, s45, 0")
    A("v_lshrrev_b32 v4, 2, v1")
    A("v_and_b32 v5, 3, v1")
    A("v_lshlrev_b32 v6, 10, v4")
    A("v_lshl_add_u32 v6, v5, 4, v6")
    A("s_add_u32 m0, s40, %d" % (NSLOT * 1024))
    A("s_nop 0")
    A.vmem("global_load_lds_dwordx4 v6, s[44:45]", "T")
    A("s_mul_i32 s48, s42, %d" % NKS)
    A("s_add_u32 s48, s48, s43")
    A("s_lshl_b32 s48, s48, 10")
    A("s_add_u32 s48, s48, 0x%x" % WT)
    A("s_mul_i32 s51, s27, 6")
    A("s_add_u32 s51, s51, s28")
    A("s_sub_u32 s51, s51, 2")
    A("s_cmp_lt_u32 s28, 2")
    A("s_cbranch_scc1 K1_JQ")
    A("s_cmp_lt_u32 s51, 43")
    A("s_cbranch_scc1 K1_JF")
    A("s_cmp_lt_u32 s51, 45")
    A("s_cbranch_scc1 K1_JKV")
    A("s_mov_b32 s50, 3")
    A("s_mov_b32 s51, 42")
    A("s_branch K1_JF2")
    A("K1_JF:")
    A("s_mov_b32 s50, 1")
    A("K1_JF2:")
    A("s_lshl_b32 s55, s51, 6")
    A("s_add_u32 s52, s16, s55")
    A("s_addc_u32 s53, s17, 0")
    A("s_mov_b32 s54, 2752")
    A("s_branch K1_JREG")
    A("K1_JQ:")
    A("s_mov_b32 s50, 0")
    A("s_lshl_b32 s51, s27, 1")
    A("s_add_u32 s51, s51, s28")
    A("s_lshl_b32 s55, s51, 6")
    A("s_add_u32 s52, s6, s55")
    A("s_addc_u32 s53, s7, 0")
    A("s_mov_b32 s54, 1024")
    A("K1_JREG:")
    A("v_mul_lo_u32 v6, v4, s54")
    A("v_lshl_add_u32 v6, v5, 4, v6")
    A("v_mov_b32 v7, 0")
    A("v_lshl_add_u64 v[12:13], v[6:7], 0, s[52:53]")
    A("s_lshl_b32 s56, s54, 4")
    A("s_branch K1_JDONE")
    A("K1_JKV:")
    A("s_mov_b32 s50, 2")
    A("s_sub_u32 s51, s51, 43")
    A("v_lshlrev_b32 v6, 5, v4")
    A("v_and_b32 v7, 1, v5")
    A("v_lshl_add_u32 v6, v7, 4, v6")
    A("v_mov_b32 v7, 0")
    A("v_lshl_add_u64 v[12:13], v[6:7], 0, s[8:9]")
    A("v_lshl_add_u64 v[14:15], v[6:7], 0, s[10:11]")
    A("v_cmp_lt_u32 vcc, 1, v5")
    A("s_nop 1")
    A("v_cndmask_b32 v12, v12, v14, vcc")
    A("v_cndmask_b32 v13, v13, v15, vcc")
    A("s_mov_b32 s56, 512")
    A("K1_JDONE:")
    A("s_mov_b32 s57, 0")
    def dma(blk):
        A("s_add_u32 m0, s40, %d" % ((blk % NSLOT) * 1024))
        A("s_nop 0")
        A.vmem("global_load_lds_dwordx4 v[12:13], off", "B%d" % blk)
        A("v_lshl_add_u64 v[12:13], v[12:13], 0, s[56:57]")
    for b in range(NSLOT):
        dma(b)
    A("v_lshrrev_b32 v8, 5, v1")
    A("v_bfe_u32 v9, v1, 2, 2")
    A("v_bfe_u32 v10, v1, 4, 1")
    A("v_lshlrev_b32 v11, 3, v5")
    A("v_lshl_add_u32 v11, v10, 5, v11")
    A("v_lshl_add_u32 v11, v9, 6, v11")
    A("v_add_u32 v11, s40, v11")
    A("v_lshl_add_u32 v6, v8, 9, v11")
    A("v_lshl_add_u32 v10, v8, 8, v11")
    A("v_mul_u32_u24 v7, %d, v8" % XN_PITCH)
    A("v_and_b32 v9, 31, v1")
    A("v_lshl_add_u32 v7, v9, 4, v7")
    A("v_add_u32 v8, %d, v7" % Xn_TT)
    A("s_lshr_b32 s58, s28, 2")
    A("s_mul_i32 s58, s58, %d" % Xn_TT)
    A("s_and_b32 s59, s28, 3")
    A("s_lshl_b32 s59, s59, 7")
    A("s_add_u32 s58, s58, s59")
    A("v_mul_u32_u24 v9, %d, v3" % XN_PITCH)
    A("v_lshrrev_b32 v11, 3, v1")
    A("v_lshl_add_u32 v9, v11, 4, v9")
    A("v_add_u32 v9, s58, v9")
    A("v_lshlrev_b32 v11, 4, v1")
    A.wait_vm("x")
    T0 = 112
    for i in range(32):
        A("v_lshlrev_b32 v%d, 16, v%d" % (F + 2 * i, X + i))
        A("v_and_b32 v%d, 0xffff0000, v%d" % (F + 2 * i + 1, X + i))
    A("v_pk_add_f32 %s, %s, %s" % (v(T0, 2), v(F, 2), v(F + 2, 2)))
    A("v_pk_add_f32 %s, %s, %s" % (v(T0 + 2, 2), v(F + 4, 2), v(F + 6, 2)))
    for i in range(4, 32):
        t = T0 + 2 * (i & 1)
        A("v_pk_add_f32 %s, %s, %s" % (v(t, 2), v(t, 2), v(F + 2 * i, 2)))
    A("v_pk_add_f32 %s, %s, %s" % (v(T0, 2), v(T0, 2), v(T0 + 2, 2)))
    A("v_add_f32 v%d, v%d, v%d" % (T0, T0, T0 + 1))
    def red8(r):
        for mode in ["quad_perm:[1,0,3,2]", "quad_perm:[2,3,0,1]", "row_half_mirror"]:
            A("s_nop 1")
            A("v_add_f32_dpp v%d, v%d, v%d %s row_mask:0xf bank_mask:0xf" % (r, r, r, mode))
    red8(T0)
    M, MB = T0 + 4, T0 + 6
    A("v_mul_f32 v%d, 0x%x, v%d" % (M, f2u(1.0 / 512), T0))
    if LN_MODE == 0:
        A("v_mov_b32 v%d, v%d" % (MB, M))
    else:
        A("v_cvt_pk_bf16_f32 v%d, v%d, v%d" % (MB, M, M))
        A("v_lshlrev_b32 v%d, 16, v%d" % (MB, MB))
    A("v_mov_b32 v%d, v%d" % (MB + 1, MB))
    for i in range(32):
        A("v_pk_add_f32 %s, %s, %s neg_lo:[0,1] neg_hi:[0,1]" % (v(F + 2 * i, 2), v(F + 2 * i, 2), v(MB, 2)))
    A("v_pk_mul_f32 %s, %s, %s" % (v(T0, 2), v(F, 2), v(F, 2)))
    A("v_pk_mul_f32 %s, %s, %s" % (v(T0 + 2, 2), v(F + 2, 2), v(F + 2, 2)))
    for i in range(2, 32):
        t = T0 + 2 * (i & 1)
        A("v_pk_fma_f32 %s, %s, %s, %s" % (v(t, 2), v(F + 2 * i, 2), v(F + 2 * i, 2), v(t, 2)))
    A("v_pk_add_f32 %s, %s, %s" % (v(T0, 2), v(T0, 2), v(T0 + 2, 2)))
    A("v_add_f32 v%d, v%d, v%d" % (T0, T0, T0 + 1))
    red8(T0)
    A("v_sub_f32 v%d, v%d, v%d" % (M, M, MB))
    A("v_mul_f32 v%d, v%d, v%d" % (M, M, M))
    A("v_mul_f32 v%d, 0x%x, v%d" % (T0, f2u(1.0 / 512), T0))
    A("v_sub_f32 v%d, v%d, v%d" % (T0, T0, M))
    A("v_max_f32 v%d, 0, v%d" % (T0, T0))
    def rb(r):
        if LN_MODE != 0:
            A("v_cvt_pk_bf16_f32 v%d, v%d, v%d" % (r, r, r))
            A("v_lshlrev_b32 v%d, 16, v%d" % (r, r))
    rb(T0)
    A("v_add_f32 v%d, 0x%x, v%d" % (T0, f2u(1e-5), T0))
    rb(T0)
    A("v_sqrt_f32 v%d, v%d" % (T0, T0))
    A("s_nop 0")
    rb(T0)
    A("v_rcp_f32 v%d, v%d" % (T0, T0))
    A("s_nop 0")
    A("v_mov_b32 v%d, v%d" % (T0 + 1, T0))
    for i in range(32):
        if LN_MODE == 1:
            A("v_cvt_pk_bf16_f32 v%d, v%d, v%d" % (X + i, F + 2 * i, F + 2 * i + 1))
            A("v_lshlrev_b32 v%d, 16, v%d" % (F + 2 * i, X + i))
            A("v_and_b32 v%d, 0xffff0000, v%d" % (F + 2 * i + 1, X + i))
        A("v_pk_mul_f32 %s, %s, %s" % (v(F + 2 * i, 2), v(F + 2 * i, 2), v(T0, 2)))
        A("v_cvt_pk_bf16_f32 v%d, v%d, v%d" % (X + i, F + 2 * i, F + 2 * i + 1))
        if i % 4 == 3:
            A.lds("ds_write_b128 v9, %s offset:%d" % (v(X + i - 3, 4), (i // 4) * 8 * XN_PITCH), "xw")
    A.wait_vm("T")
    A.lds("ds_read_b64_tr_b16 %s, v10 offset:%d" % (v(T0, 2), NSLOT * 1024), "t")
    A.lds("ds_read_b64_tr_b16 %s, v10 offset:%d" % (v(T0 + 2, 2), NSLOT * 1024 + 512), "t")
    A.wait_lg0()
    A.vmem("buffer_store_dwordx4 %s, v11, s[36:39], s48 offen" % v(T0, 4), "TS")
    A("s_barrier")
    A("s_cmp_eq_u32 s50, 3")
    A("s_cbranch_scc1 K1_END")
    A("s_cmp_eq_u32 s50, 2")
    A("s_cbranch_scc1 K1_KVLOOP")
    ACC = [48, 64]
    WF = [80, 84]
    XF = [[88, 92], [96, 100]]
    vm_save = list(A.vm)
    def loop(kv):
        def reads(s_):
            p = s_ & 1
            A.wait_vm("B%d" % s_)
            off = (s_ % NSLOT) * 1024
            A.lds("ds_read_b64_tr_b16 %s, v6 offset:%d" % (v(WF[p], 2), off), "r%d" % s_)
            A.lds("ds_read_b64_tr_b16 %s, v6 offset:%d" % (v(WF[p] + 2, 2), off + 256), "r%d" % s_)
            A.lds("ds_read_b128 %s, v7 offset:%d" % (v(XF[p][0], 4), s_ * 2 * XN_PITCH), "r%d" % s_)
            if not kv:
                A.lds("ds_read_b128 %s, v8 offset:%d" % (v(XF[p][1], 4), s_ * 2 * XN_PITCH), "r%d" % s_)
        reads(0)
        for s_ in range(32):
            p = s_ & 1
            if s_ + 1 < 32:
                reads(s_ + 1)
            A.wait_lg("r%d" % s_)
            c = "0" if s_ == 0 else None
            if kv:
                A(mfma(ACC[0], WF[p], XF[p][0], c))
                A(mfma(ACC[1], XF[p][0], WF[p], c))
            else:
                A(mfma(ACC[0], WF[p], XF[p][0], c))
                A(mfma(ACC[1], WF[p], XF[p][1], c))
            if s_ + NSLOT < 32:
                dma(s_ + NSLOT)
        A("s_nop 15")
    loop(False)
    P = 16
    A("s_cmp_eq_u32 s50, 0")
    A("s_cbranch_scc1 K1_EPQ")
    A("s_lshl_b32 s60, s26, 1")
    A("s_mul_i32 s60, s60, %d" % NKS)
    A("s_lshl_b32 s61, s51, 1")
    A("s_add_u32 s60, s60, s61")
    A("s_lshl_b32 s60, s60, 10")
    A("s_add_u32 s60, s60, 0x%x" % AF)
    A("s_add_u32 s61, s60, %d" % (NKS * 1024))
    for tt in range(2):
        for i in range(8):
            A("v_cvt_pk_bf16_f32 v%d, v%d, v%d" % (P + tt * 8 + i, ACC[tt] + 2 * i, ACC[tt] + 2 * i + 1))
        for i in range(8):
            A("v_pk_max_i16 v%d, v%d, 0" % (P + tt * 8 + i, P + tt * 8 + i))
        A("buffer_store_dwordx4 %s, v11, s[36:39], s%d offen" % (v(P + tt * 8, 4), 60 + tt))
        A("buffer_store_dwordx4 %s, v11, s[36:39], s%d offen offset:1024" % (v(P + tt * 8 + 4, 4), 60 + tt))
    A("s_branch K1_END")
    A("K1_EPQ:")
    A("s_lshl_b32 s60, s26, 6")
    A("s_lshl_b32 s61, s51, 1")
    A("s_add_u32 s60, s60, s61")
    A("s_lshl_b32 s60, s60, 10")
    A("s_add_u32 s60, s60, 0x%x" % QF)
    A("s_add_u32 s61, s60, %d" % (32 * 1024))
    A("s_mov_b32 s62, 0x%x" % f2u(0.25 * 1.4426950408889634))
    A("s_mov_b32 s63, s62")
    for tt in range(2):
        for i in range(8):
            A("v_pk_mul_f32 %s, %s, s[62:63]" % (v(ACC[tt] + 2 * i, 2), v(ACC[tt] + 2 * i, 2)))
        for i in range(8):
            A("v_cvt_pk_bf16_f32 v%d, v%d, v%d" % (P + tt * 8 + i, ACC[tt] + 2 * i, ACC[tt] + 2 * i + 1))
        A("buffer_store_dwordx4 %s, v11, s[36:39], s%d offen" % (v(P + tt * 8, 4), 60 + tt))
        A("buffer_store_dwordx4 %s, v11, s[36:39], s%d offen offset:1024" % (v(P + tt * 8 + 4, 4), 60 + tt))
    A("s_branch K1_END")
    A("K1_KVLOOP:")
    A.vm = list(vm_save); A.lg = []
    A("s_mul_i32 s60, s51, %d" % Xn_TT)
    A("v_add_u32 v7, s60, v7")
    loop(True)
    A("s_lshl_b32 s60, s26, 1")
    A("s_add_u32 s60, s60, s51")
    A("s_lshl_b32 s60, s60, 11")
    A("s_add_u32 s60, s60, 0x%x" % KVF)
    for i in range(4):
        A("v_cvt_pk_bf16_f32 v%d, v%d, v%d" % (P + i, ACC[0] + 2 * i, ACC[0] + 2 * i + 1))
    for i in range(8):
        A("v_cvt_pk_bf16_f32 v%d, v%d, v%d" % (P + 4 + i, ACC[1] + 2 * i, ACC[1] + 2 * i + 1))
    A("buffer_store_dwordx4 %s, v11, s[36:39], s60 offen" % v(P, 4))
    A("s_mov_b32 exec_lo, 0xffff0000")
    A("s_mov_b32 exec_hi, 0xffff0000")
    A("buffer_store_dwordx4 %s, v11, s[36:39], s60 offen offset:1024" % v(P + 4, 4))
    A("buffer_store_dwordx4 %s, v11, s[36:39], s60 offen offset:768" % v(P + 8, 4))
    A("K1_END:")
    A("s_waitcnt vmcnt(0)")
    A("%s:" % done)
    A("s_endpgm")
    A.vm = []; A.lg = []
    return name, 128, RING0 + 8 * RING_W

def k2(A):
    name = "attn_kernel"
    kernel_begin(A, name)
    done = "K2_DONE"
    prologue(A, done)
    srd(A, 36, 24, WS_BYTES)
    Q, K, V, P, C, S, O = 4, 8, [12, 20], 28, 36, [52, 68], 84
    MX, TMP = 100, 101
    A("v_lshlrev_b32 v3, 4, v1")
    A("s_and_b32 s29, s28, 1")
    A("s_lshl_b32 s30, s26, 1")
    A("s_add_u32 s30, s30, s29")
    A("s_lshr_b32 s31, s28, 1")
    A("s_lshl_b32 s29, s27, 2")
    A("s_add_u32 s31, s31, s29")
    A("s_lshl_b32 s40, s30, 5")
    A("s_add_u32 s40, s40, s31")
    A("s_lshl_b32 s40, s40, 10")
    A("s_add_u32 s40, s40, 0x%x" % QF)
    A("buffer_load_dwordx4 %s, v3, s[36:39], s40 offen" % v(Q, 4))
    A("s_lshl_b32 s41, s28, 12")
    for c in range(4):
        A("s_add_u32 m0, s41, %d" % (c * 32768))
        A("s_add_u32 s42, s41, 0x%x" % (KVF + c * 32768))
        for i in range(4):
            A("buffer_load_dwordx4 v3, s[36:39], s42 offen offset:%d lds" % (i * 1024))
    A("s_mov_b32 s44, 0xffff0000")
    A("s_mov_b32 s45, 0xffff0000")
    A("s_mov_b32 s46, 2")
    A("s_mov_b32 s47, 0x%x" % f2u(64.0))
    A("s_waitcnt vmcnt(0)")
    A("s_barrier")
    A("K2_RETRY:")
    A("v_mov_b32 v2, v3")
    A("v_mov_b32 v%d, 0xff800000" % MX)
    A("s_mov_b32 s48, s46")
    A("K2_PRE:")
    A("ds_read_b128 %s, v2" % v(K, 4))
    A("v_add_u32 v2, 2048, v2")
    A("s_waitcnt lgkmcnt(0)")
    A(mfma(S[0], K, Q, "0"))
    A("s_nop 15")
    for i in range(8):
        A("v_max3_f32 v%d, v%d, v%d, v%d" % (MX, S[0] + 2 * i, S[0] + 2 * i + 1, MX))
    A("s_sub_u32 s48, s48, 1")
    A("s_cmp_lg_u32 s48, 0")
    A("s_cbranch_scc1 K2_PRE")
    A("v_mov_b32 v%d, v%d" % (TMP, MX))
    A("s_nop 1")
    A("v_permlane32_swap_b32 v%d, v%d" % (MX, TMP))
    A("v_mov_b32 v2, v3")
    A("ds_read_b128 %s, v2" % v(K, 4))
    A("v_max_f32 v%d, v%d, v%d" % (MX, MX, TMP))
    A("v_add_f32 v%d, s47, v%d" % (MX, MX))
    for i in range(16):
        A("v_sub_f32 v%d, 0, v%d" % (C + i, MX))
    for i in range(16):
        A("v_mov_b32 v%d, 0" % (O + i))
    for i in range(16):
        A("v_mov_b32 v%d, 0x3f803f80" % (V[0] + i))
    for i in range(8):
        A("v_mov_b32 v%d, 0" % (P + i))
    A("s_waitcnt lgkmcnt(0)")
    A(mfma(S[0], K, Q, C))
    A("ds_read_b128 %s, v2 offset:2048" % v(K, 4))
    A("s_mov_b64 exec, s[44:45]")
    A("ds_read_b128 %s, v2 offset:1024" % v(V[0], 4))
    A("ds_read_b128 %s, v2 offset:768" % v(V[0] + 4, 4))
    A("s_mov_b64 exec, -1")
    A("s_mov_b32 s48, 32")
    A("s_nop 7")
    A(".p2align 6")
    A("K2_LOOP:")
    for p in range(2):
        Sc, Sn, Vc, Vp = S[p], S[1 - p], V[p], V[1 - p]
        e = lambda i: A("v_exp_f32 v%d, v%d" % (Sc + i, Sc + i))
        c = lambda i: A("v_cvt_pk_bf16_f32 v%d, v%d, v%d" % (P + i, Sc + 2 * i, Sc + 2 * i + 1))
        A("s_waitcnt lgkmcnt(0)")
        A(mfma(Sn, K, Q, C))
        A("ds_read_b128 %s, v2 offset:%d" % (v(K, 4), (p + 2) * 2048))
        e(0); e(1); e(2); e(3); c(0); e(4)
        A(mfma(O, Vp + 4, P + 4))
        A("s_mov_b64 exec, s[44:45]")
        A("ds_read_b128 %s, v2 offset:%d" % (v(Vp, 4), (p + 1) * 2048 + 1024))
        A("ds_read_b128 %s, v2 offset:%d" % (v(Vp + 4, 4), (p + 1) * 2048 + 768))
        A("s_mov_b64 exec, -1")
        e(5); c(1); e(6); e(7); c(2); e(8); c(3); e(9); e(10)
        A(mfma(O, Vc, P))
        e(11); c(4); e(12); e(13); c(5); e(14); e(15)
        if p == 1:
            A("v_add_u32 v2, 4096, v2")
            A("s_sub_u32 s48, s48, 1")
            A("s_cmp_lg_u32 s48, 0")
        c(6); c(7)
    A("s_cbranch_scc1 K2_LOOP")
    A("s_nop 1")
    A(mfma(O, V[1] + 4, P + 4))
    A("s_waitcnt lgkmcnt(0)")
    A("s_nop 15")
    A("s_cmp_eq_u32 s46, 64")
    A("s_cbranch_scc1 K2_FIN")
    A("v_mov_b32 v%d, 0x108" % TMP)
    A("v_mul_f32 v%d, 4.0, v%d" % (S[0], O))
    A("v_cmp_class_f32 s[50:51], v%d, v%d" % (S[0], TMP))
    for i in range(8):
        A("v_mul_f32 v%d, 0x%x, v%d" % (S[0] + 1 + i, f2u(2.0 ** -26), O + 8 + i))
        A("v_cmp_class_f32 vcc, v%d, v%d" % (S[0] + 1 + i, TMP))
        A("s_and_b64 s[50:51], s[50:51], vcc")
    A("s_cmp_eq_u64 s[50:51], -1")
    A("s_cbranch_scc1 K2_FIN")
    A("s_mov_b32 s46, 64")
    A("s_mov_b32 s47, 0")
    A("s_branch K2_RETRY")
    A("K2_FIN:")
    A("v_rcp_f32 v%d, v%d" % (TMP, O))
    A("s_mul_i32 s40, s30, %d" % NKS)
    A("s_add_u32 s40, s40, s31")
    A("s_add_u32 s40, s40, 86")
    A("s_lshl_b32 s40, s40, 10")
    A("s_add_u32 s40, s40, 0x%x" % AF)
    for i in range(8):
        A("v_mul_f32 v%d, v%d, v%d" % (O + 8 + i, O + 8 + i, TMP))
    for i in range(4):
        A("v_cvt_pk_bf16_f32 v%d, v%d, v%d" % (P + i, O + 8 + 2 * i, O + 9 + 2 * i))
    A("buffer_store_dwordx4 %s, v3, s[36:39], s40 offen" % v(P, 4))
    A("s_waitcnt vmcnt(0)")
    A("%s:" % done)
    A("s_endpgm")
    return name, 104, 131072 + 8192

def k3(A):
    name = "out_kernel"
    kernel_begin(A, name)
    done = "K3_DONE"
    prologue(A, done)
    srd(A, 32, 4, 2048 * 1024)
    srd(A, 36, 24, WS_BYTES)
    srd(A, 40, 20, 2048 * 1024)
    NST = 8
    ACC = [[16, 32], [48, 64]]
    ST = 80
    XR = 208
    A("v_lshlrev_b32 v3, 4, v1")
    A("s_lshl_b32 s29, s28, 10")
    A("s_mul_i32 s30, s27, %d" % (2 * NKS * 1024))
    A("s_add_u32 s30, s30, s29")
    A("s_add_u32 s30, s30, 0x%x" % WT)
    A("v_add_u32 v4, s30, v3")
    A("v_add_u32 v5, %d, v4" % (NKS * 1024))
    A("s_mul_i32 s30, s26, %d" % (2 * NKS * 1024))
    A("s_add_u32 s30, s30, s29")
    A("s_add_u32 s30, s30, 0x%x" % AF)
    A("v_add_u32 v6, s30, v3")
    A("v_add_u32 v7, %d, v6" % (NKS * 1024))
    A("v_lshrrev_b32 v8, 3, v1")
    A("v_and_b32 v9, 7, v1")
    A("v_lshlrev_b32 v10, 10, v8")
    A("v_lshl_add_u32 v10, v9, 4, v10")
    A("s_lshl_b32 s44, s26, 6")
    A("s_lshl_b32 s45, s28, 3")
    A("s_add_u32 s44, s44, s45")
    A("s_lshl_b32 s44, s44, 10")
    A("s_lshl_b32 s45, s27, 7")
    A("s_add_u32 s44, s44, s45")
    A.vmem("buffer_load_dwordx4 %s, v10, s[32:35], s44 offen" % v(XR, 4), "x")
    A("s_cmp_lt_u32 s28, 6")
    A("s_mov_b32 s46, 0x7f000000")
    A("s_cselect_b32 s46, %d, s46" % (14 * 8192))
    def loads(i):
        st = ST + (i % NST) * 16
        if i == 14:
            so = "s46"
        else:
            A("s_mov_b32 s47, %d" % (i * 8192)); so = "s47"
        for q in range(4):
            A.vmem("buffer_load_dwordx4 %s, v%d, s[36:39], %s offen" % (v(st + 4 * q, 4), 4 + q, so), "L%d" % i)
    for i in range(NST):
        loads(i)
    for i in range(15):
        st = ST + (i % NST) * 16
        A.wait_vm("L%d" % i)
        for a in range(2):
            for b in range(2):
                A(mfma(ACC[a][b], st + 4 * a, st + 8 + 4 * b, "0" if i == 0 else None))
        if i + NST < 15:
            loads(i + NST)
    PW = 17408
    A("s_mul_i32 s30, s28, %d" % PW)
    A("v_and_b32 v11, 31, v1")
    A("v_mul_u32_u24 v11, 272, v11")
    A("v_lshrrev_b32 v12, 5, v1")
    A("v_lshl_add_u32 v11, v12, 4, v11")
    A("v_add_u32 v11, s30, v11")
    A("s_mul_i32 s30, s28, %d" % (8 * 272))
    A("v_mul_u32_u24 v12, 272, v8")
    A("v_lshl_add_u32 v12, v9, 5, v12")
    A("v_add_u32 v12, s30, v12")
    A("v_add_u32 v13, %d, v12" % (4 * PW))
    A("s_nop 7")
    for a in range(2):
        for b in range(2):
            for q in range(4):
                A("ds_write_b128 v11, %s offset:%d" % (v(ACC[a][b] + 4 * q, 4), b * 8704 + a * 128 + q * 32))
    A("s_waitcnt lgkmcnt(0)")
    A("s_barrier")
    for p in range(8):
        for hh in range(2):
            A("ds_read_b128 %s, v%d offset:%d" % (v(ST + p * 8 + hh * 4, 4), 12 + p // 4, (p % 4) * PW + hh * 16))
    R = 16
    for i in range(4):
        A("v_lshlrev_b32 v%d, 16, v%d" % (R + 2 * i, XR + i))
        A("v_and_b32 v%d, 0xffff0000, v%d" % (R + 2 * i + 1, XR + i))
    for p in range(8):
        A("s_waitcnt lgkmcnt(%d)" % (14 - 2 * p))
        for i in range(4):
            A("v_pk_add_f32 %s, %s, %s" % (v(R + 2 * i, 2), v(R + 2 * i, 2), v(ST + p * 8 + 2 * i, 2)))
    for i in range(4):
        A("v_cvt_pk_bf16_f32 v%d, v%d, v%d" % (XR + i, R + 2 * i, R + 2 * i + 1))
    A("buffer_store_dwordx4 %s, v10, s[40:43], s44 offen" % v(XR, 4))
    A("s_waitcnt vmcnt(0)")
    A("%s:" % done)
    A("s_endpgm")
    A.vm = []; A.lg = []
    return name, 216, 8 * PW

A = Asm()
A('.amdgcn_target "amdgcn-amd-amdhsa--gfx950"')
A(".text")
ks = [k1(A), k2(A), k3(A)]
out = HEADER
for n, vg, lds in ks:
    out += "; @launch kernel=%s grid=(256,1,1) block=(512,1,1) lds=%d\n" % (n, lds)
out += A.text()
out += '.section .rodata,"a"\n'
for n, vg, lds in ks:
    out += kd(n, vg)
open(sys.argv[1], "w").write(out)
```

```python
class Asm:
    def __init__(self):
        self.lines = []
        self.vm = []
        self.lg = []
        self._lab = 0
    def __call__(self, s):
        for l in s.split("\n"):
            l = l.strip()
            if l:
                self.lines.append(("" if l.endswith(":") or l.startswith(".") else "    ") + l)
    def c(self, s):
        self.lines.append("    ; " + s)
    def label(self, p="L"):
        self._lab += 1
        return "%s_%d" % (p, self._lab)
    def vmem(self, s, tag=None):
        self(s); self.vm.append(tag)
    def lds(self, s, tag=None):
        self(s); self.lg.append(tag)
    def wait_vm(self, tag):
        idx = max(i for i, t in enumerate(self.vm) if t == tag)
        n = len(self.vm) - 1 - idx
        assert n <= 63, n
        self("s_waitcnt vmcnt(%d)" % n)
        self.vm = self.vm[idx + 1:]
    def wait_lg(self, tag):
        idx = max(i for i, t in enumerate(self.lg) if t == tag)
        n = len(self.lg) - 1 - idx
        assert n <= 15, n
        self("s_waitcnt lgkmcnt(%d)" % n)
        self.lg = self.lg[idx + 1:]
    def has_vm(self, tag): return tag in self.vm
    def has_lg(self, tag): return tag in self.lg
    def wait_vm0(self):
        self("s_waitcnt vmcnt(0)"); self.vm = []
    def wait_lg0(self):
        self("s_waitcnt lgkmcnt(0)"); self.lg = []
    def text(self):
        return "\n".join(self.lines) + "\n"

def v(i, n=1):
    return "v%d" % i if n == 1 else "v[%d:%d]" % (i, i + n - 1)
def s(i, n=1):
    return "s%d" % i if n == 1 else "s[%d:%d]" % (i, i + n - 1)
def mfma(d, a, b, c=None):
    cs = v(d, 16) if c is None else (c if isinstance(c, str) else v(c, 16))
    return "v_mfma_f32_32x32x16_bf16 %s, %s, %s, %s" % (v(d, 16), v(a, 4), v(b, 4), cs)

def srd(A, d, base, nbytes):
    A("s_mov_b32 s%d, s%d" % (d, base))
    A("s_mov_b32 s%d, s%d" % (d + 1, base + 1))
    A("s_mov_b32 s%d, 0x%x" % (d + 2, nbytes))
    A("s_mov_b32 s%d, 0x00020000" % (d + 3))

def kernel_begin(A, name):
    A(".globl %s" % name)
    A(".p2align 8")
    A(".type %s,@function" % name)
    A("%s:" % name)

def kd(name, vgpr, sgpr=102, accum=None):
    accum = accum if accum is not None else ((vgpr + 3) // 4) * 4
    return """.p2align 6
.amdhsa_kernel %s
  .amdhsa_next_free_vgpr %d
  .amdhsa_next_free_sgpr %d
  .amdhsa_accum_offset %d
  .amdhsa_group_segment_fixed_size 0
  .amdhsa_kernarg_size 88
  .amdhsa_user_sgpr_count 2
  .amdhsa_user_sgpr_kernarg_segment_ptr 1
  .amdhsa_system_sgpr_workgroup_id_x 1
  .amdhsa_float_denorm_mode_32 3
.end_amdhsa_kernel
""" % (name, vgpr, sgpr, accum)

HEADER = """; Kernarg layout for this problem (88 bytes, ptrs only, base s[0:1]):
"""


class Stamps:
    def __init__(self, A, on, base=70):
        self.A, self.on, self.base, self.n = A, on, base, 0
    def stamp(self):
        if not self.on: return
        A = self.A
        b = self.base + 4 * self.n
        assert b + 3 <= 101
        A("s_memrealtime s[%d:%d]" % (b, b + 1))
        A("s_memtime s[%d:%d]" % (b + 2, b + 3))
        self.n += 1
    def flush(self, srd_ws, off, wave_sreg, tmpv, nwaves=8, tmps=68):
        if not self.on: return
        A = self.A
        A("s_waitcnt lgkmcnt(0)")
        A("s_mov_b64 exec, 1")
        A("s_mul_i32 s%d, s2, %d" % (tmps, nwaves))
        A("s_add_u32 s%d, s%d, s%d" % (tmps, tmps, wave_sreg))
        A("s_lshl_b32 s%d, s%d, 6" % (tmps, tmps))
        A("s_add_u32 s%d, s%d, 0x%x" % (tmps, tmps, off))
        A("v_mov_b32 v%d, 0" % tmpv)
        for i in range(self.n):
            b = self.base + 4 * i
            A("v_mov_b32 v%d, s%d" % (tmpv + 2, b))
            A("v_mov_b32 v%d, s%d" % (tmpv + 3, b + 2))
            A("buffer_store_dwordx2 v[%d:%d], v%d, s[%d:%d], s%d offen offset:%d" % (tmpv + 2, tmpv + 3, tmpv, srd_ws, srd_ws + 3, tmps, i * 8))
            A("s_nop 1")
        A("s_waitcnt vmcnt(0)")


class Stamps2:
    def __init__(self, A, on, base=70):
        self.A, self.on, self.base, self.n = A, on, base, 0
    def stamp(self, cy=False, slot=None):
        if not self.on: return
        if slot is not None: self.n = slot
        b = self.base + 2 * self.n
        assert b + 1 <= 101
        self.A("%s s[%d:%d]" % ("s_memtime" if cy else "s_memrealtime", b, b + 1))
        self.n += 1
    def flush(self, srd_ws, off, wave_sreg, tmpv, nwaves=8, tmps=68):
        if not self.on: return
        A = self.A
        A("s_waitcnt lgkmcnt(0)")
        A("s_mov_b64 exec, 1")
        A("s_mul_i32 s%d, s2, %d" % (tmps, nwaves))
        A("s_add_u32 s%d, s%d, s%d" % (tmps, tmps, wave_sreg))
        A("s_lshl_b32 s%d, s%d, 6" % (tmps, tmps))
        A("s_add_u32 s%d, s%d, 0x%x" % (tmps, tmps, off))
        A("v_mov_b32 v%d, 0" % tmpv)
        for i in range(16):
            A("v_mov_b32 v%d, s%d" % (tmpv + 1, self.base + 2 * i))
            A("buffer_store_dword v%d, v%d, s[%d:%d], s%d offen offset:%d" % (tmpv + 1, tmpv, srd_ws, srd_ws + 3, tmps, i * 4))
            A("s_nop 1")
        A("s_waitcnt vmcnt(0)")
```

```python
import sys, struct
from asmlib import *
def f2u(x): return struct.unpack("<I", struct.pack("<f", x))[0]

OPT = dict(a.split("=") if "=" in a else (a, "1") for a in sys.argv[2:])
STAMP = "stamp" in OPT
def opt(k, d): return type(d)(OPT.get(k, d))

NAME = "parallel_sum__grouped_kv_mqa__dense_activation_relu__prompt_kernel"
KS, HS, OS = opt("ks", 7), opt("hs", 7), opt("os", 7)
EPOCH, KVFLAG, HFLAG, OFLAG = 0x0, 0xC00000, 0xB80000, 0xB00000
KR = opt("kr", 1)
KVF, AF, WT, STOFF = 0x10000, 0x100000, 0x900000, 0xE00000
WS_BYTES = 0x2000000 if "dumpxn" in OPT else 0x1000000
NKS = 118
HUGE = 0x7f000000
Y0, X0, Z0 = 0, 65536, 131072
NSLOT = 5
RING = NSLOT * 2048
MISC = Z0 + 3 * RING
M_W, M_Q, M_X, M_C0, M_C1, M_C23, M_F1, M_H, M_TAG, M_KV, M_HOK, M_O = [MISC + 4 * i for i in range(12)]
M_ST = MISC + 64
LDS_BYTES = 163840
PW = 17408
SC = " sc1"

A = Asm()
A('.amdgcn_target "amdgcn-amd-amdhsa--gfx950"')
A(".text")
kernel_begin(A, NAME)
A("s_cmp_ge_u32 s2, 256")
A("s_cbranch_scc1 DONE")
ST = Stamps2(A, STAMP)
ST.stamp()
A("s_load_dwordx16 s[4:19], s[0:1], 0")
A("s_load_dwordx4 s[20:23], s[0:1], 64")
A("s_load_dwordx2 s[24:25], s[0:1], 80")
A("s_and_b32 s26, s2, 7")
A("s_lshl_b32 s26, s26, 2")
A("s_lshr_b32 s27, s2, 3")
A("s_and_b32 s27, s27, 3")
A("s_add_u32 s26, s26, s27")
A("s_lshr_b32 s27, s2, 5")
if opt("jx", 0): A("s_xor_b32 s27, s27, %d" % opt("jx", 0))
A("v_lshrrev_b32 v1, 6, v0")
A("v_mov_b32 v3, %d" % MISC)
A("v_readfirstlane_b32 s28, v1")
A("v_and_b32 v1, 63, v0")
A("v_lshlrev_b32 v2, 4, v1")
A("s_lshl_b32 s29, s26, 3")
A("s_add_u32 s29, s29, s27")
A("s_cmp_eq_u32 s28, 11")
A("s_cbranch_scc0 NOINIT")
for i in range(4): A("v_mov_b32 v%d, 0" % (4 + i))
A("v_add_u32 v8, %d, v2" % MISC)
A("ds_write_b128 v8, v[4:7]")
A("NOINIT:")
A("s_waitcnt lgkmcnt(0)")
ST.stamp(slot=9); ST.n = 1
srd(A, 32, 4, 2048 * 1024)
srd(A, 36, 24, WS_BYTES)
A("s_cmp_ge_u32 s28, 8")
A("s_cbranch_scc1 G_START")

def spin(word, val, tv, sleep=1):
    L = A.label("SP")
    A("s_mov_b32 s31, 0x40000")
    A("%s:" % L)
    A("ds_read_b32 v%d, v3 offset:%d" % (tv, word - MISC))
    A("s_sub_u32 s31, s31, 1")
    A("s_waitcnt lgkmcnt(0)")
    A("v_readfirstlane_b32 s30, v%d" % tv)
    A("s_cbranch_scc1 %s_X" % L)
    A("s_cmp_ge_u32 s30, %d" % val)
    A("s_cbranch_scc1 %s_X" % L)
    A("s_sleep %d" % sleep)
    A("s_branch %s" % L)
    A("%s_X:" % L)
    A.lg = []
def bump(word, tv):
    A("v_mov_b32 v%d, 1" % tv)
    A("s_mov_b64 exec, 1")
    A.lds("ds_add_u32 v3, v%d offset:%d" % (tv, word - MISC), "bump")
    A("s_mov_b64 exec, -1")
def gpoll(av, soff, tv, n, tag, sleep=2):
    L = A.label("GP")
    A("s_mov_b32 s31, 0x1000")
    A("%s:" % L)
    A("buffer_load_dword%s %s, v%d, s[36:39], %s offen sc1" % ("x4" if n == 4 else "", v(tv, n), av, soff))
    A("s_sub_u32 s31, s31, 1")
    A("s_cbranch_scc1 %s_X" % L)
    A("s_waitcnt vmcnt(0)")
    if n == 4:
        for i in range(4): A("v_xor_b32 v%d, %s, v%d" % (tv + i, tag, tv + i))
        A("v_or3_b32 v%d, v%d, v%d, v%d" % (tv, tv, tv + 1, tv + 2))
        A("v_or_b32 v%d, v%d, v%d" % (tv, tv, tv + 3))
        A("v_cmp_ne_u32 vcc, 0, v%d" % tv)
    else:
        A("v_cmp_ne_u32 vcc, %s, v%d" % (tag, tv))
    A("s_cmp_eq_u64 vcc, 0")
    A("s_cbranch_scc1 %s_X" % L)
    A("s_sleep %d" % sleep)
    A("s_branch %s" % L)
    A("%s_X:" % L)
    A("s_waitcnt vmcnt(0)")
    A.vm = []
def read_tag(dst, tv):
    A("ds_read_b32 v%d, v3 offset:%d" % (tv, M_TAG - MISC))
    A("s_waitcnt lgkmcnt(0)")
    A("v_readfirstlane_b32 s%d, v%d" % (dst, tv))
    A.lg = []
def flag_store(soff, tag, tv):
    A("v_mov_b32 v%d, %s" % (tv, tag))
    A("v_mov_b32 v%d, 0" % (tv + 1))
    A("s_mov_b64 exec, 1")
    A("buffer_store_dword v%d, v%d, s[36:39], %s offen sc1" % (tv, tv + 1, soff))
    A("s_mov_b64 exec, -1")
def mfma16(d, a, b, c=None):
    cs = v(d, 4) if c is None else c
    return "v_mfma_f32_16x16x32_bf16 %s, %s, %s, %s" % (v(d, 4), v(a, 4), v(b, 4), cs)

X, F, T0, XR = 16, 48, 112, 104 + 16
srd(A, 44, 20, 2048 * 1024)
A("v_lshrrev_b32 v4, 3, v1")
A("v_and_b32 v5, 7, v1")
A("v_lshlrev_b32 v6, 10, v4")
A("v_lshl_add_u32 v124, v5, 4, v6")
A("s_lshl_b32 s48, s26, 16")
A("s_lshl_b32 s49, s28, 13")
A("s_add_u32 s48, s48, s49")
for i in range(8):
    A.vmem("buffer_load_dwordx4 %s, v124, s[32:35], s48 offen offset:%d" % (v(X + 4 * i, 4), 128 * i), "x%d" % i)
A("s_lshr_b32 s50, s28, 1")
A("s_lshr_b32 s51, s27, 1")
A("s_cmp_eq_u32 s50, s51")
A("s_cbranch_scc0 A_NOPRIO")
A("s_setprio 2")
A("A_NOPRIO:")
A("s_lshl_b32 s51, s27, 7")
A("s_add_u32 s48, s48, s51")
A.vmem("buffer_load_dwordx4 %s, v124, s[32:35], s48 offen" % v(XR, 4), "xr")
A("s_barrier")
A("s_lshr_b32 s50, s28, 2")
A("s_lshl_b32 s50, s50, 15")
A("s_add_u32 s50, s50, %d" % X0)
A("s_and_b32 s51, s28, 3")
A("s_lshl_b32 s51, s51, 7")
A("s_add_u32 s50, s50, s51")
A("v_xor_b32 v9, v4, v5")
A("v_lshlrev_b32 v9, 4, v9")
A("v_lshl_add_u32 v9, v5, 9, v9")
A("v_add_u32 v9, s50, v9")
A("s_lshl_b32 s50, s28, 6")
A("s_add_u32 s50, s50, %d" % M_ST)
A("v_lshlrev_b32 v10, 3, v4")
A("v_add_u32 v10, s50, v10")
A("s_mov_b32 s54, 0x3f803f80")
for i in range(4): A("v_mov_b32 v%d, 0" % (T0 + i))
for i in range(8):
    A.wait_vm("x%d" % i)
    if i == 0: ST.stamp()
    for k in range(4):
        r = X + 4 * i + k
        A("v_dot2c_f32_bf16 v%d, s54, v%d" % (T0 + (k & 1), r))
        A("v_dot2c_f32_bf16 v%d, v%d, v%d" % (T0 + 2 + (k & 1), r, r))
A.lds("ds_read_b32 v11, v3 offset:%d" % (M_W - MISC), "fw")
A("s_nop 1")
A("v_add_f32 v%d, v%d, v%d" % (T0, T0, T0 + 1))
A("v_add_f32 v%d, v%d, v%d" % (T0 + 2, T0 + 2, T0 + 3))
for mode in ["quad_perm:[1,0,3,2]", "quad_perm:[2,3,0,1]", "row_half_mirror"]:
    A("s_nop 0")
    A("v_add_f32_dpp v%d, v%d, v%d %s row_mask:0xf bank_mask:0xf" % (T0, T0, T0, mode))
    A("v_add_f32_dpp v%d, v%d, v%d %s row_mask:0xf bank_mask:0xf" % (T0 + 2, T0 + 2, T0 + 2, mode))
def rb(r):
    A("v_cvt_pk_bf16_f32 v%d, v%d, v%d" % (r, r, r))
    A("v_lshlrev_b32 v%d, 16, v%d" % (r, r))
M_, V_ = T0, T0 + 2
A("v_mul_f32 v%d, 0x%x, v%d" % (M_, f2u(1.0 / 512), M_))
A("v_mul_f32 v%d, 0x%x, v%d" % (V_, f2u(1.0 / 512), V_))
A("v_fma_f32 v%d, -v%d, v%d, v%d" % (V_, M_, M_, V_))
A("v_max_f32 v%d, 0, v%d" % (V_, V_))
rb(V_)
A("v_add_f32 v%d, 0x%x, v%d" % (V_, f2u(1e-5), V_))
rb(V_)
A("v_sqrt_f32 v%d, v%d" % (V_, V_))
rb(M_)
rb(V_)
A("v_rcp_f32 v%d, v%d" % (M_ + 1, V_))
A("s_nop 0")
A("v_mul_f32 v%d, v%d, v%d" % (M_, M_, M_ + 1))
A.lds("ds_write_b64 v10, %s" % v(M_, 2), "st")
A("s_setprio 0")
A.wait_lg("fw")
A("v_readfirstlane_b32 s30, v11")
A("s_cmp_ge_u32 s30, 1")
A("s_cbranch_scc1 A_WOK")
spin(M_W, 1, 11)
A("A_WOK:")
LNV = opt("lnv", 1)
if LNV == 2:
    A("v_mov_b32 v%d, v%d" % (T0 + 4, M_ + 1)); A("v_mov_b32 v%d, v%d" % (T0 + 5, M_ + 1))
    A("v_sub_f32 v%d, 0, v%d" % (T0 + 6, M_)); A("v_sub_f32 v%d, 0, v%d" % (T0 + 7, M_))
for i in range(33):
    if i < 32:
        A("v_lshlrev_b32 v%d, 16, v%d" % (F + 2 * i, X + i))
        A("v_and_b32 v%d, 0xffff0000, v%d" % (F + 2 * i + 1, X + i))
    else:
        A("s_nop 0")
    if i > 0:
        A("v_cvt_pk_bf16_f32 v%d, v%d, v%d" % (X + i - 1, F + 2 * i - 2, F + 2 * i - 1))
    if i < 32 and LNV == 0:
        A("v_pk_fma_f32 %s, %s, %s, %s op_sel:[0,1,0] op_sel_hi:[1,1,0] neg_lo:[0,0,1] neg_hi:[0,0,1]" % (v(F + 2 * i, 2), v(F + 2 * i, 2), v(M_, 2), v(M_, 2)))
    elif i < 32 and LNV == 1:
        for z in range(2): A("v_fma_f32 v%d, v%d, v%d, -v%d" % (F + 2 * i + z, F + 2 * i + z, M_ + 1, M_))
    elif i < 32 and LNV == 2:
        A("v_pk_fma_f32 %s, %s, %s, %s" % (v(F + 2 * i, 2), v(F + 2 * i, 2), v(T0 + 4, 2), v(T0 + 6, 2)))
    if i > 0 and i % 4 == 0:
        A("ds_write_b128 v9, %s offset:%d" % (v(X + i - 4, 4), (i // 4 - 1) * 4096))
bump(M_X, 11)
A("v_lshrrev_b32 v4, 4, v1")
A("v_and_b32 v5, 15, v1")
A("v_xor_b32 v6, v5, v4")
A("v_lshlrev_b32 v6, 4, v6")
A("v_lshl_add_u32 v6, v4, 9, v6")
A("s_and_b32 s50, s28, 1")
A("s_lshl_b32 s51, s50, 15")
A("s_add_u32 s51, s51, %d" % X0)
A("v_add_u32 v6, s51, v6")
A("v_xor_b32 v7, 64, v6")
A("v_bfe_u32 v8, v1, 2, 2")
A("v_and_b32 v9, 2, v8")
A("v_and_b32 v10, 1, v4")
A("v_or_b32 v9, v9, v10")
A("s_lshr_b32 s51, s28, 1")
A("v_xor_b32 v9, s51, v9")
A("v_lshlrev_b32 v9, 5, v9")
A("v_lshl_add_u32 v8, v4, 3, v8")
A("v_lshl_add_u32 v9, v8, 7, v9")
A("v_and_b32 v10, 3, v1")
A("v_lshl_add_u32 v9, v10, 3, v9")
ST.stamp()
spin(M_X, 11, 11)
QA, QS, QD = 16, 24, 4
def qreads(s_):
    b = QS + (s_ % QD) * 12
    A.lds("ds_read_b64_tr_b16 %s, v9 offset:%d" % (v(b, 2), s_ * 4096), "q%d" % s_)
    A.lds("ds_read_b64_tr_b16 %s, v9 offset:%d" % (v(b + 2, 2), s_ * 4096 + 512), "q%d" % s_)
    A.lds("ds_read_b128 %s, v%d offset:%d" % (v(b + 4, 4), 6 + (s_ & 1), s_ * 2048), "q%d" % s_)
    A.lds("ds_read_b128 %s, v%d offset:%d" % (v(b + 8, 4), 6 + (s_ & 1), s_ * 2048 + 256), "q%d" % s_)
for s_ in range(QD - 1): qreads(s_)
for s_ in range(16):
    A.wait_lg("q%d" % s_)
    if s_ + QD - 1 < 16: qreads(s_ + QD - 1)
    b = QS + (s_ % QD) * 12
    A(mfma16(QA, b, b + 4, "0" if s_ == 0 else None))
    A(mfma16(QA + 4, b, b + 8, "0" if s_ == 0 else None))
if "dumpxn" in OPT:
    A("s_lshl_b32 s52, s28, 13")
    A("v_add_u32 v12, s52, v2")
    A("v_add_u32 v13, %d, v12" % X0)
    A("s_lshl_b32 s52, s2, 16")
    A("s_add_u32 s52, s52, 0x1000000")
    A("s_add_u32 s53, s52, 4096")
    for i in range(8): A("ds_read_b128 %s, v13 offset:%d" % (v(72 + 4 * i, 4), i * 1024))
    A("s_waitcnt lgkmcnt(0)")
    for i in range(8): A("buffer_store_dwordx4 %s, v12, s[36:39], s%d offen offset:%d" % (v(72 + 4 * i, 4), 52 + i // 4, (i & 3) * 1024))
    A("s_waitcnt vmcnt(0)")
bump(M_Q, 11)
Q, K, V, P, C, S, O = 4, 8, [12, 20], 28, 36, [52, 68], 84
MX, TMP = 100, 101
A("s_mov_b32 s52, 0x%x" % f2u(0.25 * 1.4426950408889634))
A("s_nop 4")
for i in range(8): A("v_mul_f32 v%d, s52, v%d" % (QA + i, QA + i))
for i in range(4): A("v_cvt_pk_bf16_f32 v%d, v%d, v%d" % (Q + i, QA + 2 * i, QA + 2 * i + 1))
A("s_nop 1")
A("v_permlane16_swap_b32 v%d, v%d" % (Q, Q + 2))
A("v_permlane16_swap_b32 v%d, v%d" % (Q + 1, Q + 3))
A("s_lshl_b32 s56, s26, 1")
A("s_add_u32 s56, s56, s50")
A("s_mul_i32 s56, s56, %d" % NKS)
A("s_lshl_b32 s57, s27, 2")
A("s_add_u32 s56, s56, s57")
A("s_add_u32 s56, s56, s51")
A("s_lshl_b32 s56, s56, 10")
A("s_add_u32 s56, s56, 0x%x" % (AF + 86 * 1024))
A("s_lshl_b32 s57, s29, 3")
A("s_add_u32 s57, s57, s28")
A("s_lshl_b32 s57, s57, %d" % OS)
A("s_add_u32 s57, s57, 0x%x" % OFLAG)
A("s_lshl_b32 s52, s28, 12")
A("s_add_u32 s53, s52, 0x%x" % KVF)
A("s_mov_b32 m0, s52")
A("s_mov_b32 s58, 0xffff0000")
A("s_mov_b32 s59, 0xffff0000")
A("s_mov_b32 s60, 2")
A("s_mov_b32 s61, 0x%x" % f2u(64.0))
ST.stamp()
spin(M_Q, 9, TMP)
ST.stamp()
for i in range(4):
    A("buffer_load_dwordx4 v2, s[36:39], s53 offen offset:%d @LD lds" % (i * 1024))
read_tag(55, TMP)
A("s_waitcnt vmcnt(0)"); A.vm = []
ST.stamp(slot=10)
bump(M_C0, TMP)
spin(M_C0, 8, TMP)
ST.stamp(slot=11); ST.n = 5
A("A_RETRY:")
A("v_mov_b32 v102, v2")
A("v_mov_b32 v%d, 0xff800000" % MX)
A("s_mov_b32 s62, s60")
A("A_PRE:")
A("ds_read_b128 %s, v102" % v(K, 4))
A("v_add_u32 v102, 2048, v102")
A("s_waitcnt lgkmcnt(0)")
A(mfma(S[0], K, Q, "0"))
A("s_nop 12")
for i in range(8):
    A("v_max3_f32 v%d, v%d, v%d, v%d" % (MX, S[0] + 2 * i, S[0] + 2 * i + 1, MX))
A("s_sub_u32 s62, s62, 1")
A("s_cmp_lg_u32 s62, 0")
A("s_cbranch_scc1 A_PRE")
A("v_mov_b32 v%d, v%d" % (TMP, MX))
A("v_mov_b32 v102, v2")
A("ds_read_b128 %s, v102" % v(K, 4))
A("v_permlane32_swap_b32 v%d, v%d" % (MX, TMP))
for i in range(16): A("v_mov_b32 v%d, 0" % (O + i))
A("v_max_f32 v%d, v%d, v%d" % (MX, MX, TMP))
A("v_add_f32 v%d, s61, v%d" % (MX, MX))
for i in range(16): A("v_sub_f32 v%d, 0, v%d" % (C + i, MX))
for i in range(16): A("v_mov_b32 v%d, s54" % (V[0] + i))
for i in range(8): A("v_mov_b32 v%d, 0" % (P + i))
A("s_waitcnt lgkmcnt(0)")
A(mfma(S[0], K, Q, C))
A("ds_read_b128 %s, v102 offset:2048" % v(K, 4))
A("s_mov_b64 exec, s[58:59]")
A("ds_read_b128 %s, v102 offset:1024" % v(V[0], 4))
A("ds_read_b128 %s, v102 offset:768" % v(V[0] + 4, 4))
A("s_mov_b64 exec, -1")
SEG = [(7, None, 2), (8, (M_C1, 1), None), (opt("p1", 8), (M_C23, 4), None), (opt("p2", 7), None, 1), (opt("p3", 2), None, 0)]
assert sum(x[0] for x in SEG) == 32
A("s_mov_b32 s62, %d" % SEG[0][0])
A("s_mov_b32 s63, 0")
A("s_setprio %d" % SEG[0][2])
ST.stamp()
ST.stamp(cy=True, slot=14); ST.n = 6
A("s_nop 7")
A(".p2align 6")
A("A_LOOP:")
for p in range(2):
    Sc, Sn, Vc, Vp = S[p], S[1 - p], V[p], V[1 - p]
    e = lambda i: A("v_exp_f32 v%d, v%d" % (Sc + i, Sc + i))
    c = lambda i: A("v_cvt_pk_bf16_f32 v%d, v%d, v%d" % (P + i, Sc + 2 * i, Sc + 2 * i + 1))
    A("s_waitcnt lgkmcnt(0)")
    A(mfma(Sn, K, Q, C))
    A("ds_read_b128 %s, v102 offset:%d" % (v(K, 4), (p + 2) * 2048))
    e(0); e(1); e(2); e(3); c(0); e(4)
    A(mfma(O, Vp + 4, P + 4))
    A("s_mov_b64 exec, s[58:59]")
    A("ds_read_b128 %s, v102 offset:%d" % (v(Vp, 4), (p + 1) * 2048 + 1024))
    A("ds_read_b128 %s, v102 offset:%d" % (v(Vp + 4, 4), (p + 1) * 2048 + 768))
    A("s_mov_b64 exec, -1")
    e(5); c(1); e(6); e(7); c(2); e(8); c(3); e(9); e(10)
    A(mfma(O, Vc, P))
    e(11); c(4); e(12); e(13); c(5); e(14); e(15)
    if p == 1:
        A("v_add_u32 v102, 4096, v102")
        A("s_sub_u32 s62, s62, 1")
        A("s_cmp_lg_u32 s62, 0")
    c(6); c(7)
A("s_cbranch_scc1 A_LOOP")
A("s_add_u32 s63, s63, 1")
for i, (n, chk, pr) in enumerate(SEG[1:], 1):
    A("s_cmp_eq_u32 s63, %d" % i)
    A("s_cbranch_scc0 A_SEG%d" % i)
    if chk: spin(chk[0], chk[1], TMP)
    if pr is not None: A("s_setprio %d" % pr)
    A("s_mov_b32 s62, %d" % n)
    A("s_branch A_LOOP")
    A("A_SEG%d:" % i)
A(mfma(O, V[1] + 4, P + 4))
ST.stamp()
ST.stamp(cy=True, slot=15); ST.n = 7
A("s_waitcnt lgkmcnt(0)")
A("v_mov_b32 v%d, 0x108" % TMP)
A("s_cmp_eq_u32 s60, 64")
A("s_nop 9")
A("v_rcp_f32 v%d, v%d" % (MX, O))
A("s_cbranch_scc1 A_FIN")
A("v_mul_f32 v%d, 4.0, v%d" % (S[0], O))
A("v_cmp_class_f32 s[64:65], v%d, v%d" % (S[0], TMP))
for i in range(8):
    A("v_mul_f32 v%d, 0x%x, v%d" % (S[0] + 1 + i, f2u(2.0 ** -26), O + 8 + i))
    A("v_cmp_class_f32 vcc, v%d, v%d" % (S[0] + 1 + i, TMP))
    A("s_and_b64 s[64:65], s[64:65], vcc")
A("s_cmp_eq_u64 s[64:65], -1")
A("s_cbranch_scc1 A_FIN")
A("s_mov_b32 s60, 64")
A("s_mov_b32 s61, 0")
A("s_branch A_RETRY")
A("A_FIN:")
for i in range(8): A("v_mul_f32 v%d, v%d, v%d" % (O + 8 + i, O + 8 + i, MX))
for i in range(4): A("v_cvt_pk_bf16_f32 v%d, v%d, v%d" % (P + i, O + 8 + 2 * i, O + 9 + 2 * i))
A("buffer_store_dwordx4 %s, v2, s[36:39], s56 offen sc1" % v(P, 4))
bump(M_O, 6)
A("s_mul_i32 s50, s28, %d" % (8 * 272))
A("v_lshrrev_b32 v4, 3, v1")
A("v_mul_u32_u24 v4, 272, v4")
A("v_and_b32 v5, 7, v1")
A("v_lshl_add_u32 v4, v5, 5, v4")
A("v_add_u32 v4, s50, v4")
R = 8
for i in range(4):
    A("v_lshlrev_b32 v%d, 16, v%d" % (R + 2 * i, XR + i))
    A("v_and_b32 v%d, 0xffff0000, v%d" % (R + 2 * i + 1, XR + i))
A("s_waitcnt vmcnt(0)")
flag_store("s57", "s55", 6)
ST.stamp()
A("s_barrier")
A("s_barrier")
for p in range(4):
    for hh in range(2):
        A("ds_read_b128 %s, v4 offset:%d" % (v(16 + p * 8 + hh * 4, 4), p * PW + hh * 16))
for p in range(4):
    A("s_waitcnt lgkmcnt(%d)" % (6 - 2 * p))
    for i in range(4):
        A("v_pk_add_f32 %s, %s, %s" % (v(R + 2 * i, 2), v(R + 2 * i, 2), v(16 + p * 8 + 2 * i, 2)))
for i in range(4): A("v_cvt_pk_bf16_f32 v%d, v%d, v%d" % (XR + i, R + 2 * i, R + 2 * i + 1))
A("buffer_store_dwordx4 %s, v124, s[44:47], s48 offen" % v(XR, 4))
if STAMP:
    A("s_waitcnt vmcnt(0)")
    ST.stamp()
    ST.flush(36, STOFF, 28, 4, nwaves=12)
A("s_endpgm")
A.vm = []; A.lg = []

A("G_START:")
A("s_setprio 3")
A("s_sub_u32 s62, s28, 8")
A("s_cmp_eq_u32 s62, 3")
A("s_cbranch_scc1 G3_START")
ST.n = 1
ACC = [[4, 20], [36, 52]]
WF = [[68, 72], [76, 80]]
XF = [[84, 88], [92, 96]]
VD1, VD2, VT1, VT2, VW0, VW1, VP0, VP1, VX = 100, 101, 102, 103, 104, 105, 106, 107, 108
PK = 112
srd(A, 40, 16, 512 * 2752)
srd(A, 48, 12, 512 * 1024)
A("s_lshl_b32 s52, s62, 5")
A("s_add_u32 s52, s52, s26")
A("s_cmp_lt_u32 s52, 86")
A("s_cselect_b32 s44, s18, s12")
A("s_cselect_b32 s45, s19, s13")
A("s_mov_b32 s46, 0x%x" % (512 * 1024))
A("s_cselect_b32 s46, 0x%x, s46" % (1376 * 1024))
A("s_mov_b32 s47, 0x00020000")
A("s_cselect_b32 s53, 0, 86")
A("s_sub_u32 s53, s52, s53")
A("s_lshl_b32 s53, s53, 14")
A("s_lshl_b32 s54, s27, 7")
A("s_add_u32 s53, s53, s54")
A("s_mul_i32 s55, s27, %d" % (2 * NKS))
A("s_add_u32 s56, s55, s52")
A("s_lshl_b32 s56, s56, 10")
A("s_add_u32 s56, s56, 0x%x" % WT)
A("s_add_u32 s57, s26, 10")
A("s_lshl_b32 s57, s57, 14")
A("s_add_u32 s57, s57, s54")
A("s_add_u32 s58, s55, s26")
A("s_lshl_b32 s58, s58, 10")
A("s_add_u32 s58, s58, 0x%x" % (WT + 96 * 1024))
A("s_cmp_lt_u32 s26, 22")
A("s_cselect_b32 s59, s62, 0")
A("s_cmp_eq_u32 s59, 2")
A("s_cselect_b32 s57, s57, 0x%x" % HUGE)
A("s_cselect_b32 s58, s58, 0x%x" % HUGE)
A("s_mul_i32 s59, s27, 3")
A("s_lshl_b32 s60, s27, 1")
A("s_add_u32 s60, s60, 6")
A("s_cmp_lt_u32 s27, 6")
A("s_cselect_b32 s59, s59, s60")
A("s_cselect_b32 s61, 0, s62")
A("s_add_u32 s59, s59, s62")
A("s_lshl_b32 s60, s59, 7")
A("s_cmp_eq_u32 s61, 2")
A("s_cselect_b32 s60, 0x%x, s60" % HUGE)
A("s_mul_i32 s63, s62, %d" % RING)
A("s_add_u32 s63, s63, %d" % Z0)
A("v_lshrrev_b32 v4, 3, v1")
A("v_and_b32 v5, 2, v4")
A("v_lshlrev_b32 v5, 1, v5")
A("v_and_b32 v6, 7, v1")
A("v_xor_b32 v5, v5, v6")
A("v_lshlrev_b32 v5, 4, v5")
A("v_lshl_add_u32 v%d, v4, 10, v5" % VT1)
A("v_add_u32 v%d, %d, v%d" % (VT2, 8192 - 1024, VT1))
A("v_mul_u32_u24 v%d, 2752, v4" % VD1)
A("v_add_u32 v%d, v%d, v5" % (VD1, VD1))
A("v_add_u32 v%d, %d, v%d" % (VD2, 8 * 2752 - 1024, VD1))
def dma(e):
    A("s_add_u32 m0, s63, %d" % ((e % NSLOT) * 2048))
    if e == 0: sr, so, a, b = 44, "s53", VT1, VT2
    elif e == 1: sr, so, a, b = 48, "s57", VT1, VT2
    else: sr, so, a, b = 40, "s60", VD1, VD2
    A("s_nop 0")
    A.vmem("buffer_load_dwordx4 v%d, %s, %s offen lds" % (a, s(sr, 4), so), "E%d" % e)
    A.vmem("buffer_load_dwordx4 v%d, %s, %s offen offset:1024 lds" % (b, s(sr, 4), so), "E%d" % e)
    if e >= 2: A("s_add_u32 s60, s60, %d" % (16 * 2752))
A("s_barrier")
srd(A, 64, 6, 512 * 1024)
A("v_and_b32 v7, 2, v4")
A("s_and_b32 s30, s62, 1")
A("v_or_b32 v7, s30, v7")
A("v_lshlrev_b32 v7, 1, v7")
A("v_xor_b32 v7, v7, v6")
A("v_lshlrev_b32 v7, 4, v7")
A("v_lshl_add_u32 v7, v4, 10, v7")
A("v_xor_b32 v8, 32, v7")
A("s_lshl_b32 s30, s62, 13")
A("s_add_u32 s30, s30, s54")
A("s_lshl_b32 s31, s62, 10")
for i in range(22):
    if i == 21:
        A("s_cmp_eq_u32 s62, 0")
        A("s_cbranch_scc0 G_WQD")
    A("s_add_u32 m0, s31, %d" % (Y0 + i * 3072))
    A("s_nop 0")
    A.vmem("buffer_load_dwordx4 v%d, s[64:67], s30 offen lds" % (7 + (i & 1)), "wq")
    A("s_add_u32 s30, s30, %d" % (3 * 8192))
A("G_WQD:")
if opt("re", 0):
    for e_ in range(NSLOT): dma(e_)
    A.wait_vm("wq")
    bump(M_X, 9)
else:
    A.wait_vm0()
    bump(M_X, 9)
    for e_ in range(NSLOT): dma(e_)
ST.stamp(slot=10); ST.n = 1
A("v_lshrrev_b32 v4, 5, v1")
A("v_bfe_u32 v5, v1, 2, 2")
A("v_bfe_u32 v6, v1, 4, 1")
A("v_and_b32 v7, 2, v5")
A("v_or_b32 v6, v6, v7")
A("v_lshlrev_b32 v6, 5, v6")
A("v_and_b32 v7, 3, v1")
A("v_lshl_add_u32 v6, v7, 3, v6")
A("v_lshl_add_u32 v6, v5, 7, v6")
A("v_add_u32 v6, s63, v6")
A("v_lshl_add_u32 v%d, v4, 10, v6" % VW0)
A("v_xor_b32 v%d, 64, v%d" % (VW1, VW0))
A("v_lshl_add_u32 v%d, v4, 9, v6" % VP0)
A("v_xor_b32 v%d, 64, v%d" % (VP1, VP0))
A("v_and_b32 v5, 31, v1")
for m in range(4):
    A("v_or_b32 v6, %d, v4" % (2 * m))
    A("v_xor_b32 v6, v6, v5")
    A("v_lshlrev_b32 v6, 4, v6")
    A("v_lshl_add_u32 v6, v4, 9, v6")
    A("v_add_u32 v%d, %d, v6" % (VX + m, X0))
for e_ in range(2):
    A.wait_vm("E%d" % e_)
    for a in range(2):
        A.lds("ds_read_b64_tr_b16 %s, v%d offset:%d" % (v(PK + e_ * 8 + a * 4, 2), VP0 + a, e_ * 2048), "t")
        A.lds("ds_read_b64_tr_b16 %s, v%d offset:%d" % (v(PK + e_ * 8 + a * 4 + 2, 2), VP0 + a, e_ * 2048 + 1024), "t")
    A.wait_lg0()
    d = 56 + 2 * e_
    A.vmem("buffer_store_dwordx4 %s, v2, s[36:39], s%d offen sc1" % (v(PK + e_ * 8, 4), d), "TS")
    A("s_add_u32 s%d, s%d, %d" % (d, d, NKS * 1024))
    A.vmem("buffer_store_dwordx4 %s, v2, s[36:39], s%d offen sc1" % (v(PK + e_ * 8 + 4, 4), d), "TS")
    dma(e_ + NSLOT)
ST.stamp()
A("s_mul_i32 s52, s26, %d" % (2 * NKS))
A("s_lshl_b32 s53, s59, 2")
A("s_add_u32 s52, s52, s53")
A("s_lshl_b32 s52, s52, 10")
A("s_add_u32 s52, s52, 0x%x" % AF)
A("s_add_u32 s53, s52, %d" % (NKS * 1024))
A("s_cmp_eq_u32 s59, 21")
A("s_cselect_b32 s54, 0x%x, s52" % HUGE)
A("s_cselect_b32 s55, 0x%x, s53" % HUGE)
A("s_cmp_eq_u32 s61, 2")
A("s_cbranch_scc1 G_F1DONE")
spin(M_X, 11, 4)
ST.stamp()
def reads(s_):
    p = s_ & 1
    e_ = s_ + 2
    A.wait_vm("E%d" % e_)
    off = (e_ % NSLOT) * 2048
    for a in range(2):
        A.lds("ds_read_b64_tr_b16 %s, v%d offset:%d" % (v(WF[p][a], 2), VW0 + a, off), "r%d" % s_)
        A.lds("ds_read_b64_tr_b16 %s, v%d offset:%d" % (v(WF[p][a] + 2, 2), VW0 + a, off + 512), "r%d" % s_)
    for t in range(2):
        A.lds("ds_read_b128 %s, v%d offset:%d" % (v(XF[p][t], 4), VX + (s_ & 3), s_ * 1024 + t * 32768), "r%d" % s_)
reads(0)
for s_ in range(32):
    p = s_ & 1
    A.wait_lg("r%d" % s_)
    A(mfma(ACC[0][0], WF[p][0], XF[p][0], "0" if s_ == 0 else None))
    if s_ + 2 + NSLOT < 34: dma(s_ + 2 + NSLOT)
    A(mfma(ACC[0][1], WF[p][0], XF[p][1], "0" if s_ == 0 else None))
    if s_ + 1 < 32: reads(s_ + 1)
    A(mfma(ACC[1][0], WF[p][1], XF[p][0], "0" if s_ == 0 else None))
    A(mfma(ACC[1][1], WF[p][1], XF[p][1], "0" if s_ == 0 else None))
ST.stamp()
A("s_nop 9")
for a in range(2):
    for t in range(2):
        b = PK + (2 * a + t) * 8
        for i in range(8): A("v_cvt_pk_bf16_f32 v%d, v%d, v%d" % (b + i, ACC[a][t] + 2 * i, ACC[a][t] + 2 * i + 1))
        for i in range(8): A("v_pk_max_i16 v%d, v%d, 0" % (b + i, b + i))
        A("buffer_store_dwordx4 %s, v2, s[36:39], s%d offen offset:%d sc1" % (v(b, 4), 52 + 2 * a + t, a * 2048))
        A("buffer_store_dwordx4 %s, v2, s[36:39], s%d offen offset:%d sc1" % (v(b + 4, 4), 52 + 2 * a + t, a * 2048 + 1024))
A("G_F1DONE:")
A.vm = []; A.lg = []
if STAMP: ST.n = 4
bump(M_F1, 4)
A("s_branch G_JOIN")

A("G3_START:")
ST.n = 1
A("s_load_dword s60, s[24:25], 0x%x" % EPOCH)
A("s_and_b32 s52, s27, 1")
A("s_cmp_eq_u32 s52, 0")
A("s_cselect_b32 s40, s8, s10")
A("s_cselect_b32 s41, s9, s11")
A("s_mov_b32 s42, 0x4000")
A("s_mov_b32 s43, 0x00020000")
for i in range(4):
    A("s_mov_b32 m0, %d" % (X0 + i * 4096))
    A("s_mov_b32 s53, %d" % (i * 4096))
    for k in range(4):
        A.vmem("buffer_load_dwordx4 v2, s[40:43], s53 offen offset:%d lds" % (k * 1024), "w")
GW, GX, GA, GC, GS = 4, 68, 132, 136, 140
A("v_lshrrev_b32 v150, 4, v1")
A("v_and_b32 v151, 15, v1")
A("v_lshlrev_b32 v152, 10, v151")
A("v_lshl_add_u32 v152, v150, 4, v152")
A("s_lshr_b32 s54, s27, 1")
A("s_lshl_b32 s55, s54, 14")
A("s_lshl_b32 s53, s26, 16")
A("s_add_u32 s53, s53, s55")
for i in range(16):
    A.vmem("buffer_load_dwordx4 %s, v152, s[32:35], s53 offen offset:%d" % (v(GX + 4 * i, 4), 64 * i), "x%d" % i)
A("s_barrier")
A("s_waitcnt lgkmcnt(0)")
A("s_mul_i32 s60, s60, 0x9E3779B1")
A("s_add_u32 s60, s60, 0x7F4A7C15")
A("v_mov_b32 v153, s60")
A("ds_write_b32 v3, v153 offset:%d" % (M_TAG - MISC))
A("v_bfe_u32 v153, v1, 2, 2")
A("v_lshl_add_u32 v153, v150, 3, v153")
A("v_lshlrev_b32 v153, 5, v153")
A("v_and_b32 v154, 3, v1")
A("v_lshl_add_u32 v153, v154, 3, v153")
A("v_add_u32 v153, %d, v153" % X0)
for i in range(4): A("v_mov_b32 v%d, 0x3f803f80" % (GS + i))
A.wait_vm("w")
for i in range(16):
    A("ds_read_b64_tr_b16 %s, v153 offset:%d" % (v(GW + 4 * i, 2), i * 1024))
    A("ds_read_b64_tr_b16 %s, v153 offset:%d" % (v(GW + 4 * i + 2, 2), i * 1024 + 128))
    if i == 6 or i == 13: A("s_waitcnt lgkmcnt(0)")
A("s_waitcnt lgkmcnt(0)")
bump(M_W, 154)
ST.stamp()
A("s_lshr_b32 s57, s54, 1")
A("s_lshl_b32 s56, s57, 5")
A("s_add_u32 s56, s56, s26")
A("s_lshl_b32 s59, s56, 2")
A("s_and_b32 s57, s27, 3")
A("s_add_u32 s59, s59, s57")
A("s_lshl_b32 s59, s59, %d" % KS)
A("s_add_u32 s59, s59, 0x%x" % KVFLAG)
A("s_lshl_b32 s56, s56, 11")
A("s_add_u32 s56, s56, 0x%x" % KVF)
A("s_and_b32 s57, s54, 1")
A("s_lshl_b32 s58, s54, 7")
A("s_add_u32 s58, s58, %d" % M_ST)
A("s_cmp_eq_u32 s52, 0")
A("s_cbranch_scc0 G3_V")
vm_save = list(A.vm)
for kind in range(2):
    A.vm = list(vm_save)
    if kind == 1: A("G3_V:")
    for i in range(16):
        c0 = "0" if i == 0 else None
        A(mfma16(GC, GW + 4 * i, GS, c0) if kind == 0 else mfma16(GC, GS, GW + 4 * i, c0))
    if kind == 0:
        A("v_lshlrev_b32 v154, 3, v151")
        A("v_add_u32 v154, s58, v154")
        A("v_lshrrev_b32 v155, 1, v150")
        A("v_lshlrev_b32 v155, 9, v155")
        A("v_lshl_add_u32 v155, v151, 4, v155")
        A("v_and_b32 v156, 1, v150")
        A("v_lshl_add_u32 v155, v156, 3, v155")
        A("s_lshl_b32 s57, s57, 8")
        A("s_add_u32 s56, s56, s57")
    else:
        A("v_lshlrev_b32 v154, 5, v150")
        A("v_add_u32 v154, s58, v154")
        A("v_and_b32 v155, 1, v150")
        A("v_lshlrev_b32 v155, 9, v155")
        A("v_lshl_add_u32 v155, v151, 4, v155")
        A("v_lshrrev_b32 v156, 1, v150")
        A("v_lshl_add_u32 v155, v156, 3, v155")
        A("s_lshl_b32 s57, s57, 8")
        A("s_sub_u32 s56, s56, s57")
        A("s_add_u32 s56, s56, %d" % (1024 + 256))
    for i in range(16):
        A.wait_vm("x%d" % i)
        c0 = "0" if i == 0 else None
        A(mfma16(GA, GW + 4 * i, GX + 4 * i, c0) if kind == 0 else mfma16(GA, GX + 4 * i, GW + 4 * i, c0))
    L = A.label("STS")
    A("s_mov_b32 s31, 0x40000")
    A("%s:" % L)
    if kind == 0:
        A("ds_read_b64 %s, v154" % v(GS, 2))
    else:
        A("ds_read_b128 %s, v154" % v(GS, 4))
        A("ds_read_b128 %s, v154 offset:16" % v(GS + 4, 4))
    A("s_sub_u32 s31, s31, 1")
    A("s_cbranch_scc1 %s_X" % L)
    A("s_waitcnt lgkmcnt(0)")
    if kind == 0:
        A("v_cmp_eq_u32 vcc, 0, v%d" % (GS + 1))
    else:
        A("v_min_u32 v156, v%d, v%d" % (GS + 1, GS + 3))
        A("v_min3_u32 v156, v%d, v%d, v156" % (GS + 5, GS + 7))
        A("v_cmp_eq_u32 vcc, 0, v156")
    A("s_cmp_eq_u64 vcc, 0")
    A("s_cbranch_scc0 %s" % L)
    A("%s_X:" % L)
    A("s_waitcnt lgkmcnt(0)")
    for i in range(4):
        o = 0 if kind == 0 else 2 * i
        A("v_mul_f32 v%d, v%d, v%d" % (GA + i, GA + i, GS + o + 1))
        A("v_fma_f32 v%d, -v%d, v%d, v%d" % (GA + i, GS + o, GC + i, GA + i))
    A("v_cvt_pk_bf16_f32 v%d, v%d, v%d" % (GA, GA, GA + 1))
    A("v_cvt_pk_bf16_f32 v%d, v%d, v%d" % (GA + 1, GA + 2, GA + 3))
    if kind == 0: A("s_branch G3_PUB")
A("G3_PUB:")
A("buffer_store_dwordx2 %s, v155, s[36:39], s56 offen sc1" % v(GA, 2))
ST.stamp()
A("s_mov_b32 s58, 0x%x" % KVFLAG)
A("v_lshlrev_b32 v6, %d, v1" % KS)
A("s_and_b32 s57, s2, %d" % (KR - 1))
A("s_lshl_b32 s57, s57, %d" % (8 + KS))
A("v_add_u32 v6, s57, v6")
A("v_mov_b32 v4, s60")
A("v_lshlrev_b32 v5, %d, v1" % (8 + KS))
A("s_mov_b64 exec, 0x%x" % ((1 << KR) - 1) if KR < 32 else "s_mov_b64 exec, -1" if KR == 64 else "s_mov_b32 exec_hi, 0")
A("s_waitcnt vmcnt(0)")
A("buffer_store_dword v4, v5, s[36:39], s59 offen sc1")
A("s_mov_b64 exec, -1")
ST.stamp()
if opt("pd", 0) == 1: spin(M_X, 11, 4)
if opt("pd", 0) == 2: spin(M_Q, 8, 4)
gpoll(6, "s58", 4, 1, "s60", opt("ksleep", 2))
ST.stamp(slot=10); ST.n = 4
if STAMP: A("s_sub_u32 s98, 0x1000, s31")
bump(M_Q, 4)
A("s_mov_b32 s58, 0x%x" % (KVFLAG + (64 << KS)))
gpoll(6, "s58", 4, 1, "s60", opt("ksleep", 2))
spin(M_C0, 8, 4)
for i in range(8):
    A("s_mov_b32 m0, %d" % (32768 + i * 4096))
    A("s_mov_b32 s53, 0x%x" % (KVF + 32768 + i * 4096))
    for k in range(4):
        A("buffer_load_dwordx4 v2, s[36:39], s53 offen offset:%d @LD lds" % (k * 1024))
A("s_waitcnt vmcnt(0)")
bump(M_C1, 4)
for c_ in (2, 3):
    A("s_mov_b32 s58, 0x%x" % (KVFLAG + ((64 * c_) << KS)))
    gpoll(6, "s58", 4, 1, "s60", opt("ksleep", 2))
bump(M_KV, 4)

A("G_JOIN:")
A.vm = []; A.lg = []
spin(M_F1, 3, 4)
spin(M_KV, 1, 4)
read_tag(61, 4)
ST.stamp(slot=13); ST.n = 4
A("s_lshl_b32 s52, s62, 14")
for i in range(4):
    A("s_add_u32 m0, s52, %d" % (65536 + i * 4096))
    A("s_add_u32 s53, s52, 0x%x" % (KVF + 65536 + i * 4096))
    for k in range(4):
        A("buffer_load_dwordx4 v2, s[36:39], s53 offen offset:%d @LD lds" % (k * 1024))
ST.stamp(slot=11)
A("s_waitcnt vmcnt(16)")
ST.stamp(slot=12); ST.n = 4
A("v_mov_b32 v4, 1")
A("s_mov_b64 exec, 1")
A("ds_add_rtn_u32 v5, v3, v4 offset:%d" % (M_H - MISC))
A("s_mov_b64 exec, -1")
A("s_lshl_b32 s57, s29, %d" % HS)
A("s_add_u32 s57, s57, 0x%x" % HFLAG)
A("s_waitcnt lgkmcnt(0)")
A("v_readfirstlane_b32 s30, v5")
A("s_cmp_eq_u32 s30, 3")
A("s_cbranch_scc0 G_NOFLAG")
flag_store("s57", "s61", 4)
A("G_NOFLAG:")
A("s_lshl_b32 s52, s26, 3")
A("v_add_u32 v4, s52, v1")
A("v_subrev_u32 v5, 8, v1")
A("v_lshlrev_b32 v5, 3, v5")
A("v_add_u32 v5, s27, v5")
A("v_mov_b32 v6, s29")
A("v_cmp_gt_u32 vcc, 40, v1")
A("s_nop 1")
A("v_cndmask_b32 v5, v6, v5, vcc")
A("v_cmp_gt_u32 vcc, 8, v1")
A("s_nop 1")
A("v_cndmask_b32 v5, v5, v4, vcc")
A("v_lshlrev_b32 v5, %d, v5" % HS)
A("s_mul_i32 s52, s27, %d" % (2 * NKS * 1024))
A("s_add_u32 s52, s52, 0x%x" % WT)
A("s_mul_i32 s53, s26, %d" % (2 * NKS * 1024))
A("s_add_u32 s53, s53, 0x%x" % AF)
A("v_add_u32 v164, s52, v2")
A("v_add_u32 v165, %d, v164" % (NKS * 1024))
A("v_add_u32 v166, s53, v2")
A("v_add_u32 v167, %d, v166" % (NKS * 1024))
A("s_lshl_b32 s54, s62, 10")
A("s_cmp_lt_u32 s62, 2")
A("s_cselect_b32 s55, 0, 0x%x" % HUGE)
A("s_waitcnt vmcnt(0)")
bump(M_C23, 4)
A("s_mov_b32 s58, 0x%x" % HFLAG)
ST.stamp()
A("s_cmp_eq_u32 s62, 3")
A("s_cbranch_scc0 G_HW")
gpoll(5, "s58", 4, 1, "s61", opt("hsleep", 8))
bump(M_HOK, 4)
A("G_HW:")
spin(M_HOK, 1, 4, 4)
ST.stamp()
NST, SB, NI = 6, 68, 22
def loads(i):
    st = SB + (i % NST) * 16
    if i == NI - 1: A("s_add_u32 s54, s54, s55")
    for q in range(4):
        A.vmem("buffer_load_dwordx4 %s, v%d, s[36:39], s54 offen @LD" % (v(st + 4 * q, 4), 164 + q), "L%d" % i)
    if i < NI - 1: A("s_add_u32 s54, s54, 4096")
for i in range(NST): loads(i)
for i in range(NI):
    st = SB + (i % NST) * 16
    A.wait_vm("L%d" % i)
    for a in range(2):
        for b in range(2):
            A(mfma(ACC[a][b], st + 4 * a, st + 8 + 4 * b, "0" if i == 0 else None))
    if i + NST < NI: loads(i + NST)
A("s_lshl_b32 s54, s62, 13")
A("s_add_u32 s54, s54, %d" % (86 * 1024))
WR, OR_ = 68, 104
fr = [(i, a) for i in range(8) for a in range(2)]
for n, (i, a) in enumerate(fr[:9]):
    if i == 4: A("s_add_u32 s54, s54, 4096")
    A("buffer_load_dwordx4 %s, v%d, s[36:39], s54 offen offset:%d @LD" % (v(WR + 4 * n, 4), 164 + a, (i & 3) * 1024))
A("s_mul_i32 s56, s62, 7168")
A("s_add_u32 s56, s56, %d" % Z0)
for n, (i, a) in enumerate(fr[9:]):
    A("s_add_u32 m0, s56, 0x%x" % (((n - (i & 3)) * 1024) & 0xffffffff))
    A("s_nop 0")
    A("buffer_load_dwordx4 v%d, s[36:39], s54 offen offset:%d @LD lds" % (164 + a, (i & 3) * 1024))
ST.stamp()
spin(M_O, opt("ow", 8), 0, 4)
A("v_add_u32 v3, s56, v2")
A("v_and_b32 v0, 15, v1")
A("v_lshlrev_b32 v0, %d, v0" % OS)
A("s_lshl_b32 s57, s26, %d" % (6 + OS))
A("s_lshl_b32 s58, s62, %d" % (4 + OS))
A("s_add_u32 s58, s58, s57")
A("s_add_u32 s58, s58, 0x%x" % OFLAG)
A("s_lshl_b32 s54, s62, 13")
A("s_add_u32 s54, s54, s53")
A("s_add_u32 s54, s54, %d" % (86 * 1024))
A("s_add_u32 s55, s54, %d" % (NKS * 1024))
A("s_add_u32 s56, s54, 4096")
A("s_add_u32 s57, s55, 4096")
gpoll(0, "s58", 1, 1, "s61", opt("osleep", 2))
ST.stamp()
for i in range(8):
    for t in range(2):
        A.vmem("buffer_load_dwordx4 %s, v2, s[36:39], s%d offen offset:%d @LD" % (v(OR_ + 8 * i + 4 * t, 4), 54 + t + 2 * (i >> 2), (i & 3) * 1024), "o%d" % i)
wreg = {fr[n]: WR + 4 * n for n in range(9)}
nxt = 9
for i in range(8):
    A.wait_vm("o%d" % i)
    if A.has_lg("w%d" % i): A.wait_lg("w%d" % i)
    for a in range(2):
        for t in range(2):
            A(mfma(ACC[a][t], wreg[(i, a)], OR_ + 8 * i + 4 * t))
    for a in range(2):
        if nxt < 16:
            wreg[fr[nxt]] = wreg[(i, a)]
            A.lds("ds_read_b128 %s, v3 offset:%d" % (v(wreg[(i, a)], 4), (nxt - 9) * 1024), "w%d" % fr[nxt][0])
            nxt += 1
A("v_lshrrev_b32 v0, 4, v2")
A("v_and_b32 v1, 31, v0")
A("v_mul_u32_u24 v1, 272, v1")
A("v_lshrrev_b32 v0, 5, v0")
A("v_lshl_add_u32 v1, v0, 4, v1")
A("s_mul_i32 s52, s62, %d" % PW)
A("v_add_u32 v1, s52, v1")
ST.stamp()
A("s_barrier")
A("s_nop 4")
for a in range(2):
    for b in range(2):
        for q in range(4):
            A("ds_write_b128 v1, %s offset:%d" % (v(ACC[a][b] + 4 * q, 4), b * 8704 + a * 128 + q * 32))
A("s_waitcnt lgkmcnt(0)")
A("s_barrier")
A("s_cmp_eq_u32 s2, 0")
A("s_cselect_b32 s52, s62, 0")
A("s_cmp_eq_u32 s52, 3")
A("s_cbranch_scc0 G_END")
A("s_mov_b32 s52, 0x%x" % EPOCH)
flag_store("s52", "s61", 4)
A("G_END:")
ST.stamp()
if STAMP:
    ST.flush(36, STOFF, 28, 4, nwaves=12)
A("DONE:")
A("s_endpgm")

out = HEADER + "; @launch grid=(256,1,1) block=(768,1,1) lds=%d\n" % LDS_BYTES
out += A.text().replace(" @LD", " sc1" if opt("ldsc", 0) else "")
out += '.section .rodata,"a"\n' + kd(NAME, 168)
open(sys.argv[1], "w").write(out)
```

```python
import sys, struct
from asmlib import *
def f2u(x): return struct.unpack("<I", struct.pack("<f", x))[0]

OPT = dict(a.split("=") if "=" in a else (a, "1") for a in sys.argv[2:])
STAMP = "stamp" in OPT
def opt(k, d): return type(d)(OPT.get(k, d))

NAME = "parallel_sum__grouped_kv_mqa__dense_activation_relu__prompt_kernel"
KS, HS, OS = opt("ks", 7), opt("hs", 7), opt("os", 7)
EPOCH, KVFLAG, HFLAG, OFLAG = 0x0, 0xC00000, 0xB80000, 0xB00000
KR = opt("kr", 1)
KVF, AF, WT, STOFF = 0x10000, 0x100000, 0x900000, 0xE00000
KVL = 0x40000
LLP = opt('llp', 1)
WS_BYTES = 0x2000000 if "dumpxn" in OPT else 0x1000000
NKS = 118
HUGE = 0x7f000000
Y0, X0, Z0 = 0, 65536, 131072
NSLOT = 5
RING = NSLOT * 2048
MISC = Z0 + 3 * RING
M_W, M_Q, M_X, M_C0, M_C1, M_C23, M_F1, M_H, M_TAG, M_KV, M_HOK, M_O, M_QH, M_LOC = [MISC + 4 * i for i in range(14)]
OL = opt('ol', 0)
M_ST = MISC + 64
LDS_BYTES = 163840
PW = 17408
SC = " sc1"

A = Asm()
A('.amdgcn_target "amdgcn-amd-amdhsa--gfx950"')
A(".text")
kernel_begin(A, NAME)
A("s_cmp_ge_u32 s2, 256")
A("s_cbranch_scc1 DONE")
ST = Stamps2(A, STAMP)
ST.stamp()
A("s_load_dwordx16 s[4:19], s[0:1], 0")
A("s_load_dwordx4 s[20:23], s[0:1], 64")
A("s_load_dwordx2 s[24:25], s[0:1], 80")
A("s_and_b32 s26, s2, 7")
A("s_lshl_b32 s26, s26, 2")
A("s_lshr_b32 s27, s2, 3")
A("s_and_b32 s27, s27, 3")
A("s_add_u32 s26, s26, s27")
A("s_lshr_b32 s27, s2, 5")
if opt("jx", 0): A("s_xor_b32 s27, s27, %d" % opt("jx", 0))
A("v_lshrrev_b32 v1, 6, v0")
A("v_mov_b32 v3, %d" % MISC)
A("v_readfirstlane_b32 s28, v1")
A("v_and_b32 v1, 63, v0")
A("v_lshlrev_b32 v2, 4, v1")
A("s_lshl_b32 s29, s26, 3")
A("s_add_u32 s29, s29, s27")
A("s_cmp_eq_u32 s28, 11")
A("s_cbranch_scc0 NOINIT")
for i in range(4): A("v_mov_b32 v%d, 0" % (4 + i))
A("v_add_u32 v8, %d, v2" % MISC)
A("ds_write_b128 v8, v[4:7]")
A("NOINIT:")
A("@WARM1")
A("s_waitcnt lgkmcnt(0)")
ST.stamp(slot=9); ST.n = 1
srd(A, 32, 4, 2048 * 1024)
srd(A, 36, 24, WS_BYTES)
A("s_cmp_ge_u32 s28, 8")
A("s_cbranch_scc1 G_START")

def spin(word, val, tv, sleep=1):
    L = A.label("SP")
    A("s_mov_b32 s31, 0x40000")
    A("%s:" % L)
    A("ds_read_b32 v%d, v3 offset:%d" % (tv, word - MISC))
    A("s_sub_u32 s31, s31, 1")
    A("s_waitcnt lgkmcnt(0)")
    A("v_readfirstlane_b32 s30, v%d" % tv)
    A("s_cbranch_scc1 %s_X" % L)
    A("s_cmp_ge_u32 s30, %d" % val)
    A("s_cbranch_scc1 %s_X" % L)
    A("s_sleep %d" % sleep)
    A("s_branch %s" % L)
    A("%s_X:" % L)
    A.lg = []
def bump(word, tv):
    A("v_mov_b32 v%d, 1" % tv)
    A("s_mov_b64 exec, 1")
    A.lds("ds_add_u32 v3, v%d offset:%d" % (tv, word - MISC), "bump")
    A("s_mov_b64 exec, -1")
def gpoll(av, soff, tv, n, tag, sleep=2):
    L = A.label("GP")
    A("s_mov_b32 s31, 0x1000")
    A("%s:" % L)
    A("buffer_load_dword%s %s, v%d, s[36:39], %s offen sc1" % ("x%d" % n if n > 1 else "", v(tv, n), av, soff))
    A("s_sub_u32 s31, s31, 1")
    A("s_cbranch_scc1 %s_X" % L)
    A("s_waitcnt vmcnt(0)")
    if n == 4:
        for i in range(4): A("v_xor_b32 v%d, %s, v%d" % (tv + i, tag, tv + i))
        A("v_or3_b32 v%d, v%d, v%d, v%d" % (tv, tv, tv + 1, tv + 2))
        A("v_or_b32 v%d, v%d, v%d" % (tv, tv, tv + 3))
        A("v_cmp_ne_u32 vcc, 0, v%d" % tv)
    else:
        A("v_cmp_ne_u32 vcc, %s, v%d" % (tag, tv))
    A("s_cmp_eq_u64 vcc, 0")
    A("s_cbranch_scc1 %s_X" % L)
    A("s_sleep %d" % sleep)
    A("s_branch %s" % L)
    A("%s_X:" % L)
    A("s_waitcnt vmcnt(0)")
    A.vm = []
def read_tag(dst, tv):
    A("ds_read_b32 v%d, v3 offset:%d" % (tv, M_TAG - MISC))
    A("s_waitcnt lgkmcnt(0)")
    A("v_readfirstlane_b32 s%d, v%d" % (dst, tv))
    A.lg = []
def flag_store(soff, tag, tv):
    A("v_mov_b32 v%d, %s" % (tv, tag))
    A("v_mov_b32 v%d, 0" % (tv + 1))
    A("s_mov_b64 exec, 1")
    A("buffer_store_dword v%d, v%d, s[36:39], %s offen sc1" % (tv, tv + 1, soff))
    A("s_mov_b64 exec, -1")
def mfma16(d, a, b, c=None):
    cs = v(d, 4) if c is None else c
    return "v_mfma_f32_16x16x32_bf16 %s, %s, %s, %s" % (v(d, 4), v(a, 4), v(b, 4), cs)

X, F, T0, XR = 16, 48, 112, 104 + 16
srd(A, 44, 20, 2048 * 1024)
A("v_lshrrev_b32 v4, 3, v1")
A("v_and_b32 v5, 7, v1")
A("v_lshlrev_b32 v6, 10, v4")
A("v_lshl_add_u32 v124, v5, 4, v6")
A("s_lshl_b32 s48, s26, 16")
A("s_lshl_b32 s49, s28, 13")
A("s_add_u32 s48, s48, s49")
for i in range(8):
    A.vmem("buffer_load_dwordx4 %s, v124, s[32:35], s48 offen offset:%d" % (v(X + 4 * i, 4), 128 * i), "x%d" % i)
A("s_lshr_b32 s50, s28, 1")
A("s_lshr_b32 s51, s27, 1")
A("s_cmp_eq_u32 s50, s51")
A("s_cbranch_scc0 A_NOPRIO")
A("s_setprio 2")
A("A_NOPRIO:")
A("s_lshl_b32 s51, s27, 7")
A("s_add_u32 s48, s48, s51")
if not opt("xl", 0): A.vmem("buffer_load_dwordx4 %s, v124, s[32:35], s48 offen" % v(XR, 4), "xr")
A("s_barrier")
A("@W0")
A("s_lshr_b32 s50, s28, 2")
A("s_lshl_b32 s50, s50, 15")
A("s_add_u32 s50, s50, %d" % X0)
A("s_and_b32 s51, s28, 3")
A("s_lshl_b32 s51, s51, 7")
A("s_add_u32 s50, s50, s51")
A("v_xor_b32 v9, v4, v5")
A("v_lshlrev_b32 v9, 4, v9")
A("v_lshl_add_u32 v9, v5, 9, v9")
A("v_add_u32 v9, s50, v9")
A("s_lshl_b32 s50, s28, 6")
A("s_add_u32 s50, s50, %d" % M_ST)
A("v_lshlrev_b32 v10, 3, v4")
A("v_add_u32 v10, s50, v10")
A("v_lshrrev_b32 v163, 4, v1")
A("v_and_b32 v164, 15, v1")
A("v_xor_b32 v160, v164, v163")
A("v_lshlrev_b32 v160, 4, v160")
A("v_lshl_add_u32 v160, v163, 9, v160")
A("s_and_b32 s50, s28, 1")
A("s_lshl_b32 s51, s50, 15")
A("s_add_u32 s51, s51, %d" % X0)
A("v_add_u32 v160, s51, v160")
A("v_xor_b32 v161, 64, v160")
A("v_bfe_u32 v165, v1, 2, 2")
A("v_and_b32 v162, 2, v165")
A("v_and_b32 v166, 1, v163")
A("v_or_b32 v162, v162, v166")
A("s_lshr_b32 s51, s28, 1")
A("v_xor_b32 v162, s51, v162")
A("v_lshlrev_b32 v162, 5, v162")
A("v_lshl_add_u32 v165, v163, 3, v165")
A("v_lshl_add_u32 v162, v165, 7, v162")
A("v_and_b32 v166, 3, v1")
A("v_lshl_add_u32 v162, v166, 3, v162")
A("s_lshl_b32 s56, s26, 1")
A("s_add_u32 s56, s56, s50")
A("s_mul_i32 s56, s56, %d" % NKS)
A("s_lshl_b32 s57, s27, 2")
A("s_add_u32 s56, s56, s57")
A("s_add_u32 s56, s56, s51")
A("s_lshl_b32 s56, s56, 10")
A("s_add_u32 s56, s56, 0x%x" % (AF + 86 * 1024))
A("s_lshl_b32 s57, s29, 3")
A("s_add_u32 s57, s57, s28")
A("s_lshl_b32 s57, s57, %d" % OS)
A("s_add_u32 s57, s57, 0x%x" % OFLAG)
A("s_mov_b32 s58, 0xffff0000")
A("s_mov_b32 s59, 0xffff0000")
A("s_mov_b32 s60, 0")
A("s_mov_b32 s61, 0x%x" % f2u(-64.0))
A("s_lshl_b32 s64, s28, 12")
A("v_lshrrev_b32 v126, 5, v1")
A("v_lshlrev_b32 v126, 9, v126")
A("v_and_b32 v127, 31, v1")
A("v_lshl_add_u32 v126, v127, 3, v126")
A("v_add_u32 v126, s64, v126")
A("v_add_u32 v127, s64, v2")
A("s_lshl_b32 s52, s28, 13")
A("s_add_u32 s52, s52, 0x%x" % KVL)
A("s_add_u32 s53, s52, 4096")
A("s_mov_b32 s54, 0x3f803f80")
for i in range(4): A("v_mov_b32 v%d, 0" % (T0 + i))
for i in range(8):
    A.wait_vm("x%d" % i)
    if i == 0: ST.stamp()
    if i == 7: ST.stamp(slot=12); ST.n = 2
    for k in range(4):
        r = X + 4 * i + k
        A("v_dot2c_f32_bf16 v%d, s54, v%d" % (T0 + (k & 1), r))
        A("v_dot2c_f32_bf16 v%d, v%d, v%d" % (T0 + 2 + (k & 1), r, r))
A.lds("ds_read_b32 v11, v3 offset:%d" % (M_W - MISC), "fw")
A("s_nop 1")
A("v_add_f32 v%d, v%d, v%d" % (T0, T0, T0 + 1))
A("v_add_f32 v%d, v%d, v%d" % (T0 + 2, T0 + 2, T0 + 3))
for mode in ["quad_perm:[1,0,3,2]", "quad_perm:[2,3,0,1]", "row_half_mirror"]:
    A("s_nop 0")
    A("v_add_f32_dpp v%d, v%d, v%d %s row_mask:0xf bank_mask:0xf" % (T0, T0, T0, mode))
    A("v_add_f32_dpp v%d, v%d, v%d %s row_mask:0xf bank_mask:0xf" % (T0 + 2, T0 + 2, T0 + 2, mode))
def rb(r):
    A("v_cvt_pk_bf16_f32 v%d, v%d, v%d" % (r, r, r))
    A("v_lshlrev_b32 v%d, 16, v%d" % (r, r))
M_, V_ = T0, T0 + 2
A("v_mul_f32 v%d, 0x%x, v%d" % (M_, f2u(1.0 / 512), M_))
A("v_mul_f32 v%d, 0x%x, v%d" % (V_, f2u(1.0 / 512), V_))
A("v_fma_f32 v%d, -v%d, v%d, v%d" % (V_, M_, M_, V_))
A("v_max_f32 v%d, 0, v%d" % (V_, V_))
rb(V_)
A("v_add_f32 v%d, 0x%x, v%d" % (V_, f2u(1e-5), V_))
rb(V_)
A("v_sqrt_f32 v%d, v%d" % (V_, V_))
rb(M_)
rb(V_)
A("v_rcp_f32 v%d, v%d" % (M_ + 1, V_))
A("s_nop 0")
A("v_mul_f32 v%d, v%d, v%d" % (M_, M_, M_ + 1))
A.lds("ds_write_b64 v10, %s" % v(M_, 2), "st")
A("s_setprio %d" % opt("ap", 0))
A.wait_lg("fw")
A("v_readfirstlane_b32 s30, v11")
A("s_cmp_ge_u32 s30, 1")
A("s_cbranch_scc1 A_WOK")
spin(M_W, 1, 11)
A("A_WOK:")
A("ds_read_b32 v125, v3 offset:%d" % (M_TAG - MISC))
LL = 128
def ll_loads():
    for i in range(8):
        A("buffer_load_dwordx3 %s, v2, s[36:39], s%d offen offset:%d sc1" % (v(LL + 4 * i, 3), 52 + i // 4, (i & 3) * 1024))
def ll_check(t):
    A("s_waitcnt vmcnt(0)")
    for i in range(8): A("v_xor_b32 v%d, v125, v%d" % (LL + 4 * i + 3, LL + 4 * i + 2))
    A("v_or3_b32 v%d, v%d, v%d, v%d" % (LL + 3, LL + 3, LL + 7, LL + 11))
    A("v_or3_b32 v%d, v%d, v%d, v%d" % (LL + 15, LL + 15, LL + 19, LL + 23))
    A("v_or3_b32 v%d, v%d, v%d, v%d" % (LL + 3, LL + 3, LL + 27, LL + 31))
    A("v_or_b32 v%d, v%d, v%d" % (LL + 3, LL + 3, LL + 15))
    A("v_cmp_ne_u32 vcc, 0, v%d" % (LL + 3))
LNV = opt("lnv", 1)
if LNV == 2:
    A("v_mov_b32 v%d, v%d" % (T0 + 4, M_ + 1)); A("v_mov_b32 v%d, v%d" % (T0 + 5, M_ + 1))
    A("v_sub_f32 v%d, 0, v%d" % (T0 + 6, M_)); A("v_sub_f32 v%d, 0, v%d" % (T0 + 7, M_))
for i in range(33):
    if i < 32:
        A("v_lshlrev_b32 v%d, 16, v%d" % (F + 2 * i, X + i))
        A("v_and_b32 v%d, s58, v%d" % (F + 2 * i + 1, X + i))
    else:
        A("s_nop 0")
    if i > 0:
        A("v_cvt_pk_bf16_f32 v%d, v%d, v%d" % (X + i - 1, F + 2 * i - 2, F + 2 * i - 1))
    if i < 32 and LNV == 0:
        A("v_pk_fma_f32 %s, %s, %s, %s op_sel:[0,1,0] op_sel_hi:[1,1,0] neg_lo:[0,0,1] neg_hi:[0,0,1]" % (v(F + 2 * i, 2), v(F + 2 * i, 2), v(M_, 2), v(M_, 2)))
    elif i < 32 and LNV == 1:
        for z in range(2): A("v_fma_f32 v%d, v%d, v%d, -v%d" % (F + 2 * i + z, F + 2 * i + z, M_ + 1, M_))
    elif i < 32 and LNV == 2:
        A("v_pk_fma_f32 %s, %s, %s, %s" % (v(F + 2 * i, 2), v(F + 2 * i, 2), v(T0 + 4, 2), v(T0 + 6, 2)))
    if i > 0 and i % 4 == 0:
        A("ds_write_b128 v9, %s offset:%d" % (v(X + i - 4, 4), (i // 4 - 1) * 4096))
bump(M_X, 11)
ST.stamp()
if LLP == 0: ll_loads()
spin(M_X, 11, 11)
ST.stamp(slot=9); ST.n = 3
if opt("qc", 0): ST.stamp(cy=True, slot=14); ST.n = 3
if LLP == 1: ll_loads()
QA, QS, QD = 104, 36, 4
Q, K, V, P, C, S, O = 4, 8, [12, 20], 28, 36, [52, 68], 84
MX, TMP, K2 = 100, 101, 112
def qreads(s_):
    b = QS + (s_ % QD) * 12
    A.lds("ds_read_b64_tr_b16 %s, v162 offset:%d" % (v(b, 2), s_ * 4096), "q%d" % s_)
    A.lds("ds_read_b64_tr_b16 %s, v162 offset:%d" % (v(b + 2, 2), s_ * 4096 + 512), "q%d" % s_)
    A.lds("ds_read_b128 %s, v%d offset:%d" % (v(b + 4, 4), 160 + (s_ & 1), s_ * 2048), "q%d" % s_)
    A.lds("ds_read_b128 %s, v%d offset:%d" % (v(b + 8, 4), 160 + (s_ & 1), s_ * 2048 + 256), "q%d" % s_)
def init_list():
    L = ["v_mov_b64 %s, 0" % v(O + 2 * i, 2) for i in range(8)] + ["v_mov_b64 %s, 0" % v(P + 2 * i, 2) for i in range(4)]
    L += ["v_and_b32 v%d, 27, v1" % V[0], "v_cmp_eq_u32 vcc, 0, v%d" % V[0], "v_mov_b32 v%d, s54" % (V[0] + 1),
          "v_cndmask_b32 v%d, 0, v%d, vcc" % (V[0], V[0] + 1), "v_mov_b32 v%d, v%d" % (V[0] + 1, V[0])]
    L += ["v_mov_b64 %s, %s" % (v(V[0] + 2 * i, 2), v(V[0], 2)) for i in range(1, 8)]
    return L
def init_regs():
    for l in init_list(): A(l)
fill = ["v_readfirstlane_b32 s55, v125", "v_mov_b32 v102, v2"] + init_list()
for s_ in range(QD - 1): qreads(s_)
for s_ in range(16):
    if A.has_lg("q%d" % s_): A.wait_lg("q%d" % s_)
    if s_ + QD - 1 < 16: qreads(s_ + QD - 1)
    if s_ == 7: bump(M_QH, 11)
    if LLP >= 2 and s_ == LLP: ll_loads()
    b = QS + (s_ % QD) * 12
    A(mfma16(QA, b, b + 4, "0" if s_ == 0 else None))
    A(mfma16(QA + 4, b, b + 8, "0" if s_ == 0 else None))
    for l in fill[:3]: A(l)
    fill = fill[3:]
    if s_ == 16 - QD:
        assert not fill
        ST.stamp(slot=13); ST.n = 3
        if opt("qc", 0): ST.stamp(cy=True, slot=15); ST.n = 3
        A("s_mov_b32 s31, 0x1000")
        A("A_LLW:")
        ll_check(0)
        A("s_cbranch_vccz A_LLOK")
        A("s_sub_u32 s31, s31, 1")
        A("s_cbranch_scc1 A_LLOK")
        ll_loads()
        A("s_branch A_LLW")
        A("A_LLOK:")
        A.vm = []
        ST.stamp(slot=4)
        spin(M_QH, 8, TMP)
        for i in range(8):
            t_, kind, u = i >> 2, i & 1, (i >> 1) & 1
            A("ds_write_b64 v126, %s offset:%d" % (v(LL + 4 * i, 2), t_ * 2048 + (u * 256 if kind == 0 else 1024 + (1 - u) * 256)))
        A("v_mov_b32 v%d, 1" % TMP)
        A("s_mov_b64 exec, 1")
        A("ds_add_u32 v3, v%d offset:%d" % (TMP, M_C0 - MISC))
        A("ds_add_u32 v3, v%d offset:%d" % (TMP, M_Q - MISC))
        A("s_mov_b64 exec, -1")
        A("ds_read_b128 %s, v127" % v(K, 4))
        A("ds_read_b128 %s, v127 offset:2048" % v(K2, 4))
        ST.stamp(slot=10)
A("s_nop 6")
for i in range(4): A("v_cvt_pk_bf16_f32 v%d, v%d, v%d" % (Q + i, QA + 2 * i, QA + 2 * i + 1))
A("s_nop 1")
A("v_permlane16_swap_b32 v%d, v%d" % (Q, Q + 2))
A("v_permlane16_swap_b32 v%d, v%d" % (Q + 1, Q + 3))
ST.stamp(slot=3)
A("s_waitcnt lgkmcnt(0)")
A("s_nop 0")
A(mfma(S[0], K, Q, "0"))
A(mfma(S[1], K2, Q, "0"))
A.lg = []
spin(M_C0, 8, TMP)
ST.stamp(slot=11); ST.n = 5
A("ds_read_b128 %s, v102" % v(K, 4))
A("s_nop 2")
A("v_max3_f32 v%d, v%d, v%d, v%d" % (MX, S[0], S[0] + 1, S[0] + 2))
A("v_max3_f32 v%d, v%d, v%d, v%d" % (TMP, S[0] + 3, S[0] + 4, S[0] + 5))
for i in range(5):
    A("v_max3_f32 v%d, v%d, v%d, v%d" % ((MX, TMP)[i & 1], S[0] + 6 + 2 * i, S[0] + 7 + 2 * i, (MX, TMP)[i & 1]))
for i in range(8):
    A("v_max3_f32 v%d, v%d, v%d, v%d" % ((MX, TMP)[i & 1], S[1] + 2 * i, S[1] + 2 * i + 1, (MX, TMP)[i & 1]))
A("v_max_f32 v%d, v%d, v%d" % (MX, MX, TMP))
A("A_GO:")
A("v_mov_b32 v%d, v%d" % (TMP, MX))
A("s_mov_b64 exec, s[58:59]")
A("ds_read_b128 %s, v102 offset:1024" % v(V[0], 4))
A("ds_read_b128 %s, v102 offset:768" % v(V[0] + 4, 4))
A("s_mov_b64 exec, -1")
A("v_permlane32_swap_b32 v%d, v%d" % (MX, TMP))
A("s_nop 1")
A("v_max_f32 v%d, v%d, v%d" % (MX, MX, TMP))
A("v_sub_f32 v%d, s61, v%d" % (C, MX))
A("v_sub_f32 v%d, s61, v%d" % (C + 1, MX))
for i in range(1, 8): A("v_mov_b64 %s, %s" % (v(C + 2 * i, 2), v(C, 2)))
A("s_waitcnt lgkmcnt(2)")
A(mfma(S[0], K, Q, C))
A("ds_read_b128 %s, v102 offset:2048" % v(K, 4))
SEG = [(7, None, 2), (8, (M_C1, 1), None), (opt("p1", 8), (M_C23, 4), None), (opt("p2", 7), None, 1), (opt("p3", 2), None, 0)]
assert sum(x[0] for x in SEG) == 32
if opt("xl", 0): A("buffer_load_dwordx4 %s, v124, s[32:35], s48 offen" % v(XR, 4))
if opt("ot", 0): A("buffer_load_dword v127, v124, s[44:47], s48 offen")
A("s_mov_b32 s62, %d" % SEG[0][0])
A("s_mov_b32 s63, 0")
A("s_setprio %d" % SEG[0][2])
ST.stamp()
if not opt("qc", 0): ST.stamp(cy=True, slot=14)
ST.n = 6
A("s_nop 7")
A(".p2align 6")
A("A_LOOP:")
for p in range(2):
    Sc, Sn, Vc, Vp = S[p], S[1 - p], V[p], V[1 - p]
    e = lambda i: A("v_exp_f32 v%d, v%d" % (Sc + i, Sc + i))
    c = lambda i: A("v_cvt_pk_bf16_f32 v%d, v%d, v%d" % (P + i, Sc + 2 * i, Sc + 2 * i + 1))
    A("s_waitcnt lgkmcnt(0)")
    A(mfma(Sn, K, Q, C))
    A("ds_read_b128 %s, v102 offset:%d" % (v(K, 4), (p + 2) * 2048))
    e(0); e(1); e(2); e(3); c(0); e(4)
    A(mfma(O, Vp + 4, P + 4))
    A("s_mov_b64 exec, s[58:59]")
    A("ds_read_b128 %s, v102 offset:%d" % (v(Vp, 4), (p + 1) * 2048 + 1024))
    A("ds_read_b128 %s, v102 offset:%d" % (v(Vp + 4, 4), (p + 1) * 2048 + 768))
    A("s_mov_b64 exec, -1")
    e(5); c(1); e(6); e(7); c(2); e(8); c(3); e(9); e(10)
    A(mfma(O, Vc, P))
    e(11); c(4); e(12); e(13); c(5); e(14); e(15)
    if p == 1:
        A("v_add_u32 v102, 4096, v102")
        A("s_sub_u32 s62, s62, 1")
        A("s_cmp_lg_u32 s62, 0")
    c(6); c(7)
A("s_cbranch_scc1 A_LOOP")
A("s_add_u32 s63, s63, 1")
for i, (n, chk, pr) in enumerate(SEG[1:], 1):
    A("s_cmp_eq_u32 s63, %d" % i)
    A("s_cbranch_scc0 A_SEG%d" % i)
    if chk: spin(chk[0], chk[1], TMP)
    if pr is not None: A("s_setprio %d" % pr)
    A("s_mov_b32 s62, %d" % n)
    A("s_branch A_LOOP")
    A("A_SEG%d:" % i)
A(mfma(O, V[1] + 4, P + 4))
ST.stamp()
if not opt("qc", 0): ST.stamp(cy=True, slot=15)
ST.n = 7
A("s_waitcnt vmcnt(0) lgkmcnt(0)")
if OL: A("ds_read_b32 v103, v3 offset:%d" % (M_LOC - MISC))
A("v_mov_b32 v%d, 0x108" % TMP)
A("s_cmp_eq_u32 s60, 64")
A("s_nop 9")
A("v_rcp_f32 v%d, v%d" % (MX, O))
A("s_cbranch_scc1 A_FIN")
A("v_mul_f32 v%d, 4.0, v%d" % (S[0], O))
A("v_cmp_class_f32 s[64:65], v%d, v%d" % (S[0], TMP))
for i in range(8):
    A("v_mul_f32 v%d, 0x%x, v%d" % (S[0] + 1 + i, f2u(2.0 ** -26), O + 8 + i))
    A("v_cmp_class_f32 vcc, v%d, v%d" % (S[0] + 1 + i, TMP))
    A("s_and_b64 s[64:65], s[64:65], vcc")
A("s_cmp_eq_u64 s[64:65], -1")
A("s_cbranch_scc1 A_FIN")
A("s_mov_b32 s60, 64")
A("s_mov_b32 s61, 0")
A("v_mov_b32 v102, v2")
A("v_mov_b32 v%d, 0xff800000" % MX)
A("s_mov_b32 s62, 64")
A("A_PRE:")
A("ds_read_b128 %s, v102" % v(K, 4))
A("v_add_u32 v102, 2048, v102")
A("s_waitcnt lgkmcnt(0)")
A(mfma(S[0], K, Q, "0"))
A("s_nop 12")
for i in range(8):
    A("v_max3_f32 v%d, v%d, v%d, v%d" % (MX, S[0] + 2 * i, S[0] + 2 * i + 1, MX))
A("s_sub_u32 s62, s62, 1")
A("s_cmp_lg_u32 s62, 0")
A("s_cbranch_scc1 A_PRE")
init_regs()
A("v_mov_b32 v102, v2")
A("ds_read_b128 %s, v102" % v(K, 4))
A("s_branch A_GO")
A("A_FIN:")
if OL:
    A("s_waitcnt lgkmcnt(0)")
    A("v_readfirstlane_b32 s30, v103")
for i in range(8): A("v_mul_f32 v%d, v%d, v%d" % (O + 8 + i, O + 8 + i, MX))
for i in range(4): A("v_cvt_pk_bf16_f32 v%d, v%d, v%d" % (P + i, O + 8 + 2 * i, O + 9 + 2 * i))
if OL:
    A("s_cmp_eq_u32 s30, 1")
    A("s_cbranch_scc1 A_OLOC")
    A("buffer_store_dwordx4 %s, v2, s[36:39], s56 offen sc1" % v(P, 4))
    A("s_branch A_ODONE")
    A("A_OLOC:")
    A("buffer_store_dwordx4 %s, v2, s[36:39], s56 offen" % v(P, 4))
    A("A_ODONE:")
else:
    A("buffer_store_dwordx4 %s, v2, s[36:39], s56 offen sc1" % v(P, 4))
bump(M_O, 6)
A("s_mul_i32 s50, s28, %d" % (8 * 272))
A("v_lshrrev_b32 v4, 3, v1")
A("v_mul_u32_u24 v4, 272, v4")
A("v_and_b32 v5, 7, v1")
A("v_lshl_add_u32 v4, v5, 5, v4")
A("v_add_u32 v4, s50, v4")
R = 8
for i in range(4):
    A("v_lshlrev_b32 v%d, 16, v%d" % (R + 2 * i, XR + i))
    A("v_and_b32 v%d, 0xffff0000, v%d" % (R + 2 * i + 1, XR + i))
if not OL:
    A("s_waitcnt vmcnt(0)")
    flag_store("s57", "s55", 6)
ST.stamp()
A("s_barrier")
A("s_barrier")
for p in range(4):
    for hh in range(2):
        A("ds_read_b128 %s, v4 offset:%d" % (v(16 + p * 8 + hh * 4, 4), p * PW + hh * 16))
for p in range(4):
    A("s_waitcnt lgkmcnt(%d)" % (6 - 2 * p))
    for i in range(4):
        A("v_pk_add_f32 %s, %s, %s" % (v(R + 2 * i, 2), v(R + 2 * i, 2), v(16 + p * 8 + 2 * i, 2)))
for i in range(4): A("v_cvt_pk_bf16_f32 v%d, v%d, v%d" % (XR + i, R + 2 * i, R + 2 * i + 1))
A("buffer_store_dwordx4 %s, v124, s[44:47], s48 offen" % v(XR, 4))
if STAMP:
    A("s_waitcnt vmcnt(0)")
    ST.stamp()
    ST.flush(36, STOFF, 28, 4, nwaves=12)
A("s_endpgm")
A.vm = []; A.lg = []

A("G_START:")
A("s_setprio 3")
A("s_sub_u32 s62, s28, 8")
A("s_cmp_eq_u32 s62, 3")
A("s_cbranch_scc1 G3_START")
ST.n = 1
ACC = [[4, 20], [36, 52]]
WF = [[68, 72], [76, 80]]
XF = [[84, 88], [92, 96]]
VD1, VD2, VT1, VT2, VW0, VW1, VP0, VP1, VX = 100, 101, 102, 103, 104, 105, 106, 107, 108
PK = 112
srd(A, 40, 16, 512 * 2752)
srd(A, 48, 12, 512 * 1024)
A("s_lshl_b32 s52, s62, 5")
A("s_add_u32 s52, s52, s26")
A("s_cmp_lt_u32 s52, 86")
A("s_cselect_b32 s44, s18, s12")
A("s_cselect_b32 s45, s19, s13")
A("s_mov_b32 s46, 0x%x" % (512 * 1024))
A("s_cselect_b32 s46, 0x%x, s46" % (1376 * 1024))
A("s_mov_b32 s47, 0x00020000")
A("s_cselect_b32 s53, 0, 86")
A("s_sub_u32 s53, s52, s53")
A("s_lshl_b32 s53, s53, 14")
A("s_lshl_b32 s54, s27, 7")
A("s_add_u32 s53, s53, s54")
A("s_mul_i32 s55, s27, %d" % (2 * NKS))
A("s_add_u32 s56, s55, s52")
A("s_lshl_b32 s56, s56, 10")
A("s_add_u32 s56, s56, 0x%x" % WT)
A("s_add_u32 s57, s26, 10")
A("s_lshl_b32 s57, s57, 14")
A("s_add_u32 s57, s57, s54")
A("s_add_u32 s58, s55, s26")
A("s_lshl_b32 s58, s58, 10")
A("s_add_u32 s58, s58, 0x%x" % (WT + 96 * 1024))
A("s_cmp_lt_u32 s26, 22")
A("s_cselect_b32 s59, s62, 0")
A("s_cmp_eq_u32 s59, 2")
A("s_cselect_b32 s57, s57, 0x%x" % HUGE)
A("s_cselect_b32 s58, s58, 0x%x" % HUGE)
A("s_mul_i32 s59, s27, 3")
A("s_lshl_b32 s60, s27, 1")
A("s_add_u32 s60, s60, 6")
A("s_cmp_lt_u32 s27, 6")
A("s_cselect_b32 s59, s59, s60")
A("s_cselect_b32 s61, 0, s62")
A("s_add_u32 s59, s59, s62")
A("s_lshl_b32 s60, s59, 7")
A("s_cmp_eq_u32 s61, 2")
A("s_cselect_b32 s60, 0x%x, s60" % HUGE)
A("s_mul_i32 s63, s62, %d" % RING)
A("s_add_u32 s63, s63, %d" % Z0)
A("v_lshrrev_b32 v4, 3, v1")
A("v_and_b32 v5, 2, v4")
A("v_lshlrev_b32 v5, 1, v5")
A("v_and_b32 v6, 7, v1")
A("v_xor_b32 v5, v5, v6")
A("v_lshlrev_b32 v5, 4, v5")
A("v_lshl_add_u32 v%d, v4, 10, v5" % VT1)
A("v_add_u32 v%d, %d, v%d" % (VT2, 8192 - 1024, VT1))
A("v_mul_u32_u24 v%d, 2752, v4" % VD1)
A("v_add_u32 v%d, v%d, v5" % (VD1, VD1))
A("v_add_u32 v%d, %d, v%d" % (VD2, 8 * 2752 - 1024, VD1))
def dma(e):
    A("s_add_u32 m0, s63, %d" % ((e % NSLOT) * 2048))
    if e == 0: sr, so, a, b = 44, "s53", VT1, VT2
    elif e == 1: sr, so, a, b = 48, "s57", VT1, VT2
    else: sr, so, a, b = 40, "s60", VD1, VD2
    A("s_nop 0")
    A.vmem("buffer_load_dwordx4 v%d, %s, %s offen lds" % (a, s(sr, 4), so), "E%d" % e)
    A.vmem("buffer_load_dwordx4 v%d, %s, %s offen offset:1024 lds" % (b, s(sr, 4), so), "E%d" % e)
    if e >= 2: A("s_add_u32 s60, s60, %d" % (16 * 2752))
A("s_barrier")
srd(A, 64, 6, 512 * 1024)
A("v_and_b32 v7, 2, v4")
A("s_and_b32 s30, s62, 1")
A("v_or_b32 v7, s30, v7")
A("v_lshlrev_b32 v7, 1, v7")
A("v_xor_b32 v7, v7, v6")
A("v_lshlrev_b32 v7, 4, v7")
A("v_lshl_add_u32 v7, v4, 10, v7")
A("v_xor_b32 v8, 32, v7")
A("s_lshl_b32 s30, s62, 13")
A("s_add_u32 s30, s30, s54")
A("s_lshl_b32 s31, s62, 10")
if opt("rot", 0) == 1:
    A("s_lshl_b32 s68, s26, 11")
if opt("rot", 0) == 2:
    A("s_lshl_b32 s68, s27, 13")
if opt("rot", 0) == 3:
    A("s_and_b32 s68, s26, 3")
    A("s_lshl_b32 s68, s68, 14")
if opt("rot", 0) == 4:
    A("s_and_b32 s68, s27, 1")
    A("s_lshl_b32 s68, s68, 15")
if opt("rot", 0): A("s_lshl_b32 s69, s68, 3")
for i in range(22):
    if i == 21:
        A("s_cmp_eq_u32 s62, 0")
        A("s_cbranch_scc0 G_WQD")
    if opt("rot", 0):
        A("s_xor_b32 m0, s31, s68")
        A("s_xor_b32 s3, s30, s69")
        A.vmem("buffer_load_dwordx4 v%d, s[64:67], s3 offen lds" % (7 + (i & 1)), "wq")
        A("s_add_u32 s31, s31, 3072")
    else:
        A("s_add_u32 m0, s31, %d" % (Y0 + i * 3072))
        A("s_nop 0")
        A.vmem("buffer_load_dwordx4 v%d, s[64:67], s30 offen lds" % (7 + (i & 1)), "wq")
    A("s_add_u32 s30, s30, %d" % (3 * 8192))
A("G_WQD:")
A("@WARM2")
if opt("re", 0):
    for e_ in range(NSLOT): dma(e_)
    A.wait_vm("wq")
    bump(M_X, 9)
else:
    A.wait_vm0()
    bump(M_X, 9)
    if opt("rd", 0) == 1: spin(M_QH, 8, 9, 2)
    if opt("rd", 0) == 2: spin(M_Q, 8, 9, 2)
    for e_ in range(NSLOT): dma(e_)
ST.stamp(slot=10); ST.n = 1
A("v_lshrrev_b32 v4, 5, v1")
A("v_bfe_u32 v5, v1, 2, 2")
A("v_bfe_u32 v6, v1, 4, 1")
A("v_and_b32 v7, 2, v5")
A("v_or_b32 v6, v6, v7")
A("v_lshlrev_b32 v6, 5, v6")
A("v_and_b32 v7, 3, v1")
A("v_lshl_add_u32 v6, v7, 3, v6")
A("v_lshl_add_u32 v6, v5, 7, v6")
A("v_add_u32 v6, s63, v6")
A("v_lshl_add_u32 v%d, v4, 10, v6" % VW0)
A("v_xor_b32 v%d, 64, v%d" % (VW1, VW0))
A("v_lshl_add_u32 v%d, v4, 9, v6" % VP0)
A("v_xor_b32 v%d, 64, v%d" % (VP1, VP0))
A("v_and_b32 v5, 31, v1")
for m in range(4):
    A("v_or_b32 v6, %d, v4" % (2 * m))
    A("v_xor_b32 v6, v6, v5")
    A("v_lshlrev_b32 v6, 4, v6")
    A("v_lshl_add_u32 v6, v4, 9, v6")
    A("v_add_u32 v%d, %d, v6" % (VX + m, X0))
for e_ in range(2):
    A.wait_vm("E%d" % e_)
    for a in range(2):
        A.lds("ds_read_b64_tr_b16 %s, v%d offset:%d" % (v(PK + e_ * 8 + a * 4, 2), VP0 + a, e_ * 2048), "t")
        A.lds("ds_read_b64_tr_b16 %s, v%d offset:%d" % (v(PK + e_ * 8 + a * 4 + 2, 2), VP0 + a, e_ * 2048 + 1024), "t")
    A.wait_lg0()
    d = 56 + 2 * e_
    A.vmem("buffer_store_dwordx4 %s, v2, s[36:39], s%d offen sc1" % (v(PK + e_ * 8, 4), d), "TS")
    A("s_add_u32 s%d, s%d, %d" % (d, d, NKS * 1024))
    A.vmem("buffer_store_dwordx4 %s, v2, s[36:39], s%d offen sc1" % (v(PK + e_ * 8 + 4, 4), d), "TS")
    dma(e_ + NSLOT)
ST.stamp()
A("s_mul_i32 s52, s26, %d" % (2 * NKS))
A("s_lshl_b32 s53, s59, 2")
A("s_add_u32 s52, s52, s53")
A("s_lshl_b32 s52, s52, 10")
A("s_add_u32 s52, s52, 0x%x" % AF)
A("s_add_u32 s53, s52, %d" % (NKS * 1024))
A("s_cmp_eq_u32 s59, 21")
A("s_cselect_b32 s54, 0x%x, s52" % HUGE)
A("s_cselect_b32 s55, 0x%x, s53" % HUGE)
A("s_cmp_eq_u32 s61, 2")
A("s_cbranch_scc1 G_F1DONE")
if opt("gq", 0) == 0: spin(M_X, 11, 4)
if opt("gq", 0) == 1: spin(M_QH, 8, 4)
if opt("gq", 0) == 2: spin(M_Q, 8, 4)
if opt("gq", 0) == 3: spin(M_C0, 8, 4)
ST.stamp()
def reads(s_):
    p = s_ & 1
    e_ = s_ + 2
    A.wait_vm("E%d" % e_)
    off = (e_ % NSLOT) * 2048
    for a in range(2):
        A.lds("ds_read_b64_tr_b16 %s, v%d offset:%d" % (v(WF[p][a], 2), VW0 + a, off), "r%d" % s_)
        A.lds("ds_read_b64_tr_b16 %s, v%d offset:%d" % (v(WF[p][a] + 2, 2), VW0 + a, off + 512), "r%d" % s_)
    for t in range(2):
        A.lds("ds_read_b128 %s, v%d offset:%d" % (v(XF[p][t], 4), VX + (s_ & 3), s_ * 1024 + t * 32768), "r%d" % s_)
if opt("gp1", 3) != 3: A("s_setprio %d" % opt("gp1", 3))
reads(0)
for s_ in range(32):
    p = s_ & 1
    A.wait_lg("r%d" % s_)
    pc = lambda: A("s_nop %d" % opt("pace1", 0)) if opt("pace1", 0) else None
    A(mfma(ACC[0][0], WF[p][0], XF[p][0], "0" if s_ == 0 else None))
    if s_ + 2 + NSLOT < 34: dma(s_ + 2 + NSLOT)
    pc()
    A(mfma(ACC[0][1], WF[p][0], XF[p][1], "0" if s_ == 0 else None))
    if s_ + 1 < 32: reads(s_ + 1)
    pc()
    A(mfma(ACC[1][0], WF[p][1], XF[p][0], "0" if s_ == 0 else None))
    pc()
    A(mfma(ACC[1][1], WF[p][1], XF[p][1], "0" if s_ == 0 else None))
    pc()
ST.stamp()
if opt("gp1", 3) != 3: A("s_setprio 3")
A("s_nop 9")
for a in range(2):
    for t in range(2):
        b = PK + (2 * a + t) * 8
        for i in range(8): A("v_cvt_pk_bf16_f32 v%d, v%d, v%d" % (b + i, ACC[a][t] + 2 * i, ACC[a][t] + 2 * i + 1))
        for i in range(8): A("v_pk_max_i16 v%d, v%d, 0" % (b + i, b + i))
        A("buffer_store_dwordx4 %s, v2, s[36:39], s%d offen offset:%d sc1" % (v(b, 4), 52 + 2 * a + t, a * 2048))
        A("buffer_store_dwordx4 %s, v2, s[36:39], s%d offen offset:%d sc1" % (v(b + 4, 4), 52 + 2 * a + t, a * 2048 + 1024))
A("G_F1DONE:")
A.vm = []; A.lg = []
if STAMP: ST.n = 4
bump(M_F1, 4)
A("s_branch G_JOIN")

A("G3_START:")
ST.n = 1
A("s_load_dword s60, s[24:25], 0x%x" % EPOCH)
A("s_and_b32 s52, s27, 1")
A("s_cmp_eq_u32 s52, 0")
A("s_cselect_b32 s40, s8, s10")
A("s_cselect_b32 s41, s9, s11")
A("s_mov_b32 s42, 0x4000")
A("s_mov_b32 s43, 0x00020000")
for i in range(4):
    A("s_mov_b32 m0, %d" % (X0 + i * 4096))
    A("s_mov_b32 s53, %d" % (i * 4096))
    for k in range(4):
        A.vmem("buffer_load_dwordx4 v2, s[40:43], s53 offen offset:%d lds" % (k * 1024), "w")
GW, GX, GA, GC, GS = 4, 68, 132, 136, 140
A("v_lshrrev_b32 v150, 4, v1")
A("v_and_b32 v151, 15, v1")
A("v_lshlrev_b32 v152, 10, v151")
A("v_lshl_add_u32 v152, v150, 4, v152")
A("s_lshr_b32 s54, s27, 1")
A("s_lshl_b32 s55, s54, 14")
A("s_lshl_b32 s53, s26, 16")
A("s_add_u32 s53, s53, s55")
for i in range(16):
    A.vmem("buffer_load_dwordx4 %s, v152, s[32:35], s53 offen offset:%d" % (v(GX + 4 * i, 4), 64 * i), "x%d" % i)
A("s_barrier")
A("s_waitcnt lgkmcnt(0)")
A("s_mul_i32 s60, s60, 0x9E3779B1")
A("s_add_u32 s60, s60, 0x7F4A7C15")
A("v_mov_b32 v153, s60")
A("ds_write_b32 v3, v153 offset:%d" % (M_TAG - MISC))
A("v_bfe_u32 v153, v1, 2, 2")
A("v_lshl_add_u32 v153, v150, 3, v153")
A("v_lshlrev_b32 v153, 5, v153")
A("v_and_b32 v154, 3, v1")
A("v_lshl_add_u32 v153, v154, 3, v153")
A("v_add_u32 v153, %d, v153" % X0)
for i in range(4): A("v_mov_b32 v%d, 0x3f803f80" % (GS + i))
A.wait_vm("w")
for i in range(16):
    A("ds_read_b64_tr_b16 %s, v153 offset:%d" % (v(GW + 4 * i, 2), i * 1024))
    A("ds_read_b64_tr_b16 %s, v153 offset:%d" % (v(GW + 4 * i + 2, 2), i * 1024 + 128))
    if i == 6 or i == 13: A("s_waitcnt lgkmcnt(0)")
A("s_waitcnt lgkmcnt(0)")
bump(M_W, 154)
if opt("g3p", 3) != 3: A("s_setprio %d" % opt("g3p", 3))
ST.stamp()
A("s_lshr_b32 s57, s54, 1")
A("s_lshl_b32 s56, s57, 5")
A("s_add_u32 s56, s56, s26")
A("s_lshl_b32 s59, s56, 2")
A("s_and_b32 s57, s27, 3")
A("s_add_u32 s59, s59, s57")
A("s_lshl_b32 s63, s59, 10")
A("s_add_u32 s63, s63, 0x%x" % KVL)
A("s_cmp_lt_u32 s56, 16")
A("s_cselect_b32 s63, s63, 0x%x" % HUGE)
A("s_lshl_b32 s59, s59, %d" % KS)
A("s_add_u32 s59, s59, 0x%x" % KVFLAG)
A("s_lshl_b32 s56, s56, 11")
A("s_add_u32 s56, s56, 0x%x" % KVF)
A("s_and_b32 s57, s54, 1")
A("s_lshl_b32 s58, s54, 7")
A("s_add_u32 s58, s58, %d" % M_ST)
A("s_cmp_eq_u32 s52, 0")
A("s_cbranch_scc0 G3_V")
vm_save = list(A.vm)
for kind in range(2):
    A.vm = list(vm_save)
    if kind == 1: A("G3_V:")
    for i in range(16):
        c0 = "0" if i == 0 else None
        A(mfma16(GC, GW + 4 * i, GS, c0) if kind == 0 else mfma16(GC, GS, GW + 4 * i, c0))
    if kind == 0:
        A("v_lshlrev_b32 v154, 3, v151")
        A("v_add_u32 v154, s58, v154")
        A("v_lshrrev_b32 v155, 1, v150")
        A("v_lshlrev_b32 v155, 9, v155")
        A("v_lshl_add_u32 v155, v151, 4, v155")
        A("v_and_b32 v156, 1, v150")
        A("v_lshl_add_u32 v155, v156, 3, v155")
        A("s_lshl_b32 s57, s57, 8")
        A("s_add_u32 s56, s56, s57")
    else:
        A("v_lshlrev_b32 v154, 5, v150")
        A("v_add_u32 v154, s58, v154")
        A("v_and_b32 v155, 1, v150")
        A("v_lshlrev_b32 v155, 9, v155")
        A("v_lshl_add_u32 v155, v151, 4, v155")
        A("v_lshrrev_b32 v156, 1, v150")
        A("v_lshl_add_u32 v155, v156, 3, v155")
        A("s_lshl_b32 s57, s57, 8")
        A("s_sub_u32 s56, s56, s57")
        A("s_add_u32 s56, s56, %d" % (1024 + 256))
    A("v_and_b32 v157, 255, v155")
    A("v_add_u32 v157, v157, v155")
    for i in range(16):
        A.wait_vm("x%d" % i)
        c0 = "0" if i == 0 else None
        A(mfma16(GA, GW + 4 * i, GX + 4 * i, c0) if kind == 0 else mfma16(GA, GX + 4 * i, GW + 4 * i, c0))
    L = A.label("STS")
    A("s_mov_b32 s31, 0x40000")
    A("%s:" % L)
    if kind == 0:
        A("ds_read_b64 %s, v154" % v(GS, 2))
    else:
        A("ds_read_b128 %s, v154" % v(GS, 4))
        A("ds_read_b128 %s, v154 offset:16" % v(GS + 4, 4))
    A("s_sub_u32 s31, s31, 1")
    A("s_cbranch_scc1 %s_X" % L)
    A("s_waitcnt lgkmcnt(0)")
    if kind == 0:
        A("v_cmp_eq_u32 vcc, 0, v%d" % (GS + 1))
    else:
        A("v_min_u32 v156, v%d, v%d" % (GS + 1, GS + 3))
        A("v_min3_u32 v156, v%d, v%d, v156" % (GS + 5, GS + 7))
        A("v_cmp_eq_u32 vcc, 0, v156")
    A("s_cmp_eq_u64 vcc, 0")
    if opt("sts", 0):
        A("s_cbranch_scc1 %s_X" % L)
        A("s_sleep %d" % opt("sts", 0))
        A("s_branch %s" % L)
    else:
        A("s_cbranch_scc0 %s" % L)
    A("%s_X:" % L)
    A("s_waitcnt lgkmcnt(0)")
    if kind == 0:
        for i in range(2): A("v_mul_f32 v%d, 0x%x, v%d" % (GS + i, f2u(0.25 * 1.4426950408889634), GS + i))
    for i in range(4):
        o = 0 if kind == 0 else 2 * i
        A("v_mul_f32 v%d, v%d, v%d" % (GA + i, GA + i, GS + o + 1))
        A("v_fma_f32 v%d, -v%d, v%d, v%d" % (GA + i, GS + o, GC + i, GA + i))
    A("v_cvt_pk_bf16_f32 v%d, v%d, v%d" % (GA, GA, GA + 1))
    A("v_cvt_pk_bf16_f32 v%d, v%d, v%d" % (GA + 1, GA + 2, GA + 3))
    if kind == 0: A("s_branch G3_PUB")
A("G3_PUB:")
if opt("g3p", 3) != 3: A("s_setprio 3")
A("v_mov_b32 v%d, s60" % (GA + 2))
A("v_mov_b32 v%d, s60" % (GA + 3))
A("buffer_store_dwordx4 %s, v157, s[36:39], s63 offen sc1" % v(GA, 4))
A("buffer_store_dwordx2 %s, v155, s[36:39], s56 offen sc1" % v(GA, 2))
ST.stamp()
A("s_mov_b32 s58, 0x%x" % KVFLAG)
A("v_lshlrev_b32 v6, %d, v1" % KS)
A("s_and_b32 s57, s2, %d" % (KR - 1))
A("s_lshl_b32 s57, s57, %d" % (8 + KS))
A("v_add_u32 v6, s57, v6")
A("v_mov_b32 v4, s60")
A("v_lshlrev_b32 v5, %d, v1" % (8 + KS))
A("s_mov_b64 exec, 0x%x" % ((1 << KR) - 1) if KR < 32 else "s_mov_b64 exec, -1" if KR == 64 else "s_mov_b32 exec_hi, 0")
A("s_waitcnt vmcnt(0)")
A("buffer_store_dword v4, v5, s[36:39], s59 offen sc1")
A("s_mov_b64 exec, -1")
ST.stamp()
A("@WARM3")
if opt("pd", 0) == 1: spin(M_X, 11, 4)
if opt("pd", 0) == 2: spin(M_Q, 8, 4)
if opt("pd", 0) == 3: spin(M_C0, 8, 4)
A("s_mov_b32 s58, 0x%x" % (KVFLAG + (64 << KS)))
gpoll(6, "s58", 4, 1, "s60", opt("ksleep", 2))
ST.stamp(slot=10); ST.n = 4
spin(M_Q, 8, 4)
for i in range(8):
    A("s_mov_b32 m0, %d" % (32768 + i * 4096))
    A("s_mov_b32 s53, 0x%x" % (KVF + 32768 + i * 4096))
    for k in range(4):
        A("buffer_load_dwordx4 v2, s[36:39], s53 offen offset:%d @LD lds" % (k * 1024))
if OL:
    A("v_mov_b64 v[8:9], -1")
    A("v_mov_b64 v[10:11], -1")
    A("s_mul_i32 s53, s26, %d" % (2 * NKS))
    A("s_lshl_b32 s57, s27, 2")
    A("s_add_u32 s53, s53, s57")
    A("s_lshl_b32 s53, s53, 10")
    A("s_add_u32 s53, s53, 0x%x" % (AF + 86 * 1024))
    A("s_add_u32 s57, s53, %d" % (NKS * 1024))
    for i in range(8):
        A("buffer_store_dwordx4 v[8:11], v2, s[36:39], s%d offen offset:%d sc1" % ((53, 57)[i >> 2], (i & 3) * 1024))
    A("s_waitcnt vmcnt(8)")
else:
    A("s_waitcnt vmcnt(0)")
bump(M_C1, 4)
for c_ in (2, 3):
    A("s_mov_b32 s58, 0x%x" % (KVFLAG + ((64 * c_) << KS)))
    gpoll(6, "s58", 4, 1, "s60", opt("ksleep", 2))
bump(M_KV, 4)

A("G_JOIN:")
A.vm = []; A.lg = []
spin(M_F1, 3, 4)
spin(M_KV, 1, 4)
read_tag(61, 4)
A("s_getreg_b32 s63, hwreg(HW_REG_XCC_ID, 0, 4)")
ST.stamp(slot=13); ST.n = 4
A("s_lshl_b32 s52, s62, 14")
for i in range(4):
    A("s_add_u32 m0, s52, %d" % (65536 + i * 4096))
    A("s_add_u32 s53, s52, 0x%x" % (KVF + 65536 + i * 4096))
    for k in range(4):
        A("buffer_load_dwordx4 v2, s[36:39], s53 offen offset:%d @LD lds" % (k * 1024))
ST.stamp(slot=11)
A("s_waitcnt vmcnt(16)")
ST.stamp(slot=12); ST.n = 4
A("v_mov_b32 v4, 1")
A("s_mov_b64 exec, 1")
A("ds_add_rtn_u32 v5, v3, v4 offset:%d" % (M_H - MISC))
A("s_mov_b64 exec, -1")
A("s_lshl_b32 s57, s29, %d" % HS)
A("s_add_u32 s57, s57, 0x%x" % HFLAG)
A("s_waitcnt lgkmcnt(0)")
A("v_readfirstlane_b32 s30, v5")
A("s_cmp_eq_u32 s30, 3")
A("s_cbranch_scc0 G_NOFLAG")
if OL:
    A("v_mov_b32 v4, s61")
    A("v_mov_b32 v5, s63")
    A("v_mov_b32 v6, 0")
    A("s_mov_b64 exec, 1")
    A("buffer_store_dwordx2 v[4:5], v6, s[36:39], s57 offen sc1")
    A("s_mov_b64 exec, -1")
    A("s_nop 0")
else:
    flag_store("s57", "s61", 4)
A("G_NOFLAG:")
A("s_lshl_b32 s52, s26, 3")
A("v_add_u32 v4, s52, v1")
A("v_subrev_u32 v5, 8, v1")
A("v_lshlrev_b32 v5, 3, v5")
A("v_add_u32 v5, s27, v5")
A("v_mov_b32 v6, s29")
A("v_cmp_gt_u32 vcc, 40, v1")
A("s_nop 1")
A("v_cndmask_b32 v5, v6, v5, vcc")
A("v_cmp_gt_u32 vcc, 8, v1")
A("s_nop 1")
A("v_cndmask_b32 v5, v5, v4, vcc")
A("v_lshlrev_b32 v5, %d, v5" % HS)
A("s_mul_i32 s52, s27, %d" % (2 * NKS * 1024))
A("s_add_u32 s52, s52, 0x%x" % WT)
A("s_mul_i32 s53, s26, %d" % (2 * NKS * 1024))
A("s_add_u32 s53, s53, 0x%x" % AF)
A("v_add_u32 v164, s52, v2")
A("v_add_u32 v165, %d, v164" % (NKS * 1024))
A("v_add_u32 v166, s53, v2")
A("v_add_u32 v167, %d, v166" % (NKS * 1024))
A("s_lshl_b32 s54, s62, 10")
A("s_cmp_lt_u32 s62, 2")
A("s_cselect_b32 s55, 0, 0x%x" % HUGE)
A("s_waitcnt vmcnt(0)")
bump(M_C23, 4)
A("s_mov_b32 s58, 0x%x" % HFLAG)
ST.stamp()
A("s_cmp_eq_u32 s62, 3")
A("s_cbranch_scc0 G_HW")
if OL:
    gpoll(5, "s58", 6, 2, "s61", opt("hsleep", 8))
    A("v_cmp_ne_u32 vcc, s63, v7")
    A("v_cmp_ne_u32 s[64:65], s61, v6")
    A("s_or_b64 vcc, vcc, s[64:65]")
    A("s_and_b32 s30, vcc_lo, 0xff")
    A("s_cselect_b32 s30, 0, %d" % (0 if opt("noloc", 0) else 1))
    A("v_mov_b32 v4, s30")
    A("ds_write_b32 v3, v4 offset:%d" % (M_LOC - MISC))
else:
    gpoll(5, "s58", 4, 1, "s61", opt("hsleep", 8))
bump(M_HOK, 4)
A("G_HW:")
spin(M_HOK, 1, 4, 4)
ST.stamp()
NST, SB, NI = 6, 68, 22
def loads(i):
    st = SB + (i % NST) * 16
    if i == NI - 1: A("s_add_u32 s54, s54, s55")
    for q in range(4):
        A.vmem("buffer_load_dwordx4 %s, v%d, s[36:39], s54 offen @LD" % (v(st + 4 * q, 4), 164 + q), "L%d" % i)
    if i < NI - 1: A("s_add_u32 s54, s54, 4096")
if opt("gp2", 3) != 3: A("s_setprio %d" % opt("gp2", 3))
for i in range(NST): loads(i)
for i in range(NI):
    st = SB + (i % NST) * 16
    A.wait_vm("L%d" % i)
    for a in range(2):
        for b in range(2):
            A(mfma(ACC[a][b], st + 4 * a, st + 8 + 4 * b, "0" if i == 0 else None))
            if opt("pace2", 0): A("s_nop %d" % opt("pace2", 0))
    if i + NST < NI: loads(i + NST)
if opt("gp2", 3) != 3: A("s_setprio 3")
if OL:
    WR, OR_ = 68, 104
    fr = [(i, a) for i in range(8) for a in range(2)]
    hoff = lambda i: (i & 3) * 8192 + (i >> 2) * 2048
    A("s_lshr_b32 s54, s62, 1")
    A("s_lshl_b32 s54, s54, 12")
    A("s_and_b32 s56, s62, 1")
    A("s_lshl_b32 s56, s56, 10")
    A("s_add_u32 s54, s54, s56")
    A("s_add_u32 s40, s54, %d" % (86 * 1024))
    for i in range(1, 4): A("s_add_u32 s%d, s40, %d" % (40 + i, 8192 * i))
    A("s_mul_i32 s56, s62, 7168")
    A("s_add_u32 s56, s56, %d" % Z0)
    for n, (i, a) in enumerate(fr):
        if n < 9:
            A("buffer_load_dwordx4 %s, v%d, s[36:39], s%d offen offset:%d @LD" % (v(WR + 4 * n, 4), 164 + a, 40 + (i & 3), (i >> 2) * 2048))
        else:
            A("s_add_u32 m0, s56, 0x%x" % (((n - 9) * 1024 - 2048) & 0xffffffff))
            A("s_nop 0")
            A("buffer_load_dwordx4 v%d, s[36:39], s%d offen offset:2048 @LD lds" % (164 + a, 40 + (i & 3)))
    for i in range(4): A("s_add_u32 s%d, s%d, s53" % (44 + i, 40 + i))
    A("v_add_u32 v1, %d, v2" % (NKS * 1024))
    A("s_mov_b32 s57, 0xff")
    A("s_mov_b32 s58, 0x2000")
    ST.stamp()
    spin(M_O, opt("ow", 8), 0, 4)
    A("s_waitcnt vmcnt(0)")
    A("v_add_u32 v3, s56, v2")
    ST.stamp()
    def oload(i, tag=None):
        for t in range(2):
            A.vmem("buffer_load_dwordx4 %s, v%d, s[36:39], s%d offen offset:%d sc1" % (v(OR_ + 8 * i + 4 * t, 4), 2 - t, 44 + (i & 3), (i >> 2) * 2048), tag)
    def ocheck(i):
        r = OR_ + 8 * i
        A("v_max3_u32 v0, v%d, v%d, v%d" % (r, r + 1, r + 2))
        A("v_max3_u32 v0, v%d, v%d, v0" % (r + 3, r + 4))
        A("v_max3_u32 v0, v%d, v%d, v0" % (r + 5, r + 6))
        A("v_max_u32 v0, v%d, v0" % (r + 7))
        A("v_cmp_eq_u32 vcc, -1, v0")
    for i in range(8): oload(i, "o%d" % i)
    A("s_branch G_OB0")
    A("G_OREF:")
    A("s_waitcnt vmcnt(0)")
    A("s_sub_u32 s58, s58, 1")
    A("s_cselect_b32 s57, 0, s57")
    vm_s = list(A.vm)
    for i in range(8):
        A("s_bitcmp1_b32 s57, %d" % i)
        A("s_cbranch_scc0 G_ORN%d" % i)
        ocheck(i)
        A("s_bitset0_b32 s57, %d" % i)
        A("s_cbranch_vccz G_ORN%d" % i)
        A("s_bitset1_b32 s57, %d" % i)
        oload(i)
        A("G_ORN%d:" % i)
    A.vm = vm_s
    A("s_bitcmp1_b32 s57, s59")
    if opt("osleep", 0):
        A("s_cbranch_scc0 G_ODIS")
        A("s_sleep %d" % opt("osleep", 0))
        A("s_branch G_OREF")
        A("G_ODIS:")
    else:
        A("s_cbranch_scc1 G_OREF")
    for i in range(7, 0, -1):
        A("s_cmp_eq_u32 s59, %d" % i)
        A("s_cbranch_scc1 G_OV%d" % i)
    A("s_branch G_OV0")
    wreg = {fr[n]: WR + 4 * n for n in range(9)}
    nxt = 9
    for i in range(8):
        A("G_OB%d:" % i)
        A("s_bitcmp1_b32 s57, %d" % i)
        A("s_cbranch_scc0 G_OV%d" % i)
        A.wait_vm("o%d" % i)
        ocheck(i)
        A("s_mov_b32 s59, %d" % i)
        A("s_cbranch_vccnz G_OREF")
        A("s_bitset0_b32 s57, %d" % i)
        A("G_OV%d:" % i)
        if A.has_lg("w%d" % i): A.wait_lg("w%d" % i)
        for a in range(2):
            for t in range(2):
                A(mfma(ACC[a][t], wreg[(i, a)], OR_ + 8 * i + 4 * t))
        for a in range(2):
            if nxt < 16:
                wreg[fr[nxt]] = wreg[(i, a)]
                A.lds("ds_read_b128 %s, v3 offset:%d" % (v(wreg[(i, a)], 4), (nxt - 9) * 1024), "w%d" % fr[nxt][0])
                nxt += 1
    A.vm = []; A.lg = []
    if STAMP: A("s_sub_u32 s96, 0x2000, s58")
if not OL:
    A("s_lshl_b32 s54, s62, 13")
    A("s_add_u32 s54, s54, %d" % (86 * 1024))
    WR, OR_ = 68, 104
    fr = [(i, a) for i in range(8) for a in range(2)]
    for n, (i, a) in enumerate(fr[:9]):
        if i == 4: A("s_add_u32 s54, s54, 4096")
        A("buffer_load_dwordx4 %s, v%d, s[36:39], s54 offen offset:%d @LD" % (v(WR + 4 * n, 4), 164 + a, (i & 3) * 1024))
    A("s_mul_i32 s56, s62, 7168")
    A("s_add_u32 s56, s56, %d" % Z0)
    for n, (i, a) in enumerate(fr[9:]):
        A("s_add_u32 m0, s56, 0x%x" % (((n - (i & 3)) * 1024) & 0xffffffff))
        A("s_nop 0")
        A("buffer_load_dwordx4 v%d, s[36:39], s54 offen offset:%d @LD lds" % (164 + a, (i & 3) * 1024))
    ST.stamp()
    spin(M_O, opt("ow", 8), 0, 4)
    A("v_add_u32 v3, s56, v2")
    A("v_and_b32 v0, 15, v1")
    A("v_lshlrev_b32 v0, %d, v0" % OS)
    A("s_lshl_b32 s57, s26, %d" % (6 + OS))
    A("s_lshl_b32 s58, s62, %d" % (4 + OS))
    A("s_add_u32 s58, s58, s57")
    A("s_add_u32 s58, s58, 0x%x" % OFLAG)
    A("s_lshl_b32 s54, s62, 13")
    A("s_add_u32 s54, s54, s53")
    A("s_add_u32 s54, s54, %d" % (86 * 1024))
    A("s_add_u32 s55, s54, %d" % (NKS * 1024))
    A("s_add_u32 s56, s54, 4096")
    A("s_add_u32 s57, s55, 4096")
    gpoll(0, "s58", 1, 1, "s61", opt("osleep", 2))
    ST.stamp()
    for i in range(8):
        for t in range(2):
            A.vmem("buffer_load_dwordx4 %s, v2, s[36:39], s%d offen offset:%d @LD" % (v(OR_ + 8 * i + 4 * t, 4), 54 + t + 2 * (i >> 2), (i & 3) * 1024), "o%d" % i)
    wreg = {fr[n]: WR + 4 * n for n in range(9)}
    nxt = 9
    for i in range(8):
        A.wait_vm("o%d" % i)
        if A.has_lg("w%d" % i): A.wait_lg("w%d" % i)
        for a in range(2):
            for t in range(2):
                A(mfma(ACC[a][t], wreg[(i, a)], OR_ + 8 * i + 4 * t))
        for a in range(2):
            if nxt < 16:
                wreg[fr[nxt]] = wreg[(i, a)]
                A.lds("ds_read_b128 %s, v3 offset:%d" % (v(wreg[(i, a)], 4), (nxt - 9) * 1024), "w%d" % fr[nxt][0])
                nxt += 1
A("v_lshrrev_b32 v0, 4, v2")
A("v_and_b32 v1, 31, v0")
A("v_mul_u32_u24 v1, 272, v1")
A("v_lshrrev_b32 v0, 5, v0")
A("v_lshl_add_u32 v1, v0, 4, v1")
A("s_mul_i32 s52, s62, %d" % PW)
A("v_add_u32 v1, s52, v1")
ST.stamp()
A("s_barrier")
A("s_nop 4")
for a in range(2):
    for b in range(2):
        for q in range(4):
            A("ds_write_b128 v1, %s offset:%d" % (v(ACC[a][b] + 4 * q, 4), b * 8704 + a * 128 + q * 32))
A("s_waitcnt lgkmcnt(0)")
A("s_barrier")
A("s_cmp_eq_u32 s2, 0")
A("s_cselect_b32 s52, s62, 0")
A("s_cmp_eq_u32 s52, 3")
A("s_cbranch_scc0 G_END")
A("s_mov_b32 s52, 0x%x" % EPOCH)
flag_store("s52", "s61", 4)
A("G_END:")
ST.stamp()
if STAMP:
    ST.flush(36, STOFF, 28, 4, nwaves=12)
A("DONE:")
A("s_endpgm")


import subprocess, re
def render(lines):
    out = HEADER + "; @launch grid=(256,1,1) block=(768,1,1) lds=%d\n" % LDS_BYTES
    out += ("\n".join(lines) + "\n").replace(" @LD", " sc1" if opt("ldsc", 0) else "")
    out += '.section .rodata,"a"\n' + kd(NAME, 168)
    return out
def is_insn(l): return l.startswith("    ") and not l.strip().startswith(";") and not l.strip().startswith("@")
def addresses(lines):
    tmp = []
    for i, l in enumerate(lines):
        if l.strip().startswith("@"): continue
        if is_insn(l): tmp.append("ZZ%d:" % i)
        tmp.append(l)
    open("_p.s", "w").write(render(tmp))
    r = subprocess.run(["clang", "-x", "assembler", "-target", "amdgcn-amd-amdhsa", "-mcpu=gfx950", "-c", "_p.s", "-o", "_p.o"], capture_output=True, text=True)
    assert r.returncode == 0, r.stderr[:3000]
    o = subprocess.run(["llvm-readelf", "-s", "-W", "_p.o"], capture_output=True, text=True).stdout
    return {int(m.group(2)): int(m.group(1), 16) for m in re.finditer(r"^\s*\d+: ([0-9a-f]+) .* ZZ(\d+)$", o, re.M)}
lines = list(A.lines)
WSP = opt("warm", 0)
if WSP:
    ad = addresses(lines)
    lab = {l[:-1]: i for i, l in enumerate(lines) if l.endswith(":")}
    nxt = lambda i: min(k for k in ad if k >= i)
    forced = [nxt(lab[n]) for n in ("G_START", "G3_START", "G_JOIN")]
    lo, hi = lab["A_LOOP"] - 2, lines.index("    s_cbranch_scc1 A_LOOP")
    pads, last = [], opt("warm0", 256)
    idx = sorted(ad)
    for n, i in enumerate(idx):
        a_ = ad[i]
        if i in forced: pads.append(i); last = a_; continue
        if lo <= i <= hi: continue
        nx = [k for k in idx[n + 1:n + 200] if not lo <= k <= hi]
        if nx and ad[nx[0]] - last > WSP and i > lines.index("    @W0"):
            pads.append(i); last = a_
    reg = lambda i: "A" if i < lab["G_START"] else "G" if i < lab["G3_START"] else "K" if i < lab["G_JOIN"] else "J"
    by = {r_: [i for i in pads if reg(i) == r_] for r_ in "AGKJ"}
    na = len([i for i in by["A"] if i < lab["A_LOOP"]])
    order = by["A"][:na] + by["K"][1:] + by["G"][1:]
    ph1 = {8: [by["G"][0]], 11: [by["K"][0]]}
    for w in (0, 1, 2, 3, 4, 5, 9, 10, 6, 7): ph1[w] = [order.pop(0)]
    n2 = opt("wn2", 0)
    late = by["J"] + by["A"][na:]
    order += late[:n2]
    ph2 = {w: [] for w in (8, 9, 10)}
    for n, i in enumerate(order): ph2[8 + n % 3].append(i)
    ph3 = {11: late[n2:]}
    tgt = {}
    for ph, ret in ((ph1, "WRET1"), (ph2, "WRET2"), (ph3, "WRET3")):
        for w, ch in ph.items():
            for n, i in enumerate(ch): tgt[i] = "WP%d" % ch[n + 1] if n + 1 < len(ch) else ret
    def disp(ph, ret, ws):
        o = ["    s_mov_b64 exec, 0"]
        for w in ws:
            if ph.get(w): o += ["    s_cmp_eq_u32 s28, %d" % w, "    s_cbranch_scc1 WP%d" % ph[w][0]]
        return o + ["%s:" % ret, "    s_mov_b64 exec, -1"]
    new = []
    for i, l in enumerate(lines):
        if l == "    @WARM1": new += disp(ph1, "WRET1", (11, 8, 0, 1, 2, 3, 4, 5, 9, 10, 6, 7)); continue
        if l == "    @WARM2": new += disp(ph2, "WRET2", (8, 9, 10)); continue
        if l == "    @WARM3": new += disp(ph3, "WRET3", (11,)); continue
        if l == "    @W0": continue
        if i in tgt: new += ["WP%d:" % i, "    s_cbranch_execz %s" % tgt[i]]
        new.append(l)
    lines = new
    print("pads", [(reg(i), hex(ad[i])) for i in pads])
    print("ph1", {w: [hex(ad[i]) for i in c] for w, c in ph1.items()}, "ph2", {w: [hex(ad[i]) for i in c] for w, c in ph2.items()}, "ph3", {w: [hex(ad[i]) for i in c] for w, c in ph3.items()})
else:
    lines = [l for l in lines if not l.strip().startswith("@")]
open(sys.argv[1], "w").write(render(lines))
```

```python
import sys, struct
from asmlib import *
def f2u(x): return struct.unpack("<I", struct.pack("<f", x))[0]

OPT = dict(a.split("=") if "=" in a else (a, "1") for a in sys.argv[2:])
STAMP = "stamp" in OPT
def opt(k, d): return type(d)(OPT.get(k, d))

NAME = "parallel_sum__grouped_kv_mqa__dense_activation_relu__prompt_kernel"
KS, HS, OS = opt("ks", 7), opt("hs", 7), opt("os", 7)
EPOCH, KVFLAG, HFLAG, OFLAG = 0x0, 0xC00000, 0xB80000, 0xB00000
KR = opt("kr", 1)
KVF, AF, WT, STOFF = 0x10000, 0x100000, 0x900000, 0xE00000
KVL = 0x40000
LLP = opt('llp', 1)
LLT = opt("llt", 2)
WS_BYTES = 0x2000000 if "dumpxn" in OPT else 0x1000000
NKS = 118
HUGE = 0x7f000000
Y0, X0, Z0 = 0, 65536, 131072
NSLOT = 5
RING = NSLOT * 2048
MISC = Z0 + 3 * RING
M_W, M_Q, M_X, M_C0, M_C1, M_C23, M_F1, M_H, M_TAG, M_KV, M_HOK, M_O, M_QH, M_LOC, M_F1H, M_C2 = [MISC + 4 * i for i in range(16)]
EC = opt('ec', 0)
BAL = opt('bal', 0)
OL = opt('ol', 0)
M_ST = MISC + 64
M_F = [MISC + 576 + 4 * i for i in range(4)]
M_XN = MISC + 592
RAW = opt("raw", 0)
GXL = opt("gxl", 1)
ALL = opt("np", 12) == 32 and not RAW
FT = [11, 3, 11, 12] if RAW else [11, 3, 3, 3] if ALL else [12, 3, 11, 11]
WIMG = Z0 if RAW else X0 + 16384
LDS_BYTES = 163840
PW = 17408
SC = " sc1"

A = Asm()
A('.amdgcn_target "amdgcn-amd-amdhsa--gfx950"')
A(".text")
kernel_begin(A, NAME)
A("s_cmp_ge_u32 s2, 256")
A("s_cbranch_scc1 DONE")
ST = Stamps2(A, STAMP)
CK = opt("ck", 0)
if CK:
    _st = ST.stamp
    ST.stamp = lambda *a, **k: None
def ck(k):
    if CK:
        _st(slot=2 * k); _st(cy=True, slot=2 * k + 1)
ST.stamp()
ck(0)
A("s_load_dwordx16 s[4:19], s[0:1], 0")
A("s_load_dwordx4 s[20:23], s[0:1], 64")
A("s_load_dwordx2 s[24:25], s[0:1], 80")
A("s_and_b32 s26, s2, 7")
A("s_lshl_b32 s26, s26, 2")
A("s_lshr_b32 s27, s2, 3")
A("s_and_b32 s27, s27, 3")
A("s_add_u32 s26, s26, s27")
A("s_lshr_b32 s27, s2, 5")
if opt("jx", 0): A("s_xor_b32 s27, s27, %d" % opt("jx", 0))
A("v_lshrrev_b32 v1, 6, v0")
A("v_mov_b32 v3, %d" % MISC)
A("v_readfirstlane_b32 s28, v1")
A("v_and_b32 v1, 63, v0")
A("v_lshlrev_b32 v2, 4, v1")
A("s_lshl_b32 s29, s26, 3")
A("s_add_u32 s29, s29, s27")
A("v_lshrrev_b32 v4, 3, v1")
A("v_and_b32 v5, 7, v1")
A("v_lshlrev_b32 v6, 10, v4")
A("v_lshl_add_u32 v124, v5, 4, v6")
A("s_lshl_b32 s48, s26, 16")
A("s_lshl_b32 s49, s28, 13")
A("s_add_u32 s48, s48, s49")
KROT = opt("krot", 1)
A("s_lshl_b32 s49, s26, 5" if KROT else "s_mov_b32 s49, 0")
A("s_and_b32 s50, s49, 0x60")
A("v_xor_b32 v100, s50, v124")
A("s_and_b32 s49, s49, 0x380")
A("s_or_b32 s49, s49, s48")
A("s_cmp_eq_u32 s28, 11")
A("s_cbranch_scc0 NOINIT")
for i in range(4): A("v_mov_b32 v%d, 0" % (4 + i))
A("v_add_u32 v8, %d, v2" % MISC)
A("ds_write_b128 v8, v[4:7]")
A("NOINIT:")
A("@WARM1")
A("s_waitcnt lgkmcnt(0)")
ST.stamp(slot=9); ST.n = 1
srd(A, 32, 4, 2048 * 1024)
srd(A, 36, 24, WS_BYTES)
A("s_cmp_ge_u32 s28, 8")
A("s_cbranch_scc1 G_START")

def spin(word, val, tv, sleep=1):
    L = A.label("SP")
    A("s_mov_b32 s31, 0x40000")
    A("%s:" % L)
    A("ds_read_b32 v%d, v3 offset:%d" % (tv, word - MISC))
    A("s_sub_u32 s31, s31, 1")
    A("s_waitcnt lgkmcnt(0)")
    A("v_readfirstlane_b32 s30, v%d" % tv)
    A("s_cbranch_scc1 %s_X" % L)
    A("s_cmp_ge_u32 s30, %d" % val)
    A("s_cbranch_scc1 %s_X" % L)
    A("s_sleep %d" % sleep)
    A("s_branch %s" % L)
    A("%s_X:" % L)
    A.lg = []
def peek(word, tv, tag):
    A.lds("ds_read_b32 v%d, v3 offset:%d" % (tv, word - MISC), tag)
def gate(word, val, tv, tag):
    L = A.label("GT")
    if A.has_lg(tag): A.wait_lg(tag)
    A("v_readfirstlane_b32 s30, v%d" % tv)
    A("s_cmp_ge_u32 s30, %d" % val)
    A("s_cbranch_scc1 %s" % L)
    keep = list(A.lg)
    spin(word, val, tv)
    A.lg = keep
    A("%s:" % L)
def bump(word, tv):
    A("v_mov_b32 v%d, 1" % tv)
    A("s_mov_b64 exec, 1")
    A.lds("ds_add_u32 v3, v%d offset:%d" % (tv, word - MISC), "bump")
    A("s_mov_b64 exec, -1")
def gpoll(av, soff, tv, n, tag, sleep=2):
    L = A.label("GP")
    A("s_mov_b32 s31, 0x1000")
    A("%s:" % L)
    A("buffer_load_dword%s %s, v%d, s[36:39], %s offen sc1" % ("x%d" % n if n > 1 else "", v(tv, n), av, soff))
    A("s_sub_u32 s31, s31, 1")
    A("s_cbranch_scc1 %s_X" % L)
    A("s_waitcnt vmcnt(0)")
    if n == 4:
        for i in range(4): A("v_xor_b32 v%d, %s, v%d" % (tv + i, tag, tv + i))
        A("v_or3_b32 v%d, v%d, v%d, v%d" % (tv, tv, tv + 1, tv + 2))
        A("v_or_b32 v%d, v%d, v%d" % (tv, tv, tv + 3))
        A("v_cmp_ne_u32 vcc, 0, v%d" % tv)
    else:
        A("v_cmp_ne_u32 vcc, %s, v%d" % (tag, tv))
    A("s_cmp_eq_u64 vcc, 0")
    A("s_cbranch_scc1 %s_X" % L)
    A("s_sleep %d" % sleep)
    A("s_branch %s" % L)
    A("%s_X:" % L)
    A("s_waitcnt vmcnt(0)")
    A.vm = []
def read_tag(dst, tv):
    A("ds_read_b32 v%d, v3 offset:%d" % (tv, M_TAG - MISC))
    A("s_waitcnt lgkmcnt(0)")
    A("v_readfirstlane_b32 s%d, v%d" % (dst, tv))
    A.lg = []
def flag_store(soff, tag, tv):
    A("v_mov_b32 v%d, %s" % (tv, tag))
    A("v_mov_b32 v%d, 0" % (tv + 1))
    A("s_mov_b64 exec, 1")
    A("buffer_store_dword v%d, v%d, s[36:39], %s offen sc1" % (tv, tv + 1, soff))
    A("s_mov_b64 exec, -1")
def mfma16(d, a, b, c=None):
    cs = v(d, 4) if c is None else c
    return "v_mfma_f32_16x16x32_bf16 %s, %s, %s, %s" % (v(d, 4), v(a, 4), v(b, 4), cs)

X, F, T0, XR, NM, VXW = 128, 4, 112, 104 + 16, 164, 163
for i in range(8):
    if not KROT:
        A.vmem("buffer_load_dwordx4 %s, v124, s[32:35], s48 offen offset:%d" % (v(X + 4 * i, 4), 128 * i), "x%d" % i)
        continue
    if i: A("s_xor_b32 s50, s49, %d" % (128 * i))
    A.vmem("buffer_load_dwordx4 %s, v100, s[32:35], s%d offen" % (v(X + 4 * i, 4), 50 if i else 49), "x%d" % i)
srd(A, 44, 20, 2048 * 1024)
A("s_lshr_b32 s50, s28, 1")
A("s_lshr_b32 s51, s27, 1")
if opt("pa0", 0): A("s_setprio %d" % opt("pa0", 0))
A("s_cmp_eq_u32 s50, s51")
A("s_cbranch_scc0 A_NOPRIO")
A("s_setprio %d" % opt("pao", 2))
A("A_NOPRIO:")
A("s_lshl_b32 s51, s27, 7")
A("s_add_u32 s48, s48, s51")
if not opt("xl", 0): A.vmem("buffer_load_dwordx4 %s, v124, s[32:35], s48 offen" % v(XR, 4), "xr")
A("s_barrier")
A("@W0")
A("s_lshr_b32 s50, s28, 2")
A("s_lshl_b32 s50, s50, 15")
A("s_add_u32 s50, s50, %d" % X0)
A("s_and_b32 s51, s28, 3")
A("s_lshl_b32 s51, s51, 7")
A("s_add_u32 s50, s50, s51")
A("v_xor_b32 v9, v4, v5")
A("v_lshlrev_b32 v9, 4, v9")
A("v_lshl_add_u32 v9, v5, 9, v9")
A("v_add_u32 v%d, s50, v9" % VXW)
A("s_lshl_b32 s50, s28, 6")
A("s_add_u32 s50, s50, %d" % M_ST)
A("v_lshlrev_b32 v10, 3, v4")
A("v_add_u32 v10, s50, v10")
A("v_lshrrev_b32 v12, 4, v1")
A("v_and_b32 v13, 15, v1")
A("v_xor_b32 v160, v13, v12")
A("v_lshlrev_b32 v160, 4, v160")
A("v_lshl_add_u32 v160, v12, 9, v160")
A("s_and_b32 s50, s28, 1")
A("s_lshl_b32 s51, s50, 15")
A("s_add_u32 s51, s51, %d" % X0)
A("v_add_u32 v160, s51, v160")
A("v_xor_b32 v161, 64, v160")
A("v_bfe_u32 v14, v1, 2, 2")
A("v_and_b32 v162, 2, v14")
A("v_and_b32 v15, 1, v12")
A("v_or_b32 v162, v162, v15")
A("s_lshr_b32 s51, s28, 1")
A("v_xor_b32 v162, s51, v162")
A("v_lshlrev_b32 v162, 5, v162")
A("v_lshl_add_u32 v14, v12, 3, v14")
A("v_lshl_add_u32 v162, v14, 7, v162")
A("v_and_b32 v15, 3, v1")
A("v_lshl_add_u32 v162, v15, 3, v162")
A("s_lshl_b32 s52, s50, 8")
A("s_add_u32 s52, s52, %d" % M_ST)
A("v_lshlrev_b32 v103, 3, v13")
A("v_add_u32 v103, s52, v103")
A("s_lshl_b32 s56, s26, 1")
A("s_add_u32 s56, s56, s50")
A("s_mul_i32 s56, s56, %d" % NKS)
A("s_lshl_b32 s57, s27, 2")
A("s_add_u32 s56, s56, s57")
A("s_add_u32 s56, s56, s51")
A("s_lshl_b32 s56, s56, 10")
A("s_add_u32 s56, s56, 0x%x" % (AF + 86 * 1024))
A("s_lshl_b32 s57, s29, 3")
A("s_add_u32 s57, s57, s28")
A("s_lshl_b32 s57, s57, %d" % OS)
A("s_add_u32 s57, s57, 0x%x" % OFLAG)
A("s_mov_b32 s58, 0xffff0000")
A("s_mov_b32 s59, 0xffff0000")
A("s_mov_b32 s60, 0")
A("s_mov_b32 s61, 0x%x" % f2u(-64.0))
A("s_lshl_b32 s64, s28, %d" % (10 + LLT))
A("v_lshrrev_b32 v126, 5, v1")
A("v_lshlrev_b32 v126, 9, v126")
A("v_and_b32 v127, 31, v1")
A("v_lshl_add_u32 v126, v127, 3, v126")
A("v_add_u32 v126, s64, v126")
A("v_add_u32 v127, s64, v2")
A("s_lshl_b32 s52, s28, %d" % (11 + LLT))
A("s_add_u32 s52, s52, 0x%x" % KVL)
A("s_add_u32 s53, s52, 4096")
A("s_mov_b32 s54, 0x3f803f80")
QA, QS, QD, CS = 104, 36, 4, 116
Q, K, V, P, C, S, O = 4, 8, [12, 20], 28, 36, [52, 68], 84
MX, TMP, K2 = 100, 101, 112
for i in range(4): A("v_mov_b32 v%d, 0" % (T0 + i))
for i in range(4): A("v_mov_b32 v%d, s54" % (P + i))
A("v_mov_b64 %s, 0" % v(P + 4, 2))
A("v_mov_b64 %s, 0" % v(P + 6, 2))
A("v_mov_b32 v102, v2")
A("v_mov_b32 v11, 1")
def bump1(word):
    A("s_mov_b64 exec, 1")
    A.lds("ds_add_u32 v3, v11 offset:%d" % (word - MISC), "bump")
    A("s_mov_b64 exec, -1")
for i in range(8):
    A.wait_vm("x%d" % i)
    if i == 0: ST.stamp()
    if i == 7: ST.stamp(slot=12); ST.n = 2
    if RAW:
        A("ds_write_b128 v%d, %s offset:%d" % (VXW, v(X + 4 * i, 4), i * 4096))
        if i == 3: bump1(M_F[0])
        if i == 7: bump1(M_F[2])
    for k in range(4):
        r = X + 4 * i + k
        A("v_dot2c_f32_bf16 v%d, s54, v%d" % (T0 + (k & 1), r))
        A("v_dot2c_f32_bf16 v%d, v%d, v%d" % (T0 + 2 + (k & 1), r, r))
if ALL: peek(M_X, TMP, "fw")
A("s_nop 1")
A("v_add_f32 v%d, v%d, v%d" % (T0, T0, T0 + 1))
A("v_add_f32 v%d, v%d, v%d" % (T0 + 2, T0 + 2, T0 + 3))
for mode in ["quad_perm:[1,0,3,2]", "quad_perm:[2,3,0,1]", "row_half_mirror"]:
    A("s_nop 0")
    A("v_add_f32_dpp v%d, v%d, v%d %s row_mask:0xf bank_mask:0xf" % (T0, T0, T0, mode))
    A("v_add_f32_dpp v%d, v%d, v%d %s row_mask:0xf bank_mask:0xf" % (T0 + 2, T0 + 2, T0 + 2, mode))
def rb(r):
    A("v_cvt_pk_bf16_f32 v%d, v%d, v%d" % (r, r, r))
    A("v_lshlrev_b32 v%d, 16, v%d" % (r, r))
M_, V_ = T0, T0 + 2
A("v_mul_f32 v%d, 0x%x, v%d" % (M_, f2u(1.0 / 512), M_))
A("v_mul_f32 v%d, 0x%x, v%d" % (V_, f2u(1.0 / 512), V_))
A("v_fma_f32 v%d, -v%d, v%d, v%d" % (V_, M_, M_, V_))
A("v_max_f32 v%d, 0, v%d" % (V_, V_))
rb(V_)
A("v_add_f32 v%d, 0x%x, v%d" % (V_, f2u(1e-5), V_))
rb(V_)
A("v_sqrt_f32 v%d, v%d" % (V_, V_))
rb(M_)
rb(V_)
A("v_rcp_f32 v%d, v%d" % (M_ + 1, V_))
A("s_nop 0")
A("v_mul_f32 v%d, v%d, v%d" % (M_, M_, M_ + 1))
A.lds("ds_write_b64 v10, %s" % v(M_, 2), "st")
if RAW: bump1(M_F[3])
if ALL: gate(M_X, 1, TMP, "fw")
A("s_setprio %d" % opt("ap", 0))
ST.stamp()
LLR = ([O + 4 * i for i in range(4)] + [V[0] + 4 * i for i in range(4)])[:4 * LLT]
if ALL: LLR = [X + 4 * i for i in range(4 * LLT)]
def ll_loads(sel=None):
    for i, r in enumerate(LLR):
        if sel is None or i in sel: A("buffer_load_dwordx3 %s, v2, s[36:39], s%d offen offset:%d sc1" % (v(r, 3), 52 + i // 4, (i & 3) * 1024))
def ll_check(t):
    A("s_waitcnt vmcnt(0)")
    for r in LLR: A("v_xor_b32 v%d, v125, v%d" % (r + 3, r + 2))
    z = [r + 3 for r in LLR]
    A("v_or3_b32 v%d, v%d, v%d, v%d" % (z[0], z[0], z[1], z[2]))
    if LLT == 2:
        A("v_or3_b32 v%d, v%d, v%d, v%d" % (z[3], z[3], z[4], z[5]))
        A("v_or3_b32 v%d, v%d, v%d, v%d" % (z[0], z[0], z[6], z[7]))
    A("v_or_b32 v%d, v%d, v%d" % (z[0], z[0], z[3]))
    A("v_cmp_ne_u32 vcc, 0, v%d" % z[0])
norm = ["v_mov_b32 v%d, v%d" % (NM, M_ + 1), "v_mov_b32 v%d, v%d" % (NM + 1, M_ + 1),
        "v_sub_f32 v%d, 0, v%d" % (NM + 2, M_), "v_sub_f32 v%d, 0, v%d" % (NM + 3, M_)]
FN, NP = opt("fn", 6), opt("np", 12)
cut = 4
for i in range(33):
    f0, f1 = F + 2 * (i & 1), F + 2 * ((i - 1) & 1)
    if i == NP: cut = len(norm)
    if i < 32:
        norm.append("v_lshlrev_b32 v%d, 16, v%d" % (f0, X + i))
        norm.append("v_and_b32 v%d, 0xffff0000, v%d" % (f0 + 1, X + i))
    else:
        norm.append("s_nop 0")
    if i > 0: norm.append("v_cvt_pk_bf16_f32 v%d, v%d, v%d" % (X + i - 1, f1, f1 + 1))
    if i < NP: norm.append("v_pk_fma_f32 %s, %s, %s, %s" % (v(f0, 2), v(f0, 2), v(NM, 2), v(NM + 2, 2)))
    elif i < 32:
        for z in range(2): norm.append("v_fma_f32 v%d, v%d, v%d, v%d" % (f0 + z, f0 + z, NM, NM + 2))
    if not RAW and i > 0 and i % 4 == 0:
        norm.append("ds_write_b128 v%d, %s offset:%d" % (VXW, v(X + i - 4, 4), (i // 4 - 1) * 4096))
        if i in (16, 24, 32) and not ALL: norm.append(("bump", M_F[{16: 0, 24: 2, 32: 3}[i]]))
        if i == 32 and ALL: norm.append(("bump", M_F[0])); cut = len(norm)
        if i == 16: cut = max(cut, len(norm))
bumped = set()
def emit(l):
    if isinstance(l, tuple): bump1(l[1]); bumped.add(l[1])
    elif l.startswith("ds_"): A.lds(l, "xw")
    else: A(l)
for l in norm[:cut]: emit(l)
norm = norm[cut:]
if not RAW: ST.stamp(slot=2)
if ALL:
    A("s_mov_b32 s31, 0x40000")
    A("A_F0:")
    A("ds_read_b128 %s, v3 offset:%d" % (v(F, 4), M_F[0] - MISC))
    A("s_sub_u32 s31, s31, 1")
    A("s_waitcnt lgkmcnt(0)")
    A("v_readfirstlane_b32 s30, v%d" % F)
    A("s_cbranch_scc1 A_F0X")
    A("s_cmp_ge_u32 s30, %d" % FT[0])
    A("s_cbranch_scc1 A_F0X")
    A("s_sleep 1")
    A("s_branch A_F0")
    A("A_F0X:")
    A.lg = []
else: spin(M_F[0], FT[0], TMP)
if "pa2" in OPT: A("s_setprio %d" % opt("pa2", 0))
ST.stamp(slot=9); ST.n = 3
ck(1)
if opt("qc", 0): ST.stamp(cy=True, slot=14); ST.n = 3
def qreads(s_):
    b = QS + (s_ % QD) * 12
    A.lds("ds_read_b64_tr_b16 %s, v162 offset:%d" % (v(b, 2), s_ * 4096), "q%d" % s_)
    A.lds("ds_read_b64_tr_b16 %s, v162 offset:%d" % (v(b + 2, 2), s_ * 4096 + 512), "q%d" % s_)
    A.lds("ds_read_b128 %s, v%d offset:%d" % (v(b + 4, 4), 160 + (s_ & 1), s_ * 2048), "q%d" % s_)
    A.lds("ds_read_b128 %s, v%d offset:%d" % (v(b + 8, 4), 160 + (s_ & 1), s_ * 2048 + 256), "q%d" % s_)
def init_list():
    L = ["v_mov_b64 %s, 0" % v(O + 2 * i, 2) for i in range(7)]
    L += ["v_and_b32 v%d, 27, v1" % V[0], "v_cmp_eq_u32 vcc, 0, v%d" % V[0], "v_mov_b32 v%d, s54" % (V[0] + 1), "v_mov_b64 %s, 0" % v(O + 14, 2),
          "v_cndmask_b32 v%d, 0, v%d, vcc" % (V[0], V[0] + 1), "v_mov_b32 v%d, v%d" % (V[0] + 1, V[0])]
    L += ["v_mov_b64 %s, %s" % (v(V[0] + 2 * i, 2), v(V[0], 2)) for i in range(1, 8)]
    return L
def init_regs():
    for l in init_list() + ["v_mov_b64 %s, 0" % v(P + 4, 2), "v_mov_b64 %s, 0" % v(P + 6, 2)]: A(l)
QST = 112
if ALL: norm = init_list(); FN = 2
for s_ in range(QD - 1):
    if s_ == 2 and not ALL: peek(M_F[1], TMP, "f1")
    qreads(s_)
for s_ in range(16):
    if A.has_lg("q%d" % s_): A.wait_lg("q%d" % s_)
    n_ = s_ + QD - 1
    if n_ < 16:
        if n_ % 4 == 0 and n_ >= 8 and not RAW and not ALL:
            while M_F[n_ // 4] not in bumped: emit(norm.pop(0)); print("late fill", n_)
        if n_ % 4 == 0 and KROT: gate(M_F[n_ // 4], FT[n_ // 4], F + n_ // 4 if ALL else TMP, "f%d" % (n_ // 4))
        if n_ % 4 == 2 and n_ < 12 and not ALL: peek(M_F[n_ // 4 + 1], TMP, "f%d" % (n_ // 4 + 1))
        qreads(n_)
        if n_ == 12:
            A.lds("ds_read_b32 v125, v3 offset:%d" % (M_TAG - MISC), "q12")
        if n_ == 13 and RAW:
            A.lds("ds_read_b64 %s, v103" % v(QST, 2), "q13")
            A.lds("ds_read_b64 %s, v103 offset:128" % v(QST + 2, 2), "q13")
        if n_ == 7: bump1(M_QH)
        if n_ == 15: bump1(M_Q); peek(M_QH, TMP, "q15")
    lps = opt("lps", 8)
    if s_ >= LLP: ll_loads(range((s_ - LLP) * lps, (s_ - LLP + 1) * lps))
    b = QS + (s_ % QD) * 12
    now, norm = norm[:FN], norm[FN:]
    f3 = (FN + 2) // 3 if RAW else 0
    f2 = 2 * f3 if RAW else (len(now) + 1) // 2
    if RAW: A(mfma16(CS, b, P, "0" if s_ == 0 else None))
    for l in now[:f3]: emit(l)
    A(mfma16(QA, b, b + 4, "0" if s_ == 0 else None))
    for l in now[f3:f2]: emit(l)
    A(mfma16(QA + 4, b, b + 8, "0" if s_ == 0 else None))
    for l in now[f2:]: emit(l)
    left = len(now) + len(norm)
    if s_ == 15: ST.stamp(slot=13); ST.n = 3
ll_loads(range(max(0, 16 - LLP) * lps, 8))
for l in norm: A(l)
if left < 7: A("s_nop %d" % (6 - left))
A("v_readfirstlane_b32 s55, v125")
for h_ in range(2 if RAW else 0):
    for i in range(4): A("v_mul_f32 v%d, v%d, v%d" % (NM + i if h_ == 0 else CS + i, QST + 2 * h_, CS + i))
for h_ in range(2 if RAW else 0):
    for i in range(4): A("v_fma_f32 v%d, v%d, v%d, -v%d" % (QA + 4 * h_ + i, QA + 4 * h_ + i, QST + 2 * h_ + 1, NM + i if h_ == 0 else CS + i))
for i in range(4): A("v_cvt_pk_bf16_f32 v%d, v%d, v%d" % (Q + i, QA + 2 * i, QA + 2 * i + 1))
A("s_mov_b32 s31, 0x1000")
A("s_nop 0")
A("v_permlane16_swap_b32 v%d, v%d" % (Q, Q + 2))
A("v_permlane16_swap_b32 v%d, v%d" % (Q + 1, Q + 3))
ST.stamp(slot=3)
if opt("qc", 0): ST.stamp(cy=True, slot=15); ST.n = 3
A("A_LLW:")
ll_check(0)
A("s_cbranch_vccz A_LLOK")
A("s_sub_u32 s31, s31, 1")
A("s_cbranch_scc1 A_LLOK")
if opt("lls", 0): A("s_sleep %d" % opt("lls", 0))
ll_loads()
A("s_branch A_LLW")
A("A_LLOK:")
A.vm = []
ST.stamp(slot=4)
gate(M_QH, 8, TMP, "q15")
for i, r in enumerate(LLR):
    t_, kind, u = i >> 2, i & 1, (i >> 1) & 1
    A("ds_write_b64 v126, %s offset:%d" % (v(r, 2), t_ * 2048 + (u * 256 if kind == 0 else 1024 + (1 - u) * 256)))
bump1(M_C0)
A("ds_read_b128 %s, v127" % v(K, 4))
if LLT == 2: A("ds_read_b128 %s, v127 offset:2048" % v(K2, 4))
ST.stamp(slot=10)
if not ALL:
    for l in init_list(): A(l)
A("s_waitcnt lgkmcnt(0)")
A(mfma(S[0], K, Q, "0"))
if LLT == 2: A(mfma(S[1], K2, Q, "0"))
A.lg = []
spin(M_C0, 8, TMP)
ST.stamp(slot=11); ST.n = 5
A("ds_read_b128 %s, v102" % v(K, 4))
A("s_nop 2")
A("v_max3_f32 v%d, v%d, v%d, v%d" % (MX, S[0], S[0] + 1, S[0] + 2))
A("v_max3_f32 v%d, v%d, v%d, v%d" % (TMP, S[0] + 3, S[0] + 4, S[0] + 5))
for i in range(5):
    A("v_max3_f32 v%d, v%d, v%d, v%d" % ((MX, TMP)[i & 1], S[0] + 6 + 2 * i, S[0] + 7 + 2 * i, (MX, TMP)[i & 1]))
for i in range(8 if LLT == 2 else 0):
    A("v_max3_f32 v%d, v%d, v%d, v%d" % ((MX, TMP)[i & 1], S[1] + 2 * i, S[1] + 2 * i + 1, (MX, TMP)[i & 1]))
A("v_max_f32 v%d, v%d, v%d" % (MX, MX, TMP))
A("A_GO:")
A("v_mov_b32 v%d, v%d" % (TMP, MX))
A("s_mov_b64 exec, s[58:59]")
A("ds_read_b128 %s, v102 offset:1024" % v(V[0], 4))
A("ds_read_b128 %s, v102 offset:768" % v(V[0] + 4, 4))
A("s_mov_b64 exec, -1")
A("v_permlane32_swap_b32 v%d, v%d" % (MX, TMP))
A("s_nop 1")
A("v_max_f32 v%d, v%d, v%d" % (MX, MX, TMP))
A("v_sub_f32 v%d, s61, v%d" % (C, MX))
A("v_sub_f32 v%d, s61, v%d" % (C + 1, MX))
for i in range(1, 8): A("v_mov_b64 %s, %s" % (v(C + 2 * i, 2), v(C, 2)))
A("s_waitcnt lgkmcnt(2)")
A(mfma(S[0], K, Q, C))
A("ds_read_b128 %s, v102 offset:2048" % v(K, 4))
S0 = 4 * LLT - 1
if EC:
    SEG = [(S0, None, 2), (15 - S0, (M_C1, 1), None), (4, (M_C2, 1), None), (opt("p1", 4), (M_C23, 4), None), (opt("p2", 7), None, 1), (opt("p3", 2), None, 0)]
else:
    SEG = [(S0, None, 2), (15 - S0, (M_C1, 1), None), (opt("p1", 8), (M_C23, 4), None), (opt("p2", 7), None, 1), (opt("p3", 2), None, 0)]
SEG = [x for x in SEG if x[0]]
assert sum(x[0] for x in SEG) == 32
if opt("xl", 0): A("buffer_load_dwordx4 %s, v124, s[32:35], s48 offen" % v(XR, 4))
if opt("ot", 0): A("buffer_load_dword v127, v124, s[44:47], s48 offen")
A("s_mov_b32 s62, %d" % SEG[0][0])
A("s_mov_b32 s63, 0")
A("s_setprio %d" % SEG[0][2])
ST.stamp()
if not opt("qc", 0): ST.stamp(cy=True, slot=14)
ST.n = 6
ck(2)
if not RAW:
    A("s_cmp_lt_u32 s28, 4")
    A("s_nop 6")
    if BAL: A("s_cbranch_scc1 A_LOOPX")
else:
    A("s_cmp_eq_u32 s60, 64")
    A("s_nop 4")
    A("s_cbranch_scc1 A_LOOP")
if not RAW: pass
elif opt("pp", 1):
    A("s_cmp_lt_u32 s28, 4")
    A("s_cbranch_scc1 A_PEEL")
    A("s_setprio 3")
    A("A_PEEL:")
else: A("s_nop 1")
def body(name, marks, peel=False):
    if not peel:
        A(".p2align 6")
        A("%s:" % name)
    n = [0]
    def E(x):
        if n[0] in marks: A("s_setprio %d" % marks[n[0]])
        n[0] += 1
        A(x)
    for p in range(2):
        Sc, Sn, Vc, Vp = S[p], S[1 - p], V[p], V[1 - p]
        e = lambda i: E("v_exp_f32 v%d, v%d" % (Sc + i, Sc + i))
        c = lambda i: A("v_cvt_pk_bf16_f32 v%d, v%d, v%d" % (P + i, Sc + 2 * i, Sc + 2 * i + 1))
        w = lambda i: A("ds_write_b128 v%d, %s offset:%d" % (VXW, v(X + 16 * p + 4 * i, 4), (4 * p + i) * 4096)) if peel else None
        A("s_waitcnt lgkmcnt(%d)" % (4 if peel and p else 0))
        A(mfma(Sn, K, Q, C))
        A("ds_read_b128 %s, v102 offset:%d" % (v(K, 4), (p + 2) * 2048))
        e(0); e(1); e(2); e(3); c(0); e(4)
        A(mfma(O, Vp + 4, P + 4))
        A("s_mov_b64 exec, s[58:59]")
        A("ds_read_b128 %s, v102 offset:%d" % (v(Vp, 4), (p + 1) * 2048 + 1024))
        A("ds_read_b128 %s, v102 offset:%d" % (v(Vp + 4, 4), (p + 1) * 2048 + 768))
        A("s_mov_b64 exec, -1")
        e(5); w(0); c(1); e(6); w(1); e(7); c(2); e(8); w(2); c(3); e(9); w(3); e(10)
        if peel and p: bump(M_XN, TMP); A("s_setprio %d" % SEG[0][2])
        A(mfma(O, Vc, P))
        e(11); c(4); e(12); e(13); c(5); e(14); e(15)
        if p == 1:
            A("v_add_u32 v102, 4096, v102")
            A("s_sub_u32 s62, s62, 1")
            A("s_cmp_lt_u32 s28, 4" if peel else "s_cmp_lg_u32 s62, 0")
        c(6); c(7)
    if not peel: A("s_cbranch_scc1 %s" % name)
    elif BAL: A("s_cbranch_scc1 A_LOOPX")
if RAW: body("A_PEEL", {}, True)
A.lg = []
body("A_LOOP", {})
if BAL:
    A("s_branch A_SEGS")
    body("A_LOOPX", {0: 3, BAL: 1})
    A("@LOOPEND")
    A("A_SEGS:")
else:
    A("@LOOPEND")
A("s_add_u32 s63, s63, 1")
A("s_cmp_eq_u32 s63, %d" % len(SEG))
A("s_cbranch_scc1 A_SEG%d" % (len(SEG) - 1))
plain = False
for i, (n, chk, pr) in enumerate(SEG[1:], 1):
    A("s_cmp_eq_u32 s63, %d" % i)
    A("s_cbranch_scc0 A_SEG%d" % i)
    sg = opt("sg", 0)
    if i in (1, 2, 4): ck({1: 3, 2: 4, 4: 5}[i])
    if sg and chk and i - sg in (0, 1): ST.stamp(slot=(1, 9)[i - sg])
    if chk: spin(chk[0], chk[1], TMP)
    if sg and chk and i - sg in (0, 1): ST.stamp(slot=(12, 13)[i - sg]); ST.n = 6
    if sg and i - sg == 2: ST.stamp(slot=10); ST.n = 6
    if pr is not None: A("s_setprio %d" % pr); plain = True
    A("s_mov_b32 s62, %d" % n)
    if BAL and not plain:
        A("s_cmp_lt_u32 s28, 4")
        A("s_cbranch_scc1 A_LOOPX")
    A("s_branch A_LOOP")
    A("A_SEG%d:" % i)
if opt("fp", 0): A("s_setprio 3")
ck(6)
A(mfma(O, V[1] + 4, P + 4))
ST.stamp()
if not opt("qc", 0): ST.stamp(cy=True, slot=15)
ST.n = 7
if opt("fc", 0):
    A("s_waitcnt vmcnt(0) lgkmcnt(0)")
    A("ds_read_b32 v103, v3 offset:%d" % (M_LOC - MISC))
    A("v_mov_b32 v%d, 0x%x" % (S[0] + 4, f2u(2.0 ** -100)))
    A("v_mov_b32 v%d, 0x%x" % (S[0] + 5, f2u(2.0 ** 125)))
    R = 8
    for i in range(4):
        A("v_lshlrev_b32 v%d, 16, v%d" % (S[1] + 2 * i, XR + i))
        A("v_and_b32 v%d, 0xffff0000, v%d" % (S[1] + 2 * i + 1, XR + i))
    A("s_nop 0")
    o_ = lambda i: "|v%d|" % (O + 8 + i)
    A("v_rcp_f32 v%d, v%d" % (MX, O))
    A("v_maximum3_f32 v%d, %s, %s, %s" % (S[0], o_(0), o_(1), o_(2)))
    A("v_minimum3_f32 v%d, %s, %s, %s" % (S[0] + 1, o_(0), o_(1), o_(2)))
    A("v_maximum3_f32 v%d, %s, %s, %s" % (S[0] + 2, o_(3), o_(4), o_(5)))
    A("v_minimum3_f32 v%d, %s, %s, %s" % (S[0] + 3, o_(3), o_(4), o_(5)))
    A("v_maximum3_f32 v%d, %s, %s, v%d" % (S[0], o_(6), o_(7), S[0]))
    A("v_minimum3_f32 v%d, %s, %s, v%d" % (S[0] + 1, o_(6), o_(7), S[0] + 1))
    A("v_maximum3_f32 v%d, v%d, v%d, v%d" % (S[0], O, S[0] + 2, S[0]))
    A("v_minimum3_f32 v%d, v%d, v%d, v%d" % (S[0] + 1, O, S[0] + 3, S[0] + 1))
    A("v_cmp_lt_f32 s[64:65], v%d, v%d" % (S[0], S[0] + 5))
    A("v_cmp_gt_f32 vcc, v%d, v%d" % (S[0] + 1, S[0] + 4))
    for i in range(8): A("v_mul_f32 v%d, v%d, v%d" % (O + 8 + i, O + 8 + i, MX))
    A("s_and_b64 s[64:65], s[64:65], vcc")
    A("s_waitcnt lgkmcnt(0)")
    A("v_readfirstlane_b32 s30, v103")
    for i in range(4): A("v_cvt_pk_bf16_f32 v%d, v%d, v%d" % (P + i, O + 8 + 2 * i, O + 9 + 2 * i))
    A("s_cmp_eq_u64 s[64:65], -1")
    A("s_cbranch_scc1 A_FIN")
    A("s_cmp_eq_u32 s60, 64")
    A("s_cbranch_scc1 A_FIN")
else:
    A("s_waitcnt vmcnt(0) lgkmcnt(0)")
    if OL: A("ds_read_b32 v103, v3 offset:%d" % (M_LOC - MISC))
    A("v_mov_b32 v%d, 0x108" % TMP)
    A("s_cmp_eq_u32 s60, 64")
    A("s_nop 9")
    A("v_rcp_f32 v%d, v%d" % (MX, O))
    A("s_cbranch_scc1 A_FIN")
    A("v_mul_f32 v%d, 4.0, v%d" % (S[0], O))
    A("v_cmp_class_f32 s[64:65], v%d, v%d" % (S[0], TMP))
    for i in range(8):
        A("v_mul_f32 v%d, 0x%x, v%d" % (S[0] + 1 + i, f2u(2.0 ** -26), O + 8 + i))
        A("v_cmp_class_f32 vcc, v%d, v%d" % (S[0] + 1 + i, TMP))
        A("s_and_b64 s[64:65], s[64:65], vcc")
    A("s_cmp_eq_u64 s[64:65], -1")
    A("s_cbranch_scc1 A_FIN")
A("s_mov_b32 s60, 64")
A("s_mov_b32 s61, 0")
A("v_mov_b32 v102, v2")
A("v_mov_b32 v%d, 0xff800000" % MX)
A("s_mov_b32 s62, 64")
A("A_PRE:")
A("ds_read_b128 %s, v102" % v(K, 4))
A("v_add_u32 v102, 2048, v102")
A("s_waitcnt lgkmcnt(0)")
A(mfma(S[0], K, Q, "0"))
A("s_nop 12")
for i in range(8):
    A("v_max3_f32 v%d, v%d, v%d, v%d" % (MX, S[0] + 2 * i, S[0] + 2 * i + 1, MX))
A("s_sub_u32 s62, s62, 1")
A("s_cmp_lg_u32 s62, 0")
A("s_cbranch_scc1 A_PRE")
init_regs()
A("v_mov_b32 v102, v2")
A("ds_read_b128 %s, v102" % v(K, 4))
A("s_branch A_GO")
A("A_FIN:")
if not opt("fc", 0):
    if OL:
        A("s_waitcnt lgkmcnt(0)")
        A("v_readfirstlane_b32 s30, v103")
    for i in range(8): A("v_mul_f32 v%d, v%d, v%d" % (O + 8 + i, O + 8 + i, MX))
    for i in range(4): A("v_cvt_pk_bf16_f32 v%d, v%d, v%d" % (P + i, O + 8 + 2 * i, O + 9 + 2 * i))
if OL:
    A("s_cmp_eq_u32 s30, 1")
    A("s_cbranch_scc1 A_OLOC")
    A("buffer_store_dwordx4 %s, v2, s[36:39], s56 offen sc1" % v(P, 4))
    A("s_branch A_ODONE")
    A("A_OLOC:")
    A("buffer_store_dwordx4 %s, v2, s[36:39], s56 offen" % v(P, 4))
    A("A_ODONE:")
else:
    A("buffer_store_dwordx4 %s, v2, s[36:39], s56 offen sc1" % v(P, 4))
bump(M_O, 6)
A("s_mul_i32 s50, s28, %d" % (8 * 272))
A("v_lshrrev_b32 v4, 3, v1")
A("v_mul_u32_u24 v4, 272, v4")
A("v_and_b32 v5, 7, v1")
A("v_lshl_add_u32 v4, v5, 5, v4")
A("v_add_u32 v4, s50, v4")
R = S[1] if opt("fc", 0) else 8
for i in range(0 if opt("fc", 0) else 4):
    A("v_lshlrev_b32 v%d, 16, v%d" % (R + 2 * i, XR + i))
    A("v_and_b32 v%d, 0xffff0000, v%d" % (R + 2 * i + 1, XR + i))
if not OL:
    A("s_waitcnt vmcnt(0)")
    flag_store("s57", "s55", 6)
ST.stamp()
if OL < 2: A("s_barrier")
A("s_barrier")
for p in range(4):
    for hh in range(2):
        A("ds_read_b128 %s, v4 offset:%d" % (v(16 + p * 8 + hh * 4, 4), p * PW + hh * 16))
for p in range(4):
    A("s_waitcnt lgkmcnt(%d)" % (6 - 2 * p))
    for i in range(4):
        A("v_pk_add_f32 %s, %s, %s" % (v(R + 2 * i, 2), v(R + 2 * i, 2), v(16 + p * 8 + 2 * i, 2)))
for i in range(4): A("v_cvt_pk_bf16_f32 v%d, v%d, v%d" % (XR + i, R + 2 * i, R + 2 * i + 1))
A("buffer_store_dwordx4 %s, v124, s[44:47], s48 offen" % v(XR, 4))
if STAMP:
    A("s_waitcnt vmcnt(0)")
    ST.stamp()
    ck(7)
    ST.flush(36, STOFF, 28, 4, nwaves=12)
A("s_endpgm")
A.vm = []; A.lg = []

A("G_START:")
A("s_setprio 3")
A("s_sub_u32 s62, s28, 8")
A("s_cmp_eq_u32 s62, 3")
A("s_cbranch_scc1 G3_START")
ST.n = 1
ACC = [[4, 20], [36, 52]]
WF = [[68, 72], [76, 80]]
XF = [[84, 88], [92, 96]]
VD1, VD2, VT1, VT2, VW0, VW1, VP0, VP1, VX = 100, 101, 102, 103, 104, 105, 106, 107, 108
PK = 112
srd(A, 40, 16, 512 * 2752)
srd(A, 48, 12, 512 * 1024)
A("s_lshl_b32 s52, s62, 5")
A("s_add_u32 s52, s52, s26")
A("s_cmp_lt_u32 s52, 86")
A("s_cselect_b32 s44, s18, s12")
A("s_cselect_b32 s45, s19, s13")
A("s_mov_b32 s46, 0x%x" % (512 * 1024))
A("s_cselect_b32 s46, 0x%x, s46" % (1376 * 1024))
A("s_mov_b32 s47, 0x00020000")
A("s_cselect_b32 s53, 0, 86")
A("s_sub_u32 s53, s52, s53")
A("s_lshl_b32 s53, s53, 14")
A("s_lshl_b32 s54, s27, 7")
A("s_add_u32 s53, s53, s54")
A("s_mul_i32 s55, s27, %d" % (2 * NKS))
A("s_add_u32 s56, s55, s52")
A("s_lshl_b32 s56, s56, 10")
A("s_add_u32 s56, s56, 0x%x" % WT)
A("s_add_u32 s57, s26, 10")
A("s_lshl_b32 s57, s57, 14")
A("s_add_u32 s57, s57, s54")
A("s_add_u32 s58, s55, s26")
A("s_lshl_b32 s58, s58, 10")
A("s_add_u32 s58, s58, 0x%x" % (WT + 96 * 1024))
A("s_cmp_lt_u32 s26, 22")
A("s_cselect_b32 s59, s62, 0")
A("s_cmp_eq_u32 s59, 2")
A("s_cselect_b32 s57, s57, 0x%x" % HUGE)
A("s_cselect_b32 s58, s58, 0x%x" % HUGE)
A("s_mul_i32 s59, s27, 3")
A("s_lshl_b32 s60, s27, 1")
A("s_add_u32 s60, s60, 6")
A("s_cmp_lt_u32 s27, 6")
A("s_cselect_b32 s59, s59, s60")
A("s_cselect_b32 s61, 0, s62")
A("s_add_u32 s59, s59, s62")
A("s_lshl_b32 s60, s59, 7")
A("s_cmp_eq_u32 s61, 2")
A("s_cselect_b32 s60, 0x%x, s60" % HUGE)
A("s_mul_i32 s63, s62, %d" % RING)
A("s_add_u32 s63, s63, %d" % Z0)
A("v_lshrrev_b32 v4, 3, v1")
A("v_and_b32 v5, 2, v4")
A("v_lshlrev_b32 v5, 1, v5")
A("v_and_b32 v6, 7, v1")
A("v_xor_b32 v5, v5, v6")
A("v_lshlrev_b32 v5, 4, v5")
A("v_lshl_add_u32 v%d, v4, 10, v5" % VT1)
A("v_add_u32 v%d, %d, v%d" % (VT2, 8192 - 1024, VT1))
A("v_mul_u32_u24 v%d, 2752, v4" % VD1)
A("v_add_u32 v%d, v%d, v5" % (VD1, VD1))
A("v_add_u32 v%d, %d, v%d" % (VD2, 8 * 2752 - 1024, VD1))
def dma(e):
    A("s_add_u32 m0, s63, %d" % ((e % NSLOT) * 2048))
    if e == 0: sr, so, a, b = 44, "s53", VT1, VT2
    elif e == 1: sr, so, a, b = 48, "s57", VT1, VT2
    else: sr, so, a, b = 40, "s3", VD1, VD2
    if e >= 2:
        if KROT:
            A("s_xor_b32 s3, s26, %d" % (e - 2))
            A("s_mul_i32 s3, s3, %d" % (16 * 2752))
            A("s_add_u32 s3, s3, s60")
        else: A("s_add_u32 s3, s60, %d" % ((e - 2) * 16 * 2752))
    else: A("s_nop 0")
    A.vmem("buffer_load_dwordx4 v%d, %s, %s offen lds" % (a, s(sr, 4), so), "E%d" % e)
    A.vmem("buffer_load_dwordx4 v%d, %s, %s offen offset:1024 lds" % (b, s(sr, 4), so), "E%d" % e)
A("s_barrier")
srd(A, 64, 6, 512 * 1024)
A("v_and_b32 v7, 2, v4")
A("s_and_b32 s30, s62, 1")
A("v_or_b32 v7, s30, v7")
A("v_lshlrev_b32 v7, 1, v7")
A("v_xor_b32 v7, v7, v6")
A("v_lshlrev_b32 v7, 4, v7")
A("v_lshl_add_u32 v7, v4, 10, v7")
A("v_xor_b32 v8, 32, v7")
A("s_lshl_b32 s30, s62, 13")
A("s_add_u32 s30, s30, s54")
A("s_lshl_b32 s31, s62, 10")
A("s_lshl_b32 s69, s26, 14")
A("s_lshl_b32 s68, s26, 11")
for i in range(22):
    if i == 21:
        A("s_cmp_eq_u32 s62, 0")
        A("s_cbranch_scc0 G_WQD")
    if KROT: A("s_add_u32 m0, s31, %d" % (Y0 + i * 3072))
    else:
        A("s_xor_b32 m0, s31, s68")
        A("s_add_u32 s31, s31, 3072")
    A("s_xor_b32 s3, s30, s69")
    A.vmem("buffer_load_dwordx4 v%d, s[64:67], s3 offen lds" % (7 + (i & 1)), "wq")
    A("s_add_u32 s30, s30, %d" % (3 * 8192))
A("G_WQD:")
if not opt("w2l", 0): A("@WARM2")
for h_, n_ in enumerate((16, 10, 5, 0) if KROT else (0,)):
    A("s_waitcnt vmcnt(%d)" % n_)
    bump(M_F[h_], 9)
    if h_ == 0: ST.stamp(slot=14)
if opt("w2l", 0): A("@WARM2")
A.vm = []
spin(M_W, 1, 9)
if opt("rd", 0) == 1: spin(M_QH, 8, 9, 2)
if opt("rd", 0) == 2: spin(M_Q, 8, 9, 2)
if opt("rd", 0) == 3: spin(M_C0, 8, 9, 2)
for e_ in range(NSLOT): dma(e_)
ST.stamp(slot=10); ST.n = 1
A("v_lshrrev_b32 v4, 5, v1")
A("v_bfe_u32 v5, v1, 2, 2")
A("v_bfe_u32 v6, v1, 4, 1")
A("v_and_b32 v7, 2, v5")
A("v_or_b32 v6, v6, v7")
A("v_lshlrev_b32 v6, 5, v6")
A("v_and_b32 v7, 3, v1")
A("v_lshl_add_u32 v6, v7, 3, v6")
A("v_lshl_add_u32 v6, v5, 7, v6")
A("v_add_u32 v6, s63, v6")
A("v_lshl_add_u32 v%d, v4, 10, v6" % VW0)
A("v_xor_b32 v%d, 64, v%d" % (VW1, VW0))
A("v_lshl_add_u32 v%d, v4, 9, v6" % VP0)
A("v_xor_b32 v%d, 64, v%d" % (VP1, VP0))
A("v_and_b32 v5, 31, v1")
for m in range(4):
    A("v_or_b32 v6, %d, v4" % (2 * m))
    A("v_xor_b32 v6, v6, v5")
    A("v_lshlrev_b32 v6, 4, v6")
    A("v_lshl_add_u32 v6, v4, 9, v6")
    A("v_add_u32 v%d, %d, v6" % (VX + m, X0))
for e_ in range(2):
    A.wait_vm("E%d" % e_)
    for a in range(2):
        A.lds("ds_read_b64_tr_b16 %s, v%d offset:%d" % (v(PK + e_ * 8 + a * 4, 2), VP0 + a, e_ * 2048), "t")
        A.lds("ds_read_b64_tr_b16 %s, v%d offset:%d" % (v(PK + e_ * 8 + a * 4 + 2, 2), VP0 + a, e_ * 2048 + 1024), "t")
    A.wait_lg0()
    d = 56 + 2 * e_
    A.vmem("buffer_store_dwordx4 %s, v2, s[36:39], s%d offen sc1" % (v(PK + e_ * 8, 4), d), "TS")
    A("s_add_u32 s%d, s%d, %d" % (d, d, NKS * 1024))
    A.vmem("buffer_store_dwordx4 %s, v2, s[36:39], s%d offen sc1" % (v(PK + e_ * 8 + 4, 4), d), "TS")
    dma(e_ + NSLOT)
ST.stamp()
A("s_mul_i32 s52, s26, %d" % (2 * NKS))
A("s_lshl_b32 s53, s59, 2")
A("s_add_u32 s52, s52, s53")
A("s_lshl_b32 s52, s52, 10")
A("s_add_u32 s52, s52, 0x%x" % AF)
A("s_add_u32 s53, s52, %d" % (NKS * 1024))
A("s_cmp_eq_u32 s59, 21")
A("s_cselect_b32 s54, 0x%x, s52" % HUGE)
A("s_cselect_b32 s55, 0x%x, s53" % HUGE)
A("s_cmp_eq_u32 s61, 2")
A("s_cbranch_scc1 %s" % ("G_F1IDLE" if EC else "G_F1DONE"))
spin(M_XN if RAW else (M_F[0 if ALL else 3], M_QH, M_Q, M_C0)[opt("gq", 2)], 11 if not RAW and opt("gq", 2) == 0 else 8, 4, 2)
if not RAW and not ALL and opt("gq", 2) == 1: spin(M_F[3], 11, 4)
ST.stamp()
def reads(s_):
    p = s_ & 1
    e_ = s_ + 2
    A.wait_vm("E%d" % e_)
    off = (e_ % NSLOT) * 2048
    for a in range(2):
        A.lds("ds_read_b64_tr_b16 %s, v%d offset:%d" % (v(WF[p][a], 2), VW0 + a, off), "r%d" % s_)
        A.lds("ds_read_b64_tr_b16 %s, v%d offset:%d" % (v(WF[p][a] + 2, 2), VW0 + a, off + 512), "r%d" % s_)
    for t in range(2):
        A.lds("ds_read_b128 %s, v%d offset:%d" % (v(XF[p][t], 4), VX + (s_ & 3), s_ * 1024 + t * 32768), "r%d" % s_)
if opt("gp1", 3) != 3: A("s_setprio %d" % opt("gp1", 3))
_mf = mfma
if opt("nof1", 0): mfma = lambda *a: "s_nop 0"
reads(0)
for s_ in range(32):
    p = s_ & 1
    A.wait_lg("r%d" % s_)
    pc = lambda: A("s_nop %d" % opt("pace1", 0)) if opt("pace1", 0) else None
    A(mfma(ACC[0][0], WF[p][0], XF[p][0], "0" if s_ == 0 else None))
    if s_ + 2 + NSLOT < 34: dma(s_ + 2 + NSLOT)
    pc()
    A(mfma(ACC[0][1], WF[p][0], XF[p][1], "0" if s_ == 0 else None))
    if s_ + 1 < 32: reads(s_ + 1)
    if EC and s_ == 15: bump(M_F1H, 0)
    if EC and s_ == 31: bump(M_F1, 0)
    pc()
    A(mfma(ACC[1][0], WF[p][1], XF[p][0], "0" if s_ == 0 else None))
    pc()
    A(mfma(ACC[1][1], WF[p][1], XF[p][1], "0" if s_ == 0 else None))
    pc()
mfma = _mf
ST.stamp()
if opt("gp1", 3) != 3: A("s_setprio 3")
A("s_nop 9")
for a in range(2):
    for t in range(2):
        b = PK + (2 * a + t) * 8
        for i in range(8): A("v_cvt_pk_bf16_f32 v%d, v%d, v%d" % (b + i, ACC[a][t] + 2 * i, ACC[a][t] + 2 * i + 1))
        for i in range(8): A("v_pk_max_i16 v%d, v%d, 0" % (b + i, b + i))
        A("buffer_store_dwordx4 %s, v2, s[36:39], s%d offen offset:%d sc1" % (v(b, 4), 52 + 2 * a + t, a * 2048))
        A("buffer_store_dwordx4 %s, v2, s[36:39], s%d offen offset:%d sc1" % (v(b + 4, 4), 52 + 2 * a + t, a * 2048 + 1024))
A("G_F1DONE:")
A.vm = []; A.lg = []
if STAMP: ST.n = 4
if EC:
    A("s_branch G_JOIN")
    A("G_F1IDLE:")
    bump(M_F1H, 4)
bump(M_F1, 4)
A("s_branch G_JOIN")

A("G3_START:")
ST.n = 1
A("s_load_dword s60, s[24:25], 0x%x" % EPOCH)
A("s_and_b32 s52, s27, 1")
A("s_cmp_eq_u32 s52, 0")
A("s_cselect_b32 s40, s8, s10")
A("s_cselect_b32 s41, s9, s11")
A("s_mov_b32 s42, 0x4000")
A("s_mov_b32 s43, 0x00020000")
for i in range(4):
    A("s_mov_b32 m0, %d" % (WIMG + i * 4096))
    A("s_mov_b32 s53, %d" % (i * 4096))
    for k in range(4):
        A.vmem("buffer_load_dwordx4 v2, s[40:43], s53 offen offset:%d lds" % (k * 1024), "w")
GW, GX, GA, GC, GS = 4, 68, 132, 136, 140
A("v_lshrrev_b32 v150, 4, v1")
A("v_and_b32 v151, 15, v1")
if GXL:
    assert not RAW
    A("v_and_b32 v152, 3, v1")
    A("v_xor_b32 v152, v152, v150")
    A("v_lshlrev_b32 v152, 4, v152")
    A("v_lshrrev_b32 v153, 2, v1")
    A("v_lshl_add_u32 v152, v153, 10, v152")
else:
    A("v_lshlrev_b32 v152, 10, v151")
    A("v_lshl_add_u32 v152, v150, 4, v152")
A("s_lshr_b32 s54, s27, 1")
A("s_lshl_b32 s55, s54, 14")
A("s_lshl_b32 s53, s26, 16")
A("s_add_u32 s53, s53, s55")
for i in range(16):
    if GXL:
        A("s_mov_b32 m0, %d" % (Z0 + i * 960))
        A("s_nop 0")
        A.vmem("buffer_load_dwordx4 v152, s[32:35], s53 offen offset:%d lds" % (64 * i), "x%d" % i)
    else:
        A.vmem("buffer_load_dwordx4 %s, v152, s[32:35], s53 offen offset:%d" % (v(GX + 4 * i, 4), 64 * i), "x%d" % i)
A("s_barrier")
A("s_waitcnt lgkmcnt(0)")
A("s_mul_i32 s60, s60, 0x9E3779B1")
A("s_add_u32 s60, s60, 0x7F4A7C15")
A("v_mov_b32 v153, s60")
A("ds_write_b32 v3, v153 offset:%d" % (M_TAG - MISC))
if RAW: bump(M_F[3], 154)
A("v_bfe_u32 v153, v1, 2, 2")
if GXL:
    A("v_xor_b32 v152, v153, v150")
    A("v_lshlrev_b32 v152, 4, v152")
    A("v_lshl_add_u32 v152, v151, 6, v152")
    A("v_add_u32 v152, %d, v152" % Z0)
A("v_lshl_add_u32 v153, v150, 3, v153")
A("v_lshlrev_b32 v153, 5, v153")
A("v_and_b32 v154, 3, v1")
A("v_lshl_add_u32 v153, v154, 3, v153")
A("v_add_u32 v153, %d, v153" % WIMG)
for i in range(4): A("v_mov_b32 v%d, 0x3f803f80" % (GS + i))
A.wait_vm("w")
for i in range(16):
    A("ds_read_b64_tr_b16 %s, v153 offset:%d" % (v(GW + 4 * i, 2), i * 1024))
    A("ds_read_b64_tr_b16 %s, v153 offset:%d" % (v(GW + 4 * i + 2, 2), i * 1024 + 128))
    if i == 6 or i == 13: A("s_waitcnt lgkmcnt(0)")
A("s_waitcnt lgkmcnt(0)")
if not RAW: bump(M_X if ALL else M_F[0], 154)
if not GXL: bump(M_W, 154)
if opt("g3p", 3) != 3: A("s_setprio %d" % opt("g3p", 3))
ST.stamp()
A("s_lshr_b32 s57, s54, 1")
A("s_lshl_b32 s56, s57, 5")
A("s_add_u32 s56, s56, s26")
A("s_lshl_b32 s59, s56, 2")
A("s_and_b32 s57, s27, 3")
A("s_add_u32 s59, s59, s57")
A("s_lshl_b32 s63, s59, 10")
A("s_add_u32 s63, s63, 0x%x" % KVL)
A("s_cmp_lt_u32 s56, %d" % (8 * LLT))
A("s_cselect_b32 s63, s63, 0x%x" % HUGE)
A("s_lshl_b32 s59, s59, %d" % KS)
A("s_add_u32 s59, s59, 0x%x" % KVFLAG)
A("s_lshl_b32 s56, s56, 11")
A("s_add_u32 s56, s56, 0x%x" % KVF)
A("s_and_b32 s57, s54, 1")
A("s_lshl_b32 s58, s54, 7")
A("s_add_u32 s58, s58, %d" % M_ST)
A("s_cmp_eq_u32 s52, 0")
A("s_cbranch_scc0 G3_V")
vm_save = list(A.vm)
for kind in range(2):
    A.vm = list(vm_save)
    if kind == 1: A("G3_V:")
    A.lg = []
    for i in range(16):
        if GXL and i % 8 == 0:
            A.wait_vm("x%d" % (i + 7))
            if i: A.wait_lg("gx1")
            for z in range(i, i + 8): A.lds("ds_read_b128 %s, v152 offset:%d" % (v(GX + 4 * z, 4), z * 1024), "gx%d" % z)
            if i: bump(M_W, 154)
        c0 = "0" if i == 0 else None
        A(mfma16(GC, GW + 4 * i, GS, c0) if kind == 0 else mfma16(GC, GS, GW + 4 * i, c0))
    if kind == 0:
        A("v_lshlrev_b32 v154, 3, v151")
        A("v_add_u32 v154, s58, v154")
        A("v_lshrrev_b32 v155, 1, v150")
        A("v_lshlrev_b32 v155, 9, v155")
        A("v_lshl_add_u32 v155, v151, 4, v155")
        A("v_and_b32 v156, 1, v150")
        A("v_lshl_add_u32 v155, v156, 3, v155")
        A("s_lshl_b32 s57, s57, 8")
        A("s_add_u32 s56, s56, s57")
    else:
        A("v_lshlrev_b32 v154, 5, v150")
        A("v_add_u32 v154, s58, v154")
        A("v_and_b32 v155, 1, v150")
        A("v_lshlrev_b32 v155, 9, v155")
        A("v_lshl_add_u32 v155, v151, 4, v155")
        A("v_lshrrev_b32 v156, 1, v150")
        A("v_lshl_add_u32 v155, v156, 3, v155")
        A("s_lshl_b32 s57, s57, 8")
        A("s_sub_u32 s56, s56, s57")
        A("s_add_u32 s56, s56, %d" % (1024 + 256))
    A("v_and_b32 v157, 255, v155")
    A("v_add_u32 v157, v157, v155")
    for i in range(16):
        if not GXL: A.wait_vm("x%d" % i)
        elif A.has_lg("gx%d" % i): A.wait_lg("gx%d" % i)
        c0 = "0" if i == 0 else None
        A(mfma16(GA, GW + 4 * i, GX + 4 * i, c0) if kind == 0 else mfma16(GA, GX + 4 * i, GW + 4 * i, c0))
    L = A.label("STS")
    A("s_mov_b32 s31, 0x40000")
    A("%s:" % L)
    if kind == 0:
        A("ds_read_b64 %s, v154" % v(GS, 2))
    else:
        A("ds_read_b128 %s, v154" % v(GS, 4))
        A("ds_read_b128 %s, v154 offset:16" % v(GS + 4, 4))
    A("s_sub_u32 s31, s31, 1")
    A("s_cbranch_scc1 %s_X" % L)
    A("s_waitcnt lgkmcnt(0)")
    if kind == 0:
        A("v_cmp_eq_u32 vcc, 0, v%d" % (GS + 1))
    else:
        A("v_min_u32 v156, v%d, v%d" % (GS + 1, GS + 3))
        A("v_min3_u32 v156, v%d, v%d, v156" % (GS + 5, GS + 7))
        A("v_cmp_eq_u32 vcc, 0, v156")
    A("s_cmp_eq_u64 vcc, 0")
    if opt("sts", 0):
        A("s_cbranch_scc1 %s_X" % L)
        A("s_sleep %d" % opt("sts", 0))
        A("s_branch %s" % L)
    else:
        A("s_cbranch_scc0 %s" % L)
    A("%s_X:" % L)
    A("s_waitcnt lgkmcnt(0)")
    if kind == 0:
        for i in range(2): A("v_mul_f32 v%d, 0x%x, v%d" % (GS + i, f2u(0.25 * 1.4426950408889634), GS + i))
    for i in range(4):
        o = 0 if kind == 0 else 2 * i
        A("v_mul_f32 v%d, v%d, v%d" % (GA + i, GA + i, GS + o + 1))
        A("v_fma_f32 v%d, -v%d, v%d, v%d" % (GA + i, GS + o, GC + i, GA + i))
    A("v_cvt_pk_bf16_f32 v%d, v%d, v%d" % (GA, GA, GA + 1))
    A("v_cvt_pk_bf16_f32 v%d, v%d, v%d" % (GA + 1, GA + 2, GA + 3))
    if kind == 0: A("s_branch G3_PUB")
A("G3_PUB:")
if opt("g3p", 3) != 3: A("s_setprio 3")
A("v_mov_b32 v%d, s60" % (GA + 2))
A("v_mov_b32 v%d, s60" % (GA + 3))
A("buffer_store_dwordx4 %s, v157, s[36:39], s63 offen sc1" % v(GA, 4))
A("buffer_store_dwordx2 %s, v155, s[36:39], s56 offen sc1" % v(GA, 2))
ST.stamp()
A("s_mov_b32 s58, 0x%x" % KVFLAG)
A("v_lshlrev_b32 v6, %d, v1" % KS)
A("s_and_b32 s57, s2, %d" % (KR - 1))
A("s_lshl_b32 s57, s57, %d" % (8 + KS))
A("v_add_u32 v6, s57, v6")
A("v_mov_b32 v4, s60")
A("v_lshlrev_b32 v5, %d, v1" % (8 + KS))
A("s_mov_b64 exec, 0x%x" % ((1 << KR) - 1) if KR < 32 else "s_mov_b64 exec, -1" if KR == 64 else "s_mov_b32 exec_hi, 0")
A("s_waitcnt vmcnt(0)")
A("buffer_store_dword v4, v5, s[36:39], s59 offen sc1")
A("s_mov_b64 exec, -1")
ST.stamp()
A("@WARM3")
if opt("pd", 0) == 1: spin(M_QH, 8, 4)
if opt("pd", 0) == 2: spin(M_Q, 8, 4)
if opt("pd", 0) == 3: spin(M_C0, 8, 4)
for c_ in ((32, 64) if LLT == 1 else (64,)):
    A("s_mov_b32 s58, 0x%x" % (KVFLAG + (c_ << KS)))
    gpoll(6, "s58", 4, 1, "s60", opt("ksleep", 2))
ST.stamp(slot=10); ST.n = 4
spin(M_Q, 8, 4)
for i in range(4 * LLT, 16):
    A("s_mov_b32 m0, %d" % (i * 4096))
    A("s_mov_b32 s53, 0x%x" % (KVF + i * 4096))
    for k in range(4):
        A("buffer_load_dwordx4 v2, s[36:39], s53 offen offset:%d @LD lds" % (k * 1024))
if OL:
    A("v_mov_b64 v[8:9], -1")
    A("v_mov_b64 v[10:11], -1")
    A("s_mul_i32 s53, s26, %d" % (2 * NKS))
    A("s_lshl_b32 s57, s27, 2")
    A("s_add_u32 s53, s53, s57")
    A("s_lshl_b32 s53, s53, 10")
    A("s_add_u32 s53, s53, 0x%x" % (AF + 86 * 1024))
    A("s_add_u32 s57, s53, %d" % (NKS * 1024))
    for i in range(8):
        A("buffer_store_dwordx4 v[8:11], v2, s[36:39], s%d offen offset:%d sc1" % ((53, 57)[i >> 2], (i & 3) * 1024))
    A("s_waitcnt vmcnt(8)")
else:
    A("s_waitcnt vmcnt(0)")
bump(M_C1, 4)
for c_ in (2, 3):
    A("s_mov_b32 s58, 0x%x" % (KVFLAG + ((64 * c_) << KS)))
    gpoll(6, "s58", 4, 1, "s60", opt("ksleep", 2))
bump(M_KV, 4)
if EC:
    spin(M_F1H, 3, 4, 2)
    for i in range(8):
        o_ = 65536 + (i >> 2) * 32768 + (i & 3) * 4096
        A("s_mov_b32 m0, %d" % o_)
        A("s_mov_b32 s53, 0x%x" % (KVF + o_))
        for k in range(4):
            A("buffer_load_dwordx4 v2, s[36:39], s53 offen offset:%d @LD lds" % (k * 1024))
    A("s_waitcnt vmcnt(16)")
    bump(M_C2, 4)

A("G_JOIN:")
A.vm = []; A.lg = []
spin(M_F1, 3, 4)
spin(M_KV, 1, 4)
read_tag(61, 4)
A("s_getreg_b32 s63, hwreg(HW_REG_XCC_ID, 0, 4)")
ST.stamp(slot=13); ST.n = 4
A("s_lshl_b32 s52, s62, %d" % (12 if EC else 14))
for i in range(2 if EC else 4):
    o_ = 65536 + 16384 + i * 32768 if EC else 65536 + i * 4096
    A("s_add_u32 m0, s52, %d" % o_)
    A("s_add_u32 s53, s52, 0x%x" % (KVF + o_))
    for k in range(4):
        A("buffer_load_dwordx4 v2, s[36:39], s53 offen offset:%d @LD lds" % (k * 1024))
ST.stamp(slot=11)
A("s_waitcnt vmcnt(%d)" % (8 if EC else 16))
ST.stamp(slot=12); ST.n = 4
A("v_mov_b32 v4, 1")
A("s_mov_b64 exec, 1")
A("ds_add_rtn_u32 v5, v3, v4 offset:%d" % (M_H - MISC))
A("s_mov_b64 exec, -1")
A("s_lshl_b32 s57, s29, %d" % HS)
A("s_add_u32 s57, s57, 0x%x" % HFLAG)
A("s_waitcnt lgkmcnt(0)")
A("v_readfirstlane_b32 s30, v5")
A("s_cmp_eq_u32 s30, 3")
A("s_cbranch_scc0 G_NOFLAG")
if OL:
    A("v_mov_b32 v4, s61")
    A("v_mov_b32 v5, s63")
    A("v_mov_b32 v6, 0")
    A("s_mov_b64 exec, 1")
    A("buffer_store_dwordx2 v[4:5], v6, s[36:39], s57 offen sc1")
    A("s_mov_b64 exec, -1")
    A("s_nop 0")
else:
    flag_store("s57", "s61", 4)
A("G_NOFLAG:")
A("s_lshl_b32 s52, s26, 3")
A("v_add_u32 v4, s52, v1")
A("v_subrev_u32 v5, 8, v1")
A("v_lshlrev_b32 v5, 3, v5")
A("v_add_u32 v5, s27, v5")
A("v_mov_b32 v6, s29")
A("v_cmp_gt_u32 vcc, 40, v1")
A("s_nop 1")
A("v_cndmask_b32 v5, v6, v5, vcc")
A("v_cmp_gt_u32 vcc, 8, v1")
A("s_nop 1")
A("v_cndmask_b32 v5, v5, v4, vcc")
A("v_lshlrev_b32 v5, %d, v5" % HS)
A("s_mul_i32 s52, s27, %d" % (2 * NKS * 1024))
A("s_add_u32 s52, s52, 0x%x" % WT)
A("s_mul_i32 s53, s26, %d" % (2 * NKS * 1024))
A("s_add_u32 s53, s53, 0x%x" % AF)
A("v_add_u32 v164, s52, v2")
A("v_add_u32 v165, %d, v164" % (NKS * 1024))
A("v_add_u32 v166, s53, v2")
A("v_add_u32 v167, %d, v166" % (NKS * 1024))
A("s_lshl_b32 s54, s62, 10")
A("s_cmp_lt_u32 s62, 2")
A("s_cselect_b32 s55, 0, 0x%x" % HUGE)
A("s_waitcnt vmcnt(0)")
bump(M_C23, 4)
A("s_mov_b32 s58, 0x%x" % HFLAG)
ST.stamp()
A("s_cmp_eq_u32 s62, 3")
A("s_cbranch_scc0 G_HW")
if OL:
    gpoll(5, "s58", 6, 2, "s61", opt("hsleep", 8))
    A("v_cmp_ne_u32 vcc, s63, v7")
    A("v_cmp_ne_u32 s[64:65], s61, v6")
    A("s_or_b64 vcc, vcc, s[64:65]")
    A("s_and_b32 s30, vcc_lo, 0xff")
    A("s_cselect_b32 s30, 0, %d" % (0 if opt("noloc", 0) else 1))
    A("v_mov_b32 v4, s30")
    A("ds_write_b32 v3, v4 offset:%d" % (M_LOC - MISC))
else:
    gpoll(5, "s58", 4, 1, "s61", opt("hsleep", 8))
bump(M_HOK, 4)
A("G_HW:")
spin(M_HOK, 1, 4, 4)
ST.stamp()
NST, SB, NI = 6, 68, 22
def loads(i):
    st = SB + (i % NST) * 16
    if i == NI - 1: A("s_add_u32 s54, s54, s55")
    for q in range(4):
        A.vmem("buffer_load_dwordx4 %s, v%d, s[36:39], s54 offen @LD" % (v(st + 4 * q, 4), 164 + q), "L%d" % i)
    if i < NI - 1: A("s_add_u32 s54, s54, 4096")
if opt("gp2", 3) != 3: A("s_setprio %d" % opt("gp2", 3))
if opt("nof2", 0): mfma = lambda *a: "s_nop 0"
for i in range(NST): loads(i)
for i in range(NI):
    st = SB + (i % NST) * 16
    A.wait_vm("L%d" % i)
    for a in range(2):
        for b in range(2):
            A(mfma(ACC[a][b], st + 4 * a, st + 8 + 4 * b, "0" if i == 0 else None))
            if opt("pace2", 0): A("s_nop %d" % opt("pace2", 0))
    if i + NST < NI: loads(i + NST)
mfma = _mf
if opt("gp2", 3) != 3: A("s_setprio %d" % opt("gp3", 3))
if OL:
    WR, OR_ = 68, 104
    fr = [(i, a) for i in range(8) for a in range(2)]
    hoff = lambda i: (i & 3) * 8192 + (i >> 2) * 2048
    A("s_lshr_b32 s54, s62, 1")
    A("s_lshl_b32 s54, s54, 12")
    A("s_and_b32 s56, s62, 1")
    A("s_lshl_b32 s56, s56, 10")
    A("s_add_u32 s54, s54, s56")
    A("s_add_u32 s40, s54, %d" % (86 * 1024))
    for i in range(1, 4): A("s_add_u32 s%d, s40, %d" % (40 + i, 8192 * i))
    A("s_mul_i32 s56, s62, 7168")
    A("s_add_u32 s56, s56, %d" % Z0)
    for n, (i, a) in enumerate(fr):
        if n < 9:
            A("buffer_load_dwordx4 %s, v%d, s[36:39], s%d offen offset:%d @LD" % (v(WR + 4 * n, 4), 164 + a, 40 + (i & 3), (i >> 2) * 2048))
        else:
            A("s_add_u32 m0, s56, 0x%x" % (((n - 9) * 1024 - 2048) & 0xffffffff))
            A("s_nop 0")
            A("buffer_load_dwordx4 v%d, s[36:39], s%d offen offset:2048 @LD lds" % (164 + a, 40 + (i & 3)))
    for i in range(4): A("s_add_u32 s%d, s%d, s53" % (44 + i, 40 + i))
    if OL == 4:
        for i in range(4): A("s_add_u32 s%d, s%d, %d" % (48 + i, 44 + i, NKS * 1024))
        def oload(i):
            for t in range(2):
                A.vmem("buffer_load_dwordx4 %s, v2, s[36:39], s%d offen offset:%d sc1" % (v(OR_ + 8 * i + 4 * t, 4), 44 + 4 * t + (i & 3), (i >> 2) * 2048), "o%d" % i)
        def ocheck(i):
            r = OR_ + 8 * i
            A("v_max3_u32 v0, v%d, v%d, v%d" % (r, r + 1, r + 2))
            A("v_max3_u32 v0, v%d, v%d, v0" % (r + 3, r + 4))
            A("v_max3_u32 v0, v%d, v%d, v0" % (r + 5, r + 6))
            A("v_max_u32 v0, v%d, v0" % (r + 7))
            A("v_cmp_eq_u32 vcc, -1, v0")
        A("s_mov_b32 s58, 0x8000")
        A("s_mov_b32 s57, 0xff")
        A("s_mov_b32 s59, 0")
        A("v_add_u32 v1, s56, v2")
        ST.stamp()
        spin(M_O, opt("ow", 4), 0, opt("ows", 2))
        A.wait_vm0()
        ST.stamp()
        for i in range(4): oload(i)
        spin(M_O, opt("ow2", 8), 0, 1)
        if opt("od", 0): A("s_sleep %d" % opt("od", 0))
        if opt("ors", 0): ST.stamp(slot=15); ST.n = 8
        for i in range(4, 8): oload(i)
        A.wait_vm("o0")
        ocheck(0)
        A("s_cbranch_vccz G_OV0")
        A("G_OREF:")
        A("s_sub_u32 s58, s58, 1")
        if not opt("onb", 0): A("s_waitcnt vmcnt(0)")
        A("s_cbranch_scc1 G_OEND")
        vm_s = list(A.vm)
        A("s_and_b32 s30, s57, 15")
        A("s_cbranch_scc0 G_ORN3")
        for i in range(8):
            A("s_bitcmp1_b32 s57, %d" % i)
            A("s_cbranch_scc0 G_ORN%d" % i)
            if opt("onb", 0): A("s_waitcnt vmcnt(%d)" % (2 * (7 - i) + 2))
            ocheck(i)
            A("s_bitset0_b32 s57, %d" % i)
            A("s_cbranch_vccz G_ORN%d" % i)
            A("s_bitset1_b32 s57, %d" % i)
            oload(i)
            A("G_ORN%d:" % i)
        A.vm = vm_s
        A("s_bitcmp1_b32 s57, s59")
        if opt("onb", 0) and "oth" in OPT:
            A("s_cbranch_scc0 G_ODIS")
            A("s_waitcnt vmcnt(%d)" % opt("oth", 0))
            A("s_branch G_OREF")
            A("G_ODIS:")
        else: A("s_cbranch_scc1 G_OREF")
        for i in range(7, 0, -1):
            A("s_cmp_eq_u32 s59, %d" % i)
            A("s_cbranch_scc1 G_OV%d" % i)
        wreg = {fr[n]: WR + 4 * n for n in range(9)}
        nxt = 9
        for i in range(8):
            A("G_OV%d:" % i)
            ex = [[], [], [], []]
            if i == 7:
                A("G_OEND:")
                ex = [["v_lshrrev_b32 v0, 4, v2", "ds_read_b32 v1, v3 offset:%d" % (M_O - MISC), "v_and_b32 v2, 31, v0", "s_nop 0"],
                      ["v_mul_u32_u24 v2, 272, v2", "v_lshrrev_b32 v0, 5, v0", "s_mul_i32 s52, s62, %d" % PW, "v_lshl_add_u32 v2, v0, 4, v2"],
                      ["v_add_u32 v2, s52, v2", "s_waitcnt lgkmcnt(0)", "v_readfirstlane_b32 s30, v1", "s_cmp_ge_u32 s30, 8"], ["s_cbranch_scc1 G_OW"]]
            else:
                ex[0] = ["s_bitset0_b32 s57, %d" % i, "s_mov_b32 s59, %d" % (i + 1), "s_mov_b64 vcc, 0", "s_bitcmp1_b32 s57, %d" % (i + 1)]
            if A.has_lg("w%d" % i): A.wait_lg("w%d" % i)
            if opt("ors", 0): ST.stamp(slot=(1, 2, 3, 4, 10, 11, 12, 14)[i]); ST.n = 8
            for a in range(2):
                for t in range(2):
                    A(mfma(ACC[a][t], wreg[(i, a)], OR_ + 8 * i + 4 * t))
                    for l in ex[2 * a + t]: A(l)
                    if t == 1 and nxt < 16:
                        wreg[fr[nxt]] = wreg[(i, a)]
                        A.lds("ds_read_b128 %s, v1 offset:%d" % (v(wreg[(i, a)], 4), (nxt - 9) * 1024), "w%d" % fr[nxt][0])
                        nxt += 1
                    if i < 7 and 2 * a + t == opt("cpos", 2):
                        A("s_cbranch_scc0 G_OK%d" % i)
                        A.wait_vm("o%d" % (i + 1))
                        ocheck(i + 1)
                        A("G_OK%d:" % i)
            if i < 7: A("s_cbranch_vccnz G_OREF")
        spin(M_O, 8, 1)
        A("G_OW:")
        A.vm = []; A.lg = []
        if STAMP: A("s_sub_u32 s96, 0x8000, s58")
    elif OL == 3:
        for i in range(4): A("s_add_u32 s%d, s%d, %d" % (48 + i, 44 + i, NKS * 1024))
        def oload(i):
            for t in range(2):
                A("buffer_load_dwordx4 %s, v2, s[36:39], s%d offen offset:%d sc1" % (v(OR_ + 8 * i + 4 * t, 4), 44 + 4 * t + (i & 3), (i >> 2) * 2048))
        if opt("oinit", 0):
            A("s_waitcnt vmcnt(0)")
            for i in range(32): A("v_mov_b64 %s, -1" % v(OR_ + 2 * i, 2))
        else:
            for i in range(8): oload(i)
        A("s_mov_b32 s58, 0x8000")
        A("v_add_u32 v1, s56, v2")
        ST.stamp()
        wreg = {fr[n]: WR + 4 * n for n in range(9)}
        nxt = 9
        for h_ in range(2):
            keep = list(A.lg)
            spin(M_O, opt("ow", 3) if h_ == 0 else opt("ow2", 6), 0, opt("ows", 2))
            if h_ == 0:
                A("s_waitcnt vmcnt(0)")
                ST.stamp()
            A("s_mov_b32 s57, 0x%x" % (0xf << (4 * h_)))
            A("s_mov_b32 s59, %d" % (4 * h_))
            A("G_OS%d:" % h_)
            A("s_sub_u32 s58, s58, 1")
            if opt("osync", 0): A("s_waitcnt vmcnt(0)")
            A("s_cbranch_scc1 G_OEND")
            if opt("osleep", 0): A("s_sleep %d" % opt("osleep", 0))
            for i in range(4 * h_, 4 * h_ + 4):
                r = OR_ + 8 * i
                A("s_bitcmp1_b32 s57, %d" % i)
                A("s_cbranch_scc0 G_ON%d" % i)
                A("v_cmp_eq_u32 vcc, -1, v%d" % (r + 7))
                A("s_cbranch_vccnz G_OR%d" % i)
                A("v_max3_u32 v0, v%d, v%d, v%d" % (r, r + 1, r + 2))
                A("v_max3_u32 v0, v%d, v%d, v0" % (r + 3, r + 4))
                A("v_max3_u32 v0, v%d, v%d, v0" % (r + 5, r + 6))
                A("v_cmp_eq_u32 vcc, -1, v0")
                A("s_bitset0_b32 s57, %d" % i)
                A("s_cbranch_vccz G_ON%d" % i)
                A("s_bitset1_b32 s57, %d" % i)
                A("G_OR%d:" % i)
                A("s_waitcnt vmcnt(%d)" % opt("oth", 14))
                oload(i)
                A("G_ON%d:" % i)
            A("s_bitcmp1_b32 s57, s59")
            A("s_cbranch_scc1 G_OS%d" % h_)
            for i in range(4 * h_ + 3, 4 * h_, -1):
                A("s_cmp_eq_u32 s59, %d" % i)
                A("s_cbranch_scc1 G_OV%d" % i)
            for i in range(4 * h_, 4 * h_ + 4):
                A("G_OV%d:" % i)
                ex = [[], [], [], []]
                if i == 7:
                    A("G_OEND:")
                    ex = [["v_lshrrev_b32 v0, 4, v2", "ds_read_b32 v1, v3 offset:%d" % (M_O - MISC), "v_and_b32 v2, 31, v0", "s_nop 0"],
                          ["v_mul_u32_u24 v2, 272, v2", "v_lshrrev_b32 v0, 5, v0", "s_mul_i32 s52, s62, %d" % PW, "v_lshl_add_u32 v2, v0, 4, v2"],
                          ["v_add_u32 v2, s52, v2", "s_waitcnt lgkmcnt(0)", "v_readfirstlane_b32 s30, v1", "s_cmp_ge_u32 s30, 8"], ["s_cbranch_scc1 G_OW"]]
                elif i != 3:
                    ex[2] = ["s_mov_b32 s59, %d" % (i + 1), "s_bitcmp1_b32 s57, %d" % (i + 1) if opt("osync", 0) else "s_cmp_lg_u32 s57, 0"]
                if A.has_lg("w%d" % i): A.wait_lg("w%d" % i)
                for a in range(2):
                    for t in range(2):
                        A(mfma(ACC[a][t], wreg[(i, a)], OR_ + 8 * i + 4 * t))
                        for l in ex[2 * a + t]: A(l)
                for a in range(2):
                    if nxt < 16:
                        wreg[fr[nxt]] = wreg[(i, a)]
                        A.lds("ds_read_b128 %s, v1 offset:%d" % (v(wreg[(i, a)], 4), (nxt - 9) * 1024), "w%d" % fr[nxt][0])
                        nxt += 1
                if i not in (3, 7): A("s_cbranch_scc1 G_OS%d" % h_)
        spin(M_O, 8, 1)
        A("G_OW:")
        A.vm = []; A.lg = []
        if STAMP: A("s_sub_u32 s96, 0x8000, s58")
    elif OL == 2:
        for i in range(4): A("s_add_u32 s%d, s%d, %d" % (48 + i, 44 + i, NKS * 1024))
        A("v_and_b32 v0, 3, v1")
        A("v_lshlrev_b32 v0, 13, v0")
        A("v_bfe_u32 v104, v1, 2, 1")
        A("v_lshl_add_u32 v0, v104, 11, v0")
        A("v_bfe_u32 v104, v1, 3, 1")
        A("v_mul_u32_u24 v104, %d, v104" % (NKS * 1024))
        A("v_add3_u32 v1, v0, v104, %d" % opt("po", 60))
        A("s_mov_b32 s57, 0")
        A("s_mov_b32 s60, 0")
        A("s_mov_b32 s58, 0x8000")
        ST.stamp()
        spin(M_O, opt("ow", 8), 0, 4)
        A("s_waitcnt vmcnt(0)")
        A("v_add_u32 v3, s56, v2")
        ST.stamp()
        def oload(i):
            for t in range(2):
                A("buffer_load_dwordx4 %s, v2, s[36:39], s%d offen offset:%d sc1" % (v(OR_ + 8 * i + 4 * t, 4), 44 + 4 * t + (i & 3), (i >> 2) * 2048))
        A("s_branch G_OB0")
        A("G_OG:")
        A("s_sub_u32 s58, s58, 1")
        A("s_waitcnt vmcnt(0)")
        A("s_cbranch_scc0 G_ODIS")
        A("s_branch G_OEND")
        A("G_OF:")
        A("s_mov_b32 s60, s57")
        A("s_cmp_eq_u32 s57, 0xff")
        A("s_cbranch_scc1 G_OG")
        A("s_mov_b64 exec, 0xffff")
        A("buffer_load_dword v0, v1, s[36:39], s44 offen offset:960 sc1")
        A("s_sub_u32 s58, s58, 1")
        if opt("osleep", 0): A("s_sleep %d" % opt("osleep", 0))
        A("s_waitcnt vmcnt(0)")
        A("s_cbranch_scc1 G_OEND")
        A("v_cmp_ne_u32 vcc, -1, v0")
        A("s_mov_b64 exec, -1")
        A("s_lshr_b32 s30, vcc_lo, 8")
        A("s_and_b32 s30, s30, vcc_lo")
        A("s_andn2_b32 s30, s30, s57")
        A("s_cbranch_scc0 G_ODIS")
        A("s_or_b32 s57, s57, s30")
        for i in range(1, 8):
            A("s_bitcmp1_b32 s30, %d" % i)
            A("s_cbranch_scc0 G_ORN%d" % i)
            oload(i)
            A("G_ORN%d:" % i)
        A("G_ODIS:")
        if opt("ors", 0):
            for n_, sl in enumerate((1, 2, 3, 4, 10, 11, 12, 14)):
                A("s_cmp_eq_u32 s58, 0x%x" % (0x7fff - n_))
                A("s_cbranch_scc0 G_OS%d" % n_)
                ST.stamp(slot=sl)
                A("s_lshl_b32 s31, s57, 8")
                A("s_or_b32 s31, s31, s59")
                A("s_waitcnt lgkmcnt(0)")
                A("s_and_b32 s%d, s%d, 0xffff" % (70 + 2 * sl, 70 + 2 * sl))
                A("s_lshl_b32 s31, s31, 16")
                A("s_or_b32 s%d, s%d, s31" % (70 + 2 * sl, 70 + 2 * sl))
                A("G_OS%d:" % n_)
            ST.n = 8
        for i in range(7, 0, -1):
            A("s_cmp_eq_u32 s59, %d" % i)
            A("s_cbranch_scc1 G_OC%d" % i)
        A("s_branch G_OC0")
        wreg = {fr[n]: WR + 4 * n for n in range(9)}
        nxt = 9
        for i in range(8):
            r = OR_ + 8 * i
            A("G_ON%d:" % i)
            A("s_bitcmp1_b32 s57, %d" % i)
            A("s_cbranch_scc1 G_OF")
            A("s_bitset1_b32 s57, %d" % i)
            A("G_OM%d:" % i)
            oload(i)
            A("s_branch G_OF")
            A("G_OB%d:" % i)
            A("s_mov_b32 s59, %d" % i)
            A("s_bitcmp1_b32 s60, %d" % i)
            A("s_cbranch_scc0 G_ON%d" % i)
            A("G_OC%d:" % i)
            A("v_max3_u32 v0, v%d, v%d, v%d" % (r, r + 3, r + 7))
            A("v_cmp_eq_u32 vcc, -1, v0")
            A("v_max3_u32 v0, v%d, v%d, v%d" % (r + 1, r + 2, r + 4))
            A("s_cbranch_vccnz G_OM%d" % i)
            A("v_max3_u32 v0, v%d, v%d, v0" % (r + 5, r + 6))
            A("v_cmp_eq_u32 vcc, -1, v0")
            A("s_cbranch_vccnz G_OM%d" % i)
            ex = [[], [], [], []]
            if i == 7:
                A("G_OEND:")
                A("s_mov_b64 exec, -1")
                ex = [["v_mov_b32 v3, %d" % MISC, "v_lshrrev_b32 v0, 4, v2", "ds_read_b32 v1, v3 offset:%d" % (M_O - MISC), "v_and_b32 v2, 31, v0"],
                      ["v_mul_u32_u24 v2, 272, v2", "v_lshrrev_b32 v0, 5, v0", "s_mul_i32 s52, s62, %d" % PW, "v_lshl_add_u32 v2, v0, 4, v2"],
                      ["v_add_u32 v2, s52, v2", "s_waitcnt lgkmcnt(0)", "v_readfirstlane_b32 s30, v1", "s_cmp_ge_u32 s30, 8"], ["s_cbranch_scc1 G_OW"]]
            if A.has_lg("w%d" % i): A.wait_lg("w%d" % i)
            for a in range(2):
                for t in range(2):
                    A(mfma(ACC[a][t], wreg[(i, a)], OR_ + 8 * i + 4 * t))
                    for l in ex[2 * a + t]: A(l)
            for a in range(2):
                if nxt < 16:
                    wreg[fr[nxt]] = wreg[(i, a)]
                    A.lds("ds_read_b128 %s, v3 offset:%d" % (v(wreg[(i, a)], 4), (nxt - 9) * 1024), "w%d" % fr[nxt][0])
                    nxt += 1
            if i < 7: A("s_branch G_OB%d" % (i + 1))
        spin(M_O, 8, 1)
        A("G_OW:")
        A.vm = []; A.lg = []
        if STAMP: A("s_sub_u32 s96, 0x8000, s58")
    else:
        A("v_add_u32 v1, %d, v2" % (NKS * 1024))
        A("s_mov_b32 s57, 0xff")
        A("s_mov_b32 s58, 0x2000")
        ST.stamp()
        spin(M_O, opt("ow", 8), 0, 4)
        A("s_waitcnt vmcnt(0)")
        A("v_add_u32 v3, s56, v2")
        ST.stamp()
        def oload(i, tag=None):
            for t in range(2):
                A.vmem("buffer_load_dwordx4 %s, v%d, s[36:39], s%d offen offset:%d sc1" % (v(OR_ + 8 * i + 4 * t, 4), 2 - t, 44 + (i & 3), (i >> 2) * 2048), tag)
        def ocheck(i):
            r = OR_ + 8 * i
            A("v_max3_u32 v0, v%d, v%d, v%d" % (r, r + 1, r + 2))
            A("v_max3_u32 v0, v%d, v%d, v0" % (r + 3, r + 4))
            A("v_max3_u32 v0, v%d, v%d, v0" % (r + 5, r + 6))
            A("v_max_u32 v0, v%d, v0" % (r + 7))
            A("v_cmp_eq_u32 vcc, -1, v0")
        for i in range(8): oload(i, "o%d" % i)
        A("s_branch G_OB0")
        A("G_OREF:")
        A("s_waitcnt vmcnt(0)")
        A("s_sub_u32 s58, s58, 1")
        A("s_cselect_b32 s57, 0, s57")
        vm_s = list(A.vm)
        for i in range(8):
            A("s_bitcmp1_b32 s57, %d" % i)
            A("s_cbranch_scc0 G_ORN%d" % i)
            ocheck(i)
            A("s_bitset0_b32 s57, %d" % i)
            A("s_cbranch_vccz G_ORN%d" % i)
            A("s_bitset1_b32 s57, %d" % i)
            oload(i)
            A("G_ORN%d:" % i)
        A.vm = vm_s
        A("s_bitcmp1_b32 s57, s59")
        if opt("osleep", 0):
            A("s_cbranch_scc0 G_ODIS")
            A("s_sleep %d" % opt("osleep", 0))
            A("s_branch G_OREF")
            A("G_ODIS:")
        else:
            A("s_cbranch_scc1 G_OREF")
        for i in range(7, 0, -1):
            A("s_cmp_eq_u32 s59, %d" % i)
            A("s_cbranch_scc1 G_OV%d" % i)
        A("s_branch G_OV0")
        wreg = {fr[n]: WR + 4 * n for n in range(9)}
        nxt = 9
        for i in range(8):
            A("G_OB%d:" % i)
            A("s_bitcmp1_b32 s57, %d" % i)
            A("s_cbranch_scc0 G_OV%d" % i)
            A.wait_vm("o%d" % i)
            ocheck(i)
            A("s_mov_b32 s59, %d" % i)
            A("s_cbranch_vccnz G_OREF")
            A("s_bitset0_b32 s57, %d" % i)
            A("G_OV%d:" % i)
            if A.has_lg("w%d" % i): A.wait_lg("w%d" % i)
            for a in range(2):
                for t in range(2):
                    A(mfma(ACC[a][t], wreg[(i, a)], OR_ + 8 * i + 4 * t))
            for a in range(2):
                if nxt < 16:
                    wreg[fr[nxt]] = wreg[(i, a)]
                    A.lds("ds_read_b128 %s, v3 offset:%d" % (v(wreg[(i, a)], 4), (nxt - 9) * 1024), "w%d" % fr[nxt][0])
                    nxt += 1
        A.vm = []; A.lg = []
        if STAMP: A("s_sub_u32 s96, 0x2000, s58")
if not OL:
    A("s_lshl_b32 s54, s62, 13")
    A("s_add_u32 s54, s54, %d" % (86 * 1024))
    WR, OR_ = 68, 104
    fr = [(i, a) for i in range(8) for a in range(2)]
    for n, (i, a) in enumerate(fr[:9]):
        if i == 4: A("s_add_u32 s54, s54, 4096")
        A("buffer_load_dwordx4 %s, v%d, s[36:39], s54 offen offset:%d @LD" % (v(WR + 4 * n, 4), 164 + a, (i & 3) * 1024))
    A("s_mul_i32 s56, s62, 7168")
    A("s_add_u32 s56, s56, %d" % Z0)
    for n, (i, a) in enumerate(fr[9:]):
        A("s_add_u32 m0, s56, 0x%x" % (((n - (i & 3)) * 1024) & 0xffffffff))
        A("s_nop 0")
        A("buffer_load_dwordx4 v%d, s[36:39], s54 offen offset:%d @LD lds" % (164 + a, (i & 3) * 1024))
    ST.stamp()
    spin(M_O, opt("ow", 8), 0, 4)
    A("v_add_u32 v3, s56, v2")
    A("v_and_b32 v0, 15, v1")
    A("v_lshlrev_b32 v0, %d, v0" % OS)
    A("s_lshl_b32 s57, s26, %d" % (6 + OS))
    A("s_lshl_b32 s58, s62, %d" % (4 + OS))
    A("s_add_u32 s58, s58, s57")
    A("s_add_u32 s58, s58, 0x%x" % OFLAG)
    A("s_lshl_b32 s54, s62, 13")
    A("s_add_u32 s54, s54, s53")
    A("s_add_u32 s54, s54, %d" % (86 * 1024))
    A("s_add_u32 s55, s54, %d" % (NKS * 1024))
    A("s_add_u32 s56, s54, 4096")
    A("s_add_u32 s57, s55, 4096")
    gpoll(0, "s58", 1, 1, "s61", opt("osleep", 2))
    ST.stamp()
    for i in range(8):
        for t in range(2):
            A.vmem("buffer_load_dwordx4 %s, v2, s[36:39], s%d offen offset:%d @LD" % (v(OR_ + 8 * i + 4 * t, 4), 54 + t + 2 * (i >> 2), (i & 3) * 1024), "o%d" % i)
    wreg = {fr[n]: WR + 4 * n for n in range(9)}
    nxt = 9
    for i in range(8):
        A.wait_vm("o%d" % i)
        if A.has_lg("w%d" % i): A.wait_lg("w%d" % i)
        for a in range(2):
            for t in range(2):
                A(mfma(ACC[a][t], wreg[(i, a)], OR_ + 8 * i + 4 * t))
        for a in range(2):
            if nxt < 16:
                wreg[fr[nxt]] = wreg[(i, a)]
                A.lds("ds_read_b128 %s, v3 offset:%d" % (v(wreg[(i, a)], 4), (nxt - 9) * 1024), "w%d" % fr[nxt][0])
                nxt += 1
if OL >= 2:
    ST.stamp()
else:
    A("v_lshrrev_b32 v0, 4, v2")
    A("v_and_b32 v1, 31, v0")
    A("v_mul_u32_u24 v1, 272, v1")
    A("v_lshrrev_b32 v0, 5, v0")
    A("v_lshl_add_u32 v1, v0, 4, v1")
    A("s_mul_i32 s52, s62, %d" % PW)
    A("v_add_u32 v1, s52, v1")
    ST.stamp()
    A("s_barrier")
    A("s_nop 4")
for a in range(2):
    for b in range(2):
        for q in range(4):
            A("ds_write_b128 v%d, %s offset:%d" % (2 if OL >= 2 else 1, v(ACC[a][b] + 4 * q, 4), b * 8704 + a * 128 + q * 32))
A("s_waitcnt lgkmcnt(0)")
A("s_barrier")
A("s_cmp_eq_u32 s2, 0")
A("s_cselect_b32 s52, s62, 0")
A("s_cmp_eq_u32 s52, 3")
A("s_cbranch_scc0 G_END")
A("s_mov_b32 s52, 0x%x" % EPOCH)
flag_store("s52", "s61", 4)
A("G_END:")
A("s_waitcnt vmcnt(0)")
ST.stamp()
if STAMP:
    ST.flush(36, STOFF, 28, 4, nwaves=12)
A("DONE:")
A("s_endpgm")


import subprocess, re
def render(lines):
    out = HEADER + "; @launch grid=(256,1,1) block=(768,1,1) lds=%d\n" % LDS_BYTES
    out += ("\n".join(lines) + "\n").replace(" @LD", " sc1" if opt("ldsc", 0) else "")
    out += '.section .rodata,"a"\n' + kd(NAME, 168)
    return out
def is_insn(l): return l.startswith("    ") and not l.strip().startswith(";") and not l.strip().startswith("@")
def addresses(lines):
    tmp = []
    for i, l in enumerate(lines):
        if l.strip().startswith("@"): continue
        if is_insn(l): tmp.append("ZZ%d:" % i)
        tmp.append(l)
    open("_p.s", "w").write(render(tmp))
    r = subprocess.run(["clang", "-x", "assembler", "-target", "amdgcn-amd-amdhsa", "-mcpu=gfx950", "-c", "_p.s", "-o", "_p.o"], capture_output=True, text=True)
    assert r.returncode == 0, r.stderr[:3000]
    o = subprocess.run(["llvm-readelf", "-s", "-W", "_p.o"], capture_output=True, text=True).stdout
    return {int(m.group(2)): int(m.group(1), 16) for m in re.finditer(r"^\s*\d+: ([0-9a-f]+) .* ZZ(\d+)$", o, re.M)}
lines = list(A.lines)
WSP = opt("warm", 0)
if WSP:
    ad = addresses(lines)
    lab = {l[:-1]: i for i, l in enumerate(lines) if l.endswith(":")}
    nxt = lambda i: min(k for k in ad if k >= i)
    forced = [nxt(lab[n]) for n in ("G_START", "G3_START", "G_JOIN")]
    lo, hi = lab["A_LOOP"] - 2, lines.index("    @LOOPEND")
    pads, last = [], opt("warm0", 256)
    idx = sorted(ad)
    for n, i in enumerate(idx):
        a_ = ad[i]
        if i in forced: pads.append(i); last = a_; continue
        if lo <= i <= hi: continue
        nx = [k for k in idx[n + 1:n + 200] if not lo <= k <= hi]
        if nx and ad[nx[0]] - last > WSP and i > lines.index("    @W0"):
            pads.append(i); last = a_
    reg = lambda i: "A" if i < lab["G_START"] else "G" if i < lab["G3_START"] else "K" if i < lab["G_JOIN"] else "J"
    by = {r_: [i for i in pads if reg(i) == r_] for r_ in "AGKJ"}
    na = len([i for i in by["A"] if i < lab["A_LOOP"]])
    order = by["A"][:na] + by["K"][1:] + by["G"][1:]
    ph1 = {8: [by["G"][0]], 11: [by["K"][0]]}
    for w in (0, 1, 2, 3, 4, 5, 9, 10, 6, 7): ph1[w] = [order.pop(0)]
    n2 = opt("wn2", 0)
    late = by["J"] + by["A"][na:]
    order += late[:n2]
    ph2 = {w: [] for w in (8, 9, 10)}
    for n, i in enumerate(order): ph2[8 + n % 3].append(i)
    ph3 = {11: late[n2:]}
    tgt = {}
    for ph, ret in ((ph1, "WRET1"), (ph2, "WRET2"), (ph3, "WRET3")):
        for w, ch in ph.items():
            for n, i in enumerate(ch): tgt[i] = "WP%d" % ch[n + 1] if n + 1 < len(ch) else ret
    def disp(ph, ret, ws):
        o = ["    s_mov_b64 exec, 0"]
        for w in ws:
            if ph.get(w): o += ["    s_cmp_eq_u32 s28, %d" % w, "    s_cbranch_scc1 WP%d" % ph[w][0]]
        return o + ["%s:" % ret, "    s_mov_b64 exec, -1"]
    new = []
    for i, l in enumerate(lines):
        if l == "    @WARM1": new += disp(ph1, "WRET1", (11, 8, 0, 1, 2, 3, 4, 5, 9, 10, 6, 7)); continue
        if l == "    @WARM2": new += disp(ph2, "WRET2", (8, 9, 10)); continue
        if l == "    @WARM3": new += disp(ph3, "WRET3", (11,)); continue
        if l in ("    @W0", "    @LOOPEND"): continue
        if i in tgt: new += ["WP%d:" % i, "    s_cbranch_execz %s" % tgt[i]]
        new.append(l)
    lines = new
    print("pads", [(reg(i), hex(ad[i])) for i in pads])
    print("ph1", {w: [hex(ad[i]) for i in c] for w, c in ph1.items()}, "ph2", {w: [hex(ad[i]) for i in c] for w, c in ph2.items()}, "ph3", {w: [hex(ad[i]) for i in c] for w, c in ph3.items()})
else:
    lines = [l for l in lines if not l.strip().startswith("@")]
open(sys.argv[1], "w").write(render(lines))
```

```python
import sys, struct
from asmlib import *
def f2u(x): return struct.unpack("<I", struct.pack("<f", x))[0]

OPT = dict(a.split("=") if "=" in a else (a, "1") for a in sys.argv[2:])
STAMP = "stamp" in OPT
def opt(k, d): return type(d)(OPT.get(k, d))

NAME = "parallel_sum__grouped_kv_mqa__dense_activation_relu__prompt_kernel"
KS, HS, OS = opt("ks", 7), opt("hs", 7), opt("os", 7)
EPOCH, KVFLAG, HFLAG, OFLAG = 0x0, 0xC00000, 0xB80000, 0xB00000
KR = opt("kr", 1)
KVF, AF, WT, STOFF = 0x10000, 0x100000, 0x900000, 0xE00000
KVL = 0x40000
LLP = opt('llp', 1)
LLT = opt("llt", 2)
WS_BYTES = 0x2000000 if "dumpxn" in OPT else 0x1000000
NKS = 118
HUGE = 0x7f000000
Y0, X0, Z0 = 0, 65536, 131072
NSLOT = 5
RING = NSLOT * 2048
MISC = Z0 + 3 * RING
M_W, M_Q, M_X, M_C0, M_C1, M_C23, M_F1, M_H, M_TAG, M_KV, M_HOK, M_O, M_QH, M_LOC, M_F1H, M_C2 = [MISC + 4 * i for i in range(16)]
EC = opt('ec', 0)
BAL = opt('bal', 0)
OL = opt('ol', 0)
M_ST = MISC + 64
M_F = [MISC + 576 + 4 * i for i in range(4)]
M_XN = MISC + 592
M_T = MISC + 596
TF = opt("tf", 0)
TFLAG = 0xB40000
RAW = opt("raw", 0)
GXL = opt("gxl", 1)
ALL = opt("np", 12) == 32 and not RAW
FT = [11, 3, 11, 12] if RAW else [11, 3, 3, 3] if ALL else [12, 3, 11, 11]
WIMG = Z0 if RAW else X0 + 16384
XL = opt("xl2", 0)
assert not (XL and RAW) and (EC or not XL)
def xo(blk, t=0):
    return (blk >> 4) * 32768 + t * 16384 + (blk & 15) * 1024 if XL else blk * 1024 + t * 32768
LDS_BYTES = 163840
PW = 17408
SC = " sc1"

A = Asm()
A('.amdgcn_target "amdgcn-amd-amdhsa--gfx950"')
A(".text")
kernel_begin(A, NAME)
A("s_cmp_ge_u32 s2, 256")
A("s_cbranch_scc1 DONE")
ST = Stamps2(A, STAMP)
CK = opt("ck", 0)
if CK:
    _st = ST.stamp
    ST.stamp = lambda *a, **k: None
def ck(k):
    if CK:
        _st(slot=2 * k); _st(cy=True, slot=2 * k + 1)
ST.stamp()
ck(0)
A("s_load_dwordx16 s[4:19], s[0:1], 0")
A("s_load_dwordx4 s[20:23], s[0:1], 64")
A("s_load_dwordx2 s[24:25], s[0:1], 80")
A("s_and_b32 s26, s2, 7")
A("s_lshl_b32 s26, s26, 2")
A("s_lshr_b32 s27, s2, 3")
A("s_and_b32 s27, s27, 3")
A("s_add_u32 s26, s26, s27")
A("s_lshr_b32 s27, s2, 5")
if opt("jx", 0): A("s_xor_b32 s27, s27, %d" % opt("jx", 0))
A("v_lshrrev_b32 v1, 6, v0")
A("v_mov_b32 v3, %d" % MISC)
A("v_readfirstlane_b32 s28, v1")
A("v_and_b32 v1, 63, v0")
A("v_lshlrev_b32 v2, 4, v1")
A("s_lshl_b32 s29, s26, 3")
A("s_add_u32 s29, s29, s27")
A("v_lshrrev_b32 v4, 3, v1")
A("v_and_b32 v5, 7, v1")
A("v_lshlrev_b32 v6, 10, v4")
A("v_lshl_add_u32 v124, v5, 4, v6")
A("s_lshl_b32 s48, s26, 16")
A("s_lshl_b32 s49, s28, 13")
A("s_add_u32 s48, s48, s49")
KROT = opt("krot", 1)
A("s_lshl_b32 s49, s26, 5" if KROT else "s_mov_b32 s49, 0")
A("s_and_b32 s50, s49, 0x60")
A("v_xor_b32 v100, s50, v124")
A("s_and_b32 s49, s49, 0x380")
A("s_or_b32 s49, s49, s48")
A("s_cmp_eq_u32 s28, 11")
A("s_cbranch_scc0 NOINIT")
for i in range(4): A("v_mov_b32 v%d, 0" % (4 + i))
A("v_add_u32 v8, %d, v2" % MISC)
A("ds_write_b128 v8, v[4:7]")
A("NOINIT:")
A("@WARM1")
A("s_waitcnt lgkmcnt(0)")
ST.stamp(slot=9); ST.n = 1
srd(A, 32, 4, 2048 * 1024)
srd(A, 36, 24, WS_BYTES)
A("s_cmp_ge_u32 s28, 8")
A("s_cbranch_scc1 G_START")

def spin(word, val, tv, sleep=1):
    L = A.label("SP")
    A("s_mov_b32 s31, 0x40000")
    A("%s:" % L)
    A("ds_read_b32 v%d, v3 offset:%d" % (tv, word - MISC))
    A("s_sub_u32 s31, s31, 1")
    A("s_waitcnt lgkmcnt(0)")
    A("v_readfirstlane_b32 s30, v%d" % tv)
    A("s_cbranch_scc1 %s_X" % L)
    A("s_cmp_ge_u32 s30, %d" % val)
    A("s_cbranch_scc1 %s_X" % L)
    A("s_sleep %d" % sleep)
    A("s_branch %s" % L)
    A("%s_X:" % L)
    A.lg = []
def peek(word, tv, tag):
    A.lds("ds_read_b32 v%d, v3 offset:%d" % (tv, word - MISC), tag)
def gate(word, val, tv, tag):
    L = A.label("GT")
    if A.has_lg(tag): A.wait_lg(tag)
    A("v_readfirstlane_b32 s30, v%d" % tv)
    A("s_cmp_ge_u32 s30, %d" % val)
    A("s_cbranch_scc1 %s" % L)
    keep = list(A.lg)
    spin(word, val, tv)
    A.lg = keep
    A("%s:" % L)
def bump(word, tv):
    A("v_mov_b32 v%d, 1" % tv)
    A("s_mov_b64 exec, 1")
    A.lds("ds_add_u32 v3, v%d offset:%d" % (tv, word - MISC), "bump")
    A("s_mov_b64 exec, -1")
def gpoll(av, soff, tv, n, tag, sleep=2):
    L = A.label("GP")
    A("s_mov_b32 s31, 0x1000")
    A("%s:" % L)
    A("buffer_load_dword%s %s, v%d, s[36:39], %s offen sc1" % ("x%d" % n if n > 1 else "", v(tv, n), av, soff))
    A("s_sub_u32 s31, s31, 1")
    A("s_cbranch_scc1 %s_X" % L)
    A("s_waitcnt vmcnt(0)")
    if n == 4:
        for i in range(4): A("v_xor_b32 v%d, %s, v%d" % (tv + i, tag, tv + i))
        A("v_or3_b32 v%d, v%d, v%d, v%d" % (tv, tv, tv + 1, tv + 2))
        A("v_or_b32 v%d, v%d, v%d" % (tv, tv, tv + 3))
        A("v_cmp_ne_u32 vcc, 0, v%d" % tv)
    else:
        A("v_cmp_ne_u32 vcc, %s, v%d" % (tag, tv))
    A("s_cmp_eq_u64 vcc, 0")
    A("s_cbranch_scc1 %s_X" % L)
    A("s_sleep %d" % sleep)
    A("s_branch %s" % L)
    A("%s_X:" % L)
    A("s_waitcnt vmcnt(0)")
    A.vm = []
def read_tag(dst, tv):
    A("ds_read_b32 v%d, v3 offset:%d" % (tv, M_TAG - MISC))
    A("s_waitcnt lgkmcnt(0)")
    A("v_readfirstlane_b32 s%d, v%d" % (dst, tv))
    A.lg = []
def flag_store(soff, tag, tv):
    A("v_mov_b32 v%d, %s" % (tv, tag))
    A("v_mov_b32 v%d, 0" % (tv + 1))
    A("s_mov_b64 exec, 1")
    A("buffer_store_dword v%d, v%d, s[36:39], %s offen sc1" % (tv, tv + 1, soff))
    A("s_mov_b64 exec, -1")
def mfma16(d, a, b, c=None):
    cs = v(d, 4) if c is None else c
    return "v_mfma_f32_16x16x32_bf16 %s, %s, %s, %s" % (v(d, 4), v(a, 4), v(b, 4), cs)

X, F, T0, XR, NM, VXW = 128, 4, 112, 104 + 16, 164, 163
for i in range(8):
    if not KROT:
        A.vmem("buffer_load_dwordx4 %s, v124, s[32:35], s48 offen offset:%d" % (v(X + 4 * i, 4), 128 * i), "x%d" % i)
        continue
    if i: A("s_xor_b32 s50, s49, %d" % (128 * i))
    A.vmem("buffer_load_dwordx4 %s, v100, s[32:35], s%d offen" % (v(X + 4 * i, 4), 50 if i else 49), "x%d" % i)
srd(A, 44, 20, 2048 * 1024)
A("s_lshr_b32 s50, s28, 1")
A("s_lshr_b32 s51, s27, 1")
if opt("pa0", 0): A("s_setprio %d" % opt("pa0", 0))
A("s_cmp_eq_u32 s50, s51")
A("s_cbranch_scc0 A_NOPRIO")
A("s_setprio %d" % opt("pao", 2))
A("A_NOPRIO:")
A("s_lshl_b32 s51, s27, 7")
A("s_add_u32 s48, s48, s51")
if not opt("xl", 0): A.vmem("buffer_load_dwordx4 %s, v124, s[32:35], s48 offen" % v(XR, 4), "xr")
A("s_barrier")
A("@W0")
A("s_lshr_b32 s50, s28, 2")
A("s_lshl_b32 s50, s50, %d" % (14 if XL else 15))
A("s_add_u32 s50, s50, %d" % X0)
A("s_and_b32 s51, s28, 3")
A("s_lshl_b32 s51, s51, 7")
A("s_add_u32 s50, s50, s51")
A("v_xor_b32 v9, v4, v5")
A("v_lshlrev_b32 v9, 4, v9")
A("v_lshl_add_u32 v9, v5, 9, v9")
A("v_add_u32 v%d, s50, v9" % VXW)
A("s_lshl_b32 s50, s28, 6")
A("s_add_u32 s50, s50, %d" % M_ST)
A("v_lshlrev_b32 v10, 3, v4")
A("v_add_u32 v10, s50, v10")
A("v_lshrrev_b32 v12, 4, v1")
A("v_and_b32 v13, 15, v1")
A("v_xor_b32 v160, v13, v12")
A("v_lshlrev_b32 v160, 4, v160")
A("v_lshl_add_u32 v160, v12, 9, v160")
A("s_and_b32 s50, s28, 1")
A("s_lshl_b32 s51, s50, %d" % (14 if XL else 15))
A("s_add_u32 s51, s51, %d" % X0)
A("v_add_u32 v160, s51, v160")
A("v_xor_b32 v161, 64, v160")
A("v_bfe_u32 v14, v1, 2, 2")
A("v_and_b32 v162, 2, v14")
A("v_and_b32 v15, 1, v12")
A("v_or_b32 v162, v162, v15")
A("s_lshr_b32 s51, s28, 1")
A("v_xor_b32 v162, s51, v162")
A("v_lshlrev_b32 v162, 5, v162")
A("v_lshl_add_u32 v14, v12, 3, v14")
A("v_lshl_add_u32 v162, v14, 7, v162")
A("v_and_b32 v15, 3, v1")
A("v_lshl_add_u32 v162, v15, 3, v162")
A("s_lshl_b32 s52, s50, 8")
A("s_add_u32 s52, s52, %d" % M_ST)
A("v_lshlrev_b32 v103, 3, v13")
A("v_add_u32 v103, s52, v103")
A("s_lshl_b32 s56, s26, 1")
A("s_add_u32 s56, s56, s50")
A("s_mul_i32 s56, s56, %d" % NKS)
A("s_lshl_b32 s57, s27, 2")
A("s_add_u32 s56, s56, s57")
A("s_add_u32 s56, s56, s51")
A("s_lshl_b32 s56, s56, 10")
A("s_add_u32 s56, s56, 0x%x" % (AF + 86 * 1024))
A("s_lshl_b32 s57, s29, 3")
A("s_add_u32 s57, s57, s28")
A("s_lshl_b32 s57, s57, %d" % OS)
A("s_add_u32 s57, s57, 0x%x" % OFLAG)
A("s_mov_b32 s58, 0xffff0000")
A("s_mov_b32 s59, 0xffff0000")
A("s_mov_b32 s60, 0")
A("s_mov_b32 s61, 0x%x" % f2u(-64.0))
A("s_lshl_b32 s64, s28, %d" % (10 + LLT))
A("v_lshrrev_b32 v126, 5, v1")
A("v_lshlrev_b32 v126, 9, v126")
A("v_and_b32 v127, 31, v1")
A("v_lshl_add_u32 v126, v127, 3, v126")
A("v_add_u32 v126, s64, v126")
A("v_add_u32 v127, s64, v2")
A("s_lshl_b32 s52, s28, %d" % (11 + LLT))
A("s_add_u32 s52, s52, 0x%x" % KVL)
A("s_add_u32 s53, s52, 4096")
A("s_mov_b32 s54, 0x3f803f80")
QA, QS, QD, CS = 104, 36, 4, 116
Q, K, V, P, C, S, O = 4, 8, [12, 20], 28, 36, [52, 68], 84
MX, TMP, K2 = 100, 101, 112
for i in range(4): A("v_mov_b32 v%d, 0" % (T0 + i))
for i in range(4): A("v_mov_b32 v%d, s54" % (P + i))
SM = opt("sm", 0)
IX = P + 7
def smf(d, a, b): return "v_smfmac_f32_32x32x32_bf16 %s, %s, %s, v%d" % (v(d, 16), v(a, 4), v(b, 8), IX)
if SM: A("v_mov_b32 v%d, 0xdddddddd" % IX)
else:
    A("v_mov_b64 %s, 0" % v(P + 4, 2))
    A("v_mov_b64 %s, 0" % v(P + 6, 2))
A("v_mov_b32 v102, v2")
A("v_mov_b32 v11, 1")
def bump1(word):
    A("s_mov_b64 exec, 1")
    A.lds("ds_add_u32 v3, v11 offset:%d" % (word - MISC), "bump")
    A("s_mov_b64 exec, -1")
for i in range(8):
    A.wait_vm("x%d" % i)
    if i == 0: ST.stamp()
    if i == 7: ST.stamp(slot=12); ST.n = 2
    if RAW:
        A("ds_write_b128 v%d, %s offset:%d" % (VXW, v(X + 4 * i, 4), i * 4096))
        if i == 3: bump1(M_F[0])
        if i == 7: bump1(M_F[2])
    for k in range(4):
        r = X + 4 * i + k
        A("v_dot2c_f32_bf16 v%d, s54, v%d" % (T0 + (k & 1), r))
        A("v_dot2c_f32_bf16 v%d, v%d, v%d" % (T0 + 2 + (k & 1), r, r))
if ALL: peek(M_X, TMP, "fw")
A("s_nop 1")
A("v_add_f32 v%d, v%d, v%d" % (T0, T0, T0 + 1))
A("v_add_f32 v%d, v%d, v%d" % (T0 + 2, T0 + 2, T0 + 3))
for mode in ["quad_perm:[1,0,3,2]", "quad_perm:[2,3,0,1]", "row_half_mirror"]:
    A("s_nop 0")
    A("v_add_f32_dpp v%d, v%d, v%d %s row_mask:0xf bank_mask:0xf" % (T0, T0, T0, mode))
    A("v_add_f32_dpp v%d, v%d, v%d %s row_mask:0xf bank_mask:0xf" % (T0 + 2, T0 + 2, T0 + 2, mode))
def rb(r):
    A("v_cvt_pk_bf16_f32 v%d, v%d, v%d" % (r, r, r))
    A("v_lshlrev_b32 v%d, 16, v%d" % (r, r))
M_, V_ = T0, T0 + 2
A("v_mul_f32 v%d, 0x%x, v%d" % (M_, f2u(1.0 / 512), M_))
A("v_mul_f32 v%d, 0x%x, v%d" % (V_, f2u(1.0 / 512), V_))
A("v_fma_f32 v%d, -v%d, v%d, v%d" % (V_, M_, M_, V_))
A("v_max_f32 v%d, 0, v%d" % (V_, V_))
rb(V_)
A("v_add_f32 v%d, 0x%x, v%d" % (V_, f2u(1e-5), V_))
rb(V_)
A("v_sqrt_f32 v%d, v%d" % (V_, V_))
rb(M_)
rb(V_)
A("v_rcp_f32 v%d, v%d" % (M_ + 1, V_))
A("s_nop 0")
A("v_mul_f32 v%d, v%d, v%d" % (M_, M_, M_ + 1))
A.lds("ds_write_b64 v10, %s" % v(M_, 2), "st")
if RAW: bump1(M_F[3])
if ALL: gate(M_X, 1, TMP, "fw")
A("s_setprio %d" % opt("ap", 0))
ST.stamp()
LLR = ([O + 4 * i for i in range(4)] + [V[0] + 4 * i for i in range(4)])[:4 * LLT]
if ALL: LLR = [X + 4 * i for i in range(4 * LLT)]
def ll_loads(sel=None):
    for i, r in enumerate(LLR):
        if sel is None or i in sel: A("buffer_load_dwordx3 %s, v2, s[36:39], s%d offen offset:%d sc1" % (v(r, 3), 52 + i // 4, (i & 3) * 1024))
def ll_check(t):
    A("s_waitcnt vmcnt(0)")
    for r in LLR: A("v_xor_b32 v%d, v125, v%d" % (r + 3, r + 2))
    z = [r + 3 for r in LLR]
    A("v_or3_b32 v%d, v%d, v%d, v%d" % (z[0], z[0], z[1], z[2]))
    if LLT == 2:
        A("v_or3_b32 v%d, v%d, v%d, v%d" % (z[3], z[3], z[4], z[5]))
        A("v_or3_b32 v%d, v%d, v%d, v%d" % (z[0], z[0], z[6], z[7]))
    A("v_or_b32 v%d, v%d, v%d" % (z[0], z[0], z[3]))
    A("v_cmp_ne_u32 vcc, 0, v%d" % z[0])
norm = ["v_mov_b32 v%d, v%d" % (NM, M_ + 1), "v_mov_b32 v%d, v%d" % (NM + 1, M_ + 1),
        "v_sub_f32 v%d, 0, v%d" % (NM + 2, M_), "v_sub_f32 v%d, 0, v%d" % (NM + 3, M_)]
FN, NP = opt("fn", 6), opt("np", 12)
cut = 4
for i in range(33):
    f0, f1 = F + 2 * (i & 1), F + 2 * ((i - 1) & 1)
    if i == NP: cut = len(norm)
    if i < 32:
        norm.append("v_lshlrev_b32 v%d, 16, v%d" % (f0, X + i))
        norm.append("v_and_b32 v%d, 0xffff0000, v%d" % (f0 + 1, X + i))
    else:
        norm.append("s_nop 0")
    if i > 0: norm.append("v_cvt_pk_bf16_f32 v%d, v%d, v%d" % (X + i - 1, f1, f1 + 1))
    if i < NP: norm.append("v_pk_fma_f32 %s, %s, %s, %s" % (v(f0, 2), v(f0, 2), v(NM, 2), v(NM + 2, 2)))
    elif i < 32:
        for z in range(2): norm.append("v_fma_f32 v%d, v%d, v%d, v%d" % (f0 + z, f0 + z, NM, NM + 2))
    if not RAW and i > 0 and i % 4 == 0:
        norm.append("ds_write_b128 v%d, %s offset:%d" % (VXW, v(X + i - 4, 4), xo(i - 4)))
        if i in (16, 24, 32) and not ALL: norm.append(("bump", M_F[{16: 0, 24: 2, 32: 3}[i]]))
        if i == 32 and ALL: norm.append(("bump", M_F[0])); cut = len(norm)
        if i == 16: cut = max(cut, len(norm))
bumped = set()
def emit(l):
    if isinstance(l, tuple): bump1(l[1]); bumped.add(l[1])
    elif l.startswith("ds_"): A.lds(l, "xw")
    else: A(l)
for l in norm[:cut]: emit(l)
norm = norm[cut:]
if not RAW: ST.stamp(slot=2)
if ALL:
    A("s_mov_b32 s31, 0x40000")
    A("A_F0:")
    A("ds_read_b128 %s, v3 offset:%d" % (v(F, 4), M_F[0] - MISC))
    A("s_sub_u32 s31, s31, 1")
    A("s_waitcnt lgkmcnt(0)")
    A("v_readfirstlane_b32 s30, v%d" % F)
    A("s_cbranch_scc1 A_F0X")
    A("s_cmp_ge_u32 s30, %d" % FT[0])
    A("s_cbranch_scc1 A_F0X")
    A("s_sleep 1")
    A("s_branch A_F0")
    A("A_F0X:")
    A.lg = []
else: spin(M_F[0], FT[0], TMP)
if "pa2" in OPT: A("s_setprio %d" % opt("pa2", 0))
ST.stamp(slot=9); ST.n = 3
ck(1)
if opt("qc", 0): ST.stamp(cy=True, slot=14); ST.n = 3
def qreads(s_):
    b = QS + (s_ % QD) * 12
    A.lds("ds_read_b64_tr_b16 %s, v162 offset:%d" % (v(b, 2), s_ * 4096), "q%d" % s_)
    A.lds("ds_read_b64_tr_b16 %s, v162 offset:%d" % (v(b + 2, 2), s_ * 4096 + 512), "q%d" % s_)
    A.lds("ds_read_b128 %s, v%d offset:%d" % (v(b + 4, 4), 160 + (s_ & 1), xo(2 * s_)), "q%d" % s_)
    A.lds("ds_read_b128 %s, v%d offset:%d" % (v(b + 8, 4), 160 + (s_ & 1), xo(2 * s_) + 256), "q%d" % s_)
def init_list():
    L = ["v_mov_b64 %s, 0" % v(O + 2 * i, 2) for i in range(7)]
    L += ["v_and_b32 v%d, 27, v1" % V[0], "v_cmp_eq_u32 vcc, 0, v%d" % V[0], "v_mov_b32 v%d, s54" % (V[0] + 1), "v_mov_b64 %s, 0" % v(O + 14, 2),
          "v_cndmask_b32 v%d, 0, v%d, vcc" % (V[0], V[0] + 1), "v_mov_b32 v%d, v%d" % (V[0] + 1, V[0])]
    L += ["v_mov_b64 %s, %s" % (v(V[0] + 2 * i, 2), v(V[0], 2)) for i in range(1, 8)]
    return L
def init_regs():
    for l in init_list() + ([] if SM else ["v_mov_b64 %s, 0" % v(P + 4, 2), "v_mov_b64 %s, 0" % v(P + 6, 2)]): A(l)
QST = 112
if ALL: norm = init_list(); FN = 2
for s_ in range(QD - 1):
    if s_ == 2 and not ALL: peek(M_F[1], TMP, "f1")
    qreads(s_)
for s_ in range(16):
    if A.has_lg("q%d" % s_): A.wait_lg("q%d" % s_)
    n_ = s_ + QD - 1
    if n_ < 16:
        if n_ % 4 == 0 and n_ >= 8 and not RAW and not ALL:
            while M_F[n_ // 4] not in bumped: emit(norm.pop(0)); print("late fill", n_)
        if n_ % 4 == 0 and KROT: gate(M_F[n_ // 4], FT[n_ // 4], F + n_ // 4 if ALL else TMP, "f%d" % (n_ // 4))
        if n_ % 4 == 2 and n_ < 12 and not ALL: peek(M_F[n_ // 4 + 1], TMP, "f%d" % (n_ // 4 + 1))
        qreads(n_)
        if n_ == 12:
            A.lds("ds_read_b32 v125, v3 offset:%d" % (M_TAG - MISC), "q12")
        if n_ == 13 and RAW:
            A.lds("ds_read_b64 %s, v103" % v(QST, 2), "q13")
            A.lds("ds_read_b64 %s, v103 offset:128" % v(QST + 2, 2), "q13")
        if n_ == 7: bump1(M_QH)
        if n_ == 15: bump1(M_Q); peek(M_QH, TMP, "q15")
    lps = opt("lps", 8)
    if s_ >= LLP: ll_loads(range((s_ - LLP) * lps, (s_ - LLP + 1) * lps))
    b = QS + (s_ % QD) * 12
    now, norm = norm[:FN], norm[FN:]
    f3 = (FN + 2) // 3 if RAW else 0
    f2 = 2 * f3 if RAW else (len(now) + 1) // 2
    if RAW: A(mfma16(CS, b, P, "0" if s_ == 0 else None))
    for l in now[:f3]: emit(l)
    A(mfma16(QA, b, b + 4, "0" if s_ == 0 else None))
    for l in now[f3:f2]: emit(l)
    A(mfma16(QA + 4, b, b + 8, "0" if s_ == 0 else None))
    for l in now[f2:]: emit(l)
    left = len(now) + len(norm)
    if s_ == 15: ST.stamp(slot=13); ST.n = 3
ll_loads(range(max(0, 16 - LLP) * lps, 8))
for l in norm: A(l)
if left < 7: A("s_nop %d" % (6 - left))
A("v_readfirstlane_b32 s55, v125")
for h_ in range(2 if RAW else 0):
    for i in range(4): A("v_mul_f32 v%d, v%d, v%d" % (NM + i if h_ == 0 else CS + i, QST + 2 * h_, CS + i))
for h_ in range(2 if RAW else 0):
    for i in range(4): A("v_fma_f32 v%d, v%d, v%d, -v%d" % (QA + 4 * h_ + i, QA + 4 * h_ + i, QST + 2 * h_ + 1, NM + i if h_ == 0 else CS + i))
for i in range(4): A("v_cvt_pk_bf16_f32 v%d, v%d, v%d" % (Q + i, QA + 2 * i, QA + 2 * i + 1))
A("s_mov_b32 s31, 0x1000")
A("s_nop 0")
A("v_permlane16_swap_b32 v%d, v%d" % (Q, Q + 2))
A("v_permlane16_swap_b32 v%d, v%d" % (Q + 1, Q + 3))
ST.stamp(slot=3)
if opt("qc", 0): ST.stamp(cy=True, slot=15); ST.n = 3
A("A_LLW:")
ll_check(0)
A("s_cbranch_vccz A_LLOK")
A("s_sub_u32 s31, s31, 1")
A("s_cbranch_scc1 A_LLOK")
if opt("lls", 0): A("s_sleep %d" % opt("lls", 0))
ll_loads()
A("s_branch A_LLW")
A("A_LLOK:")
A.vm = []
ST.stamp(slot=4)
gate(M_QH, 8, TMP, "q15")
for i, r in enumerate(LLR):
    t_, kind, u = i >> 2, i & 1, (i >> 1) & 1
    A("ds_write_b64 v126, %s offset:%d" % (v(r, 2), t_ * 2048 + (u * 256 if kind == 0 else 1024 + (1 - u) * 256)))
bump1(M_C0)
A("ds_read_b128 %s, v127" % v(K, 4))
if LLT == 2: A("ds_read_b128 %s, v127 offset:2048" % v(K2, 4))
ST.stamp(slot=10)
if not ALL:
    for l in init_list(): A(l)
A("s_waitcnt lgkmcnt(0)")
A(mfma(S[0], K, Q, "0"))
if LLT == 2: A(mfma(S[1], K2, Q, "0"))
A.lg = []
spin(M_C0, 8, TMP)
ST.stamp(slot=11); ST.n = 5
A("ds_read_b128 %s, v102" % v(K, 4))
A("s_nop 2")
A("v_max3_f32 v%d, v%d, v%d, v%d" % (MX, S[0], S[0] + 1, S[0] + 2))
A("v_max3_f32 v%d, v%d, v%d, v%d" % (TMP, S[0] + 3, S[0] + 4, S[0] + 5))
for i in range(5):
    A("v_max3_f32 v%d, v%d, v%d, v%d" % ((MX, TMP)[i & 1], S[0] + 6 + 2 * i, S[0] + 7 + 2 * i, (MX, TMP)[i & 1]))
for i in range(8 if LLT == 2 else 0):
    A("v_max3_f32 v%d, v%d, v%d, v%d" % ((MX, TMP)[i & 1], S[1] + 2 * i, S[1] + 2 * i + 1, (MX, TMP)[i & 1]))
A("v_max_f32 v%d, v%d, v%d" % (MX, MX, TMP))
A("A_GO:")
A("v_mov_b32 v%d, v%d" % (TMP, MX))
A("s_mov_b64 exec, s[58:59]")
A("ds_read_b128 %s, v102 offset:1024" % v(V[0], 4))
A("ds_read_b128 %s, v102 offset:768" % v(V[0] + 4, 4))
A("s_mov_b64 exec, -1")
A("v_permlane32_swap_b32 v%d, v%d" % (MX, TMP))
A("s_nop 1")
A("v_max_f32 v%d, v%d, v%d" % (MX, MX, TMP))
A("v_sub_f32 v%d, s61, v%d" % (C, MX))
A("v_sub_f32 v%d, s61, v%d" % (C + 1, MX))
for i in range(1, 8): A("v_mov_b64 %s, %s" % (v(C + 2 * i, 2), v(C, 2)))
A("s_waitcnt lgkmcnt(2)")
A(mfma(S[0], K, Q, C))
A("ds_read_b128 %s, v102 offset:2048" % v(K, 4))
for i in range(4 if SM else 0): A("v_mov_b64 %s, 0" % v(S[1] + 8 + 2 * i, 2))
S0 = 4 * LLT - 1
if EC:
    SEG = [(S0, None, 2), (15 - S0, (M_C1, 1), None), (8 if XL else 4, (M_C2, 1), None), (opt("p1", 4), (M_C23, 4), None), (opt("p2", 7), None, 1), (opt("p3", 2), None, 0)]
else:
    SEG = [(S0, None, 2), (15 - S0, (M_C1, 1), None), (opt("p1", 8), (M_C23, 4), None), (opt("p2", 7), None, 1), (opt("p3", 2), None, 0)]
SEG = [x for x in SEG if x[0]]
assert sum(x[0] for x in SEG) == 32
if opt("xl", 0): A("buffer_load_dwordx4 %s, v124, s[32:35], s48 offen" % v(XR, 4))
if opt("ot", 0): A("buffer_load_dword v127, v124, s[44:47], s48 offen")
A("s_mov_b32 s62, %d" % SEG[0][0])
A("s_mov_b32 s63, 0")
A("s_setprio %d" % SEG[0][2])
ST.stamp()
if not opt("qc", 0): ST.stamp(cy=True, slot=14)
ST.n = 6
ck(2)
if not RAW:
    A("s_cmp_lt_u32 s28, 4")
    A("s_nop %d" % (2 if SM else 6))
    if BAL: A("s_cbranch_scc1 A_LOOPX")
else:
    A("s_cmp_eq_u32 s60, 64")
    A("s_nop 4")
    A("s_cbranch_scc1 A_LOOP")
if not RAW: pass
elif opt("pp", 1):
    A("s_cmp_lt_u32 s28, 4")
    A("s_cbranch_scc1 A_PEEL")
    A("s_setprio 3")
    A("A_PEEL:")
else: A("s_nop 1")
def body(name, marks, peel=False):
    if not peel:
        A(".p2align 6")
        A("%s:" % name)
    n = [0]
    def E(x):
        if n[0] in marks: A("s_setprio %d" % marks[n[0]])
        n[0] += 1
        A(x)
    for p in range(2):
        Sc, Sn, Vc, Vp = S[p], S[1 - p], V[p], V[1 - p]
        e = lambda i: E("v_exp_f32 v%d, v%d" % (Sc + i, Sc + i))
        c = lambda i: A("v_cvt_pk_bf16_f32 v%d, v%d, v%d" % (P + i, Sc + 2 * i, Sc + 2 * i + 1))
        if SM:
            for i in range(16):
                if i == opt("sma", 2):
                    A(smf(O, Vp + 4, Sn + 8))
                    A("s_mov_b64 exec, s[58:59]")
                    A("ds_read_b128 %s, v102 offset:%d" % (v(Vp, 4), (p + 1) * 2048 + 1024))
                    A("ds_read_b128 %s, v102 offset:%d" % (v(Vp + 4, 4), (p + 1) * 2048 + 768))
                    A("s_mov_b64 exec, -1")
                if i == opt("smb", 6):
                    A("s_waitcnt lgkmcnt(2)")
                    A(mfma(Sn, K, Q, C))
                    A("ds_read_b128 %s, v102 offset:%d" % (v(K, 4), (p + 2) * 2048))
                if i == opt("smc", 12): A(smf(O, Vc, Sc))
                if i == 14 and p == 1:
                    A("v_add_u32 v102, 4096, v102")
                    A("s_sub_u32 s62, s62, 1")
                    A("s_cmp_lg_u32 s62, 0")
                e(i)
            continue
        w = lambda i: A("ds_write_b128 v%d, %s offset:%d" % (VXW, v(X + 16 * p + 4 * i, 4), (4 * p + i) * 4096)) if peel else None
        A("s_waitcnt lgkmcnt(%d)" % (4 if peel and p else 0))
        A(mfma(Sn, K, Q, C))
        A("ds_read_b128 %s, v102 offset:%d" % (v(K, 4), (p + 2) * 2048))
        e(0); e(1); e(2); e(3); c(0); e(4)
        A(mfma(O, Vp + 4, P + 4))
        A("s_mov_b64 exec, s[58:59]")
        A("ds_read_b128 %s, v102 offset:%d" % (v(Vp, 4), (p + 1) * 2048 + 1024))
        A("ds_read_b128 %s, v102 offset:%d" % (v(Vp + 4, 4), (p + 1) * 2048 + 768))
        A("s_mov_b64 exec, -1")
        e(5); w(0); c(1); e(6); w(1); e(7); c(2); e(8); w(2); c(3); e(9); w(3); e(10)
        if peel and p: bump(M_XN, TMP); A("s_setprio %d" % SEG[0][2])
        A(mfma(O, Vc, P))
        e(11); c(4); e(12); e(13); c(5); e(14); e(15)
        if p == 1:
            A("v_add_u32 v102, 4096, v102")
            A("s_sub_u32 s62, s62, 1")
            A("s_cmp_lt_u32 s28, 4" if peel else "s_cmp_lg_u32 s62, 0")
        c(6); c(7)
    if not peel: A("s_cbranch_scc1 %s" % name)
    elif BAL: A("s_cbranch_scc1 A_LOOPX")
if RAW: body("A_PEEL", {}, True)
A.lg = []
body("A_LOOP", {})
if BAL:
    A("s_branch A_SEGS")
    body("A_LOOPX", {0: 3, BAL: 1})
    A("@LOOPEND")
    A("A_SEGS:")
else:
    A("@LOOPEND")
A("s_add_u32 s63, s63, 1")
A("s_cmp_eq_u32 s63, %d" % len(SEG))
A("s_cbranch_scc1 A_SEG%d" % (len(SEG) - 1))
plain = False
for i, (n, chk, pr) in enumerate(SEG[1:], 1):
    A("s_cmp_eq_u32 s63, %d" % i)
    A("s_cbranch_scc0 A_SEG%d" % i)
    sg = opt("sg", 0)
    if i in (1, 2, 4): ck({1: 3, 2: 4, 4: 5}[i])
    if sg and chk and i - sg in (0, 1): ST.stamp(slot=(1, 9)[i - sg])
    if chk: spin(chk[0], chk[1], TMP)
    if sg and chk and i - sg in (0, 1): ST.stamp(slot=(12, 13)[i - sg]); ST.n = 6
    if sg and i - sg == 2: ST.stamp(slot=10); ST.n = 6
    if pr is not None: A("s_setprio %d" % pr); plain = True
    A("s_mov_b32 s62, %d" % n)
    if BAL and not plain:
        A("s_cmp_lt_u32 s28, 4")
        A("s_cbranch_scc1 A_LOOPX")
    A("s_branch A_LOOP")
    A("A_SEG%d:" % i)
if opt("fp", 0): A("s_setprio 3")
ck(6)
A(smf(O, V[1] + 4, S[1] + 8) if SM else mfma(O, V[1] + 4, P + 4))
ST.stamp()
if not opt("qc", 0): ST.stamp(cy=True, slot=15)
ST.n = 7
if opt("fc", 0):
    A("s_waitcnt vmcnt(0) lgkmcnt(0)")
    A("ds_read_b32 v103, v3 offset:%d" % (M_LOC - MISC))
    A("v_mov_b32 v%d, 0x%x" % (S[0] + 4, f2u(2.0 ** -100)))
    A("v_mov_b32 v%d, 0x%x" % (S[0] + 5, f2u(2.0 ** 125)))
    R = 8
    for i in range(4):
        A("v_lshlrev_b32 v%d, 16, v%d" % (S[1] + 2 * i, XR + i))
        A("v_and_b32 v%d, 0xffff0000, v%d" % (S[1] + 2 * i + 1, XR + i))
    A("s_nop 0")
    o_ = lambda i: "|v%d|" % (O + 8 + i)
    A("v_rcp_f32 v%d, v%d" % (MX, O))
    A("v_maximum3_f32 v%d, %s, %s, %s" % (S[0], o_(0), o_(1), o_(2)))
    A("v_minimum3_f32 v%d, %s, %s, %s" % (S[0] + 1, o_(0), o_(1), o_(2)))
    A("v_maximum3_f32 v%d, %s, %s, %s" % (S[0] + 2, o_(3), o_(4), o_(5)))
    A("v_minimum3_f32 v%d, %s, %s, %s" % (S[0] + 3, o_(3), o_(4), o_(5)))
    A("v_maximum3_f32 v%d, %s, %s, v%d" % (S[0], o_(6), o_(7), S[0]))
    A("v_minimum3_f32 v%d, %s, %s, v%d" % (S[0] + 1, o_(6), o_(7), S[0] + 1))
    A("v_maximum3_f32 v%d, v%d, v%d, v%d" % (S[0], O, S[0] + 2, S[0]))
    A("v_minimum3_f32 v%d, v%d, v%d, v%d" % (S[0] + 1, O, S[0] + 3, S[0] + 1))
    A("v_cmp_lt_f32 s[64:65], v%d, v%d" % (S[0], S[0] + 5))
    A("v_cmp_gt_f32 vcc, v%d, v%d" % (S[0] + 1, S[0] + 4))
    for i in range(8): A("v_mul_f32 v%d, v%d, v%d" % (O + 8 + i, O + 8 + i, MX))
    A("s_and_b64 s[64:65], s[64:65], vcc")
    A("s_waitcnt lgkmcnt(0)")
    A("v_readfirstlane_b32 s30, v103")
    for i in range(4): A("v_cvt_pk_bf16_f32 v%d, v%d, v%d" % (P + i, O + 8 + 2 * i, O + 9 + 2 * i))
    A("s_cmp_eq_u64 s[64:65], -1")
    A("s_cbranch_scc1 A_FIN")
    A("s_cmp_eq_u32 s60, 64")
    A("s_cbranch_scc1 A_FIN")
else:
    A("s_waitcnt vmcnt(0) lgkmcnt(0)")
    if OL: A("ds_read_b32 v103, v3 offset:%d" % (M_LOC - MISC))
    A("v_mov_b32 v%d, 0x108" % TMP)
    A("s_cmp_eq_u32 s60, 64")
    A("s_nop 9")
    A("v_rcp_f32 v%d, v%d" % (MX, O))
    A("s_cbranch_scc1 A_FIN")
    A("v_mul_f32 v%d, 4.0, v%d" % (S[0], O))
    A("v_cmp_class_f32 s[64:65], v%d, v%d" % (S[0], TMP))
    for i in range(8):
        A("v_mul_f32 v%d, 0x%x, v%d" % (S[0] + 1 + i, f2u(2.0 ** -26), O + 8 + i))
        A("v_cmp_class_f32 vcc, v%d, v%d" % (S[0] + 1 + i, TMP))
        A("s_and_b64 s[64:65], s[64:65], vcc")
    A("s_cmp_eq_u64 s[64:65], -1")
    A("s_cbranch_scc1 A_FIN")
A("s_mov_b32 s60, 64")
A("s_mov_b32 s61, 0")
A("v_mov_b32 v102, v2")
A("v_mov_b32 v%d, 0xff800000" % MX)
A("s_mov_b32 s62, 64")
A("A_PRE:")
A("ds_read_b128 %s, v102" % v(K, 4))
A("v_add_u32 v102, 2048, v102")
A("s_waitcnt lgkmcnt(0)")
A(mfma(S[0], K, Q, "0"))
A("s_nop 12")
for i in range(8):
    A("v_max3_f32 v%d, v%d, v%d, v%d" % (MX, S[0] + 2 * i, S[0] + 2 * i + 1, MX))
A("s_sub_u32 s62, s62, 1")
A("s_cmp_lg_u32 s62, 0")
A("s_cbranch_scc1 A_PRE")
init_regs()
A("v_mov_b32 v102, v2")
A("ds_read_b128 %s, v102" % v(K, 4))
A("s_branch A_GO")
A("A_FIN:")
if not opt("fc", 0):
    if OL:
        A("s_waitcnt lgkmcnt(0)")
        A("v_readfirstlane_b32 s30, v103")
    for i in range(8): A("v_mul_f32 v%d, v%d, v%d" % (O + 8 + i, O + 8 + i, MX))
    for i in range(4): A("v_cvt_pk_bf16_f32 v%d, v%d, v%d" % (P + i, O + 8 + 2 * i, O + 9 + 2 * i))
if OL:
    A("s_cmp_eq_u32 s30, 1")
    A("s_cbranch_scc1 A_OLOC")
    A("buffer_store_dwordx4 %s, v2, s[36:39], s56 offen sc1" % v(P, 4))
    A("s_branch A_ODONE")
    A("A_OLOC:")
    A("buffer_store_dwordx4 %s, v2, s[36:39], s56 offen" % v(P, 4))
    A("A_ODONE:")
else:
    A("buffer_store_dwordx4 %s, v2, s[36:39], s56 offen sc1" % v(P, 4))
bump(M_O, 6)
A("s_mul_i32 s50, s28, %d" % (8 * 272))
A("v_lshrrev_b32 v4, 3, v1")
A("v_mul_u32_u24 v4, 272, v4")
A("v_and_b32 v5, 7, v1")
A("v_lshl_add_u32 v4, v5, 5, v4")
A("v_add_u32 v4, s50, v4")
R = S[1] if opt("fc", 0) else 8
for i in range(0 if opt("fc", 0) else 4):
    A("v_lshlrev_b32 v%d, 16, v%d" % (R + 2 * i, XR + i))
    A("v_and_b32 v%d, 0xffff0000, v%d" % (R + 2 * i + 1, XR + i))
if not OL:
    A("s_waitcnt vmcnt(0)")
    flag_store("s57", "s55", 6)
ST.stamp()
if OL < 2: A("s_barrier")
A("s_barrier")
for p in range(4):
    for hh in range(2):
        A("ds_read_b128 %s, v4 offset:%d" % (v(16 + p * 8 + hh * 4, 4), p * PW + hh * 16))
for p in range(4):
    A("s_waitcnt lgkmcnt(%d)" % (6 - 2 * p))
    for i in range(4):
        A("v_pk_add_f32 %s, %s, %s" % (v(R + 2 * i, 2), v(R + 2 * i, 2), v(16 + p * 8 + 2 * i, 2)))
for i in range(4): A("v_cvt_pk_bf16_f32 v%d, v%d, v%d" % (XR + i, R + 2 * i, R + 2 * i + 1))
A("buffer_store_dwordx4 %s, v124, s[44:47], s48 offen" % v(XR, 4))
if STAMP:
    A("s_waitcnt vmcnt(0)")
    ST.stamp()
    ck(7)
    ST.flush(36, STOFF, 28, 4, nwaves=12)
A("s_endpgm")
A.vm = []; A.lg = []

A("G_START:")
A("s_setprio 3")
A("s_sub_u32 s62, s28, 8")
A("s_cmp_eq_u32 s62, 3")
A("s_cbranch_scc1 G3_START")
ST.n = 1
ACC = [[4, 20], [36, 52]]
WF = [[68, 72], [76, 80]]
XF = [[84, 88], [92, 96]]
VD1, VD2, VT1, VT2, VW0, VW1, VP0, VP1, VX = 100, 101, 102, 103, 104, 105, 106, 107, 108
PK = 112
srd(A, 40, 16, 512 * 2752)
srd(A, 48, 12, 512 * 1024)
A("s_lshl_b32 s52, s62, 5")
A("s_add_u32 s52, s52, s26")
A("s_cmp_lt_u32 s52, 86")
A("s_cselect_b32 s44, s18, s12")
A("s_cselect_b32 s45, s19, s13")
A("s_mov_b32 s46, 0x%x" % (512 * 1024))
A("s_cselect_b32 s46, 0x%x, s46" % (1376 * 1024))
A("s_mov_b32 s47, 0x00020000")
A("s_cselect_b32 s53, 0, 86")
A("s_sub_u32 s53, s52, s53")
A("s_lshl_b32 s53, s53, 14")
A("s_lshl_b32 s54, s27, 7")
A("s_add_u32 s53, s53, s54")
A("s_mul_i32 s55, s27, %d" % (2 * NKS))
A("s_add_u32 s56, s55, s52")
A("s_lshl_b32 s56, s56, 10")
A("s_add_u32 s56, s56, 0x%x" % WT)
A("s_add_u32 s57, s26, 10")
A("s_lshl_b32 s57, s57, 14")
A("s_add_u32 s57, s57, s54")
A("s_add_u32 s58, s55, s26")
A("s_lshl_b32 s58, s58, 10")
A("s_add_u32 s58, s58, 0x%x" % (WT + 96 * 1024))
A("s_cmp_lt_u32 s26, 22")
A("s_cselect_b32 s59, s62, 0")
A("s_cmp_eq_u32 s59, 2")
A("s_cselect_b32 s57, s57, 0x%x" % HUGE)
A("s_cselect_b32 s58, s58, 0x%x" % HUGE)
A("s_mul_i32 s59, s27, 3")
A("s_lshl_b32 s60, s27, 1")
A("s_add_u32 s60, s60, 6")
A("s_cmp_lt_u32 s27, 6")
A("s_cselect_b32 s59, s59, s60")
A("s_cselect_b32 s61, 0, s62")
A("s_add_u32 s59, s59, s62")
A("s_lshl_b32 s60, s59, 7")
A("s_cmp_eq_u32 s61, 2")
A("s_cselect_b32 s60, 0x%x, s60" % HUGE)
A("s_mul_i32 s63, s62, %d" % RING)
A("s_add_u32 s63, s63, %d" % Z0)
A("v_lshrrev_b32 v4, 3, v1")
A("v_and_b32 v5, 2, v4")
A("v_lshlrev_b32 v5, 1, v5")
A("v_and_b32 v6, 7, v1")
A("v_xor_b32 v5, v5, v6")
A("v_lshlrev_b32 v5, 4, v5")
A("v_lshl_add_u32 v%d, v4, 10, v5" % VT1)
A("v_add_u32 v%d, %d, v%d" % (VT2, 8192 - 1024, VT1))
A("v_mul_u32_u24 v%d, 2752, v4" % VD1)
A("v_add_u32 v%d, v%d, v5" % (VD1, VD1))
A("v_add_u32 v%d, %d, v%d" % (VD2, 8 * 2752 - 1024, VD1))
def dma(e):
    A("s_add_u32 m0, s63, %d" % ((e % NSLOT) * 2048))
    if e == 0: sr, so, a, b = 44, "s53", VT1, VT2
    elif e == 1: sr, so, a, b = 48, "s57", VT1, VT2
    else: sr, so, a, b = 40, "s3", VD1, VD2
    if e >= 2:
        if KROT:
            A("s_xor_b32 s3, s26, %d" % (e - 2))
            A("s_mul_i32 s3, s3, %d" % (16 * 2752))
            A("s_add_u32 s3, s3, s60")
        else: A("s_add_u32 s3, s60, %d" % ((e - 2) * 16 * 2752))
    else: A("s_nop 0")
    A.vmem("buffer_load_dwordx4 v%d, %s, %s offen lds" % (a, s(sr, 4), so), "E%d" % e)
    A.vmem("buffer_load_dwordx4 v%d, %s, %s offen offset:1024 lds" % (b, s(sr, 4), so), "E%d" % e)
A("s_barrier")
srd(A, 64, 6, 512 * 1024)
A("v_and_b32 v7, 2, v4")
A("s_and_b32 s30, s62, 1")
A("v_or_b32 v7, s30, v7")
A("v_lshlrev_b32 v7, 1, v7")
A("v_xor_b32 v7, v7, v6")
A("v_lshlrev_b32 v7, 4, v7")
A("v_lshl_add_u32 v7, v4, 10, v7")
A("v_xor_b32 v8, 32, v7")
A("s_lshl_b32 s30, s62, 13")
A("s_add_u32 s30, s30, s54")
A("s_lshl_b32 s31, s62, 10")
A("s_lshl_b32 s69, s26, 14")
A("s_lshl_b32 s68, s26, 11")
for i in range(22):
    if i == 21:
        A("s_cmp_eq_u32 s62, 0")
        A("s_cbranch_scc0 G_WQD")
    if KROT: A("s_add_u32 m0, s31, %d" % (Y0 + i * 3072))
    else:
        A("s_xor_b32 m0, s31, s68")
        A("s_add_u32 s31, s31, 3072")
    A("s_xor_b32 s3, s30, s69")
    A.vmem("buffer_load_dwordx4 v%d, s[64:67], s3 offen lds" % (7 + (i & 1)), "wq")
    A("s_add_u32 s30, s30, %d" % (3 * 8192))
A("G_WQD:")
if not opt("w2l", 0): A("@WARM2")
for h_, n_ in enumerate((16, 10, 5, 0) if KROT else (0,)):
    A("s_waitcnt vmcnt(%d)" % n_)
    bump(M_F[h_], 9)
    if h_ == 0: ST.stamp(slot=14)
if opt("w2l", 0): A("@WARM2")
A.vm = []
spin(M_W, 1, 9)
def touch():
    A("s_and_b32 s30, s29, 31")
    A("s_mul_i32 s30, s30, %d" % (16 * 2752))
    A("s_lshl_b32 s31, s62, 14")
    A("s_add_u32 s30, s30, s31")
    A("s_add_u32 s31, s30, 8192")
    A("v_lshlrev_b32 v9, 7, v1")
    A.vmem("buffer_load_dword v10, v9, s[40:43], s30 offen", "pf")
    A.vmem("buffer_load_dword v11, v9, s[40:43], s31 offen", "pf")
PF = opt("pf", 0)
if PF == 2: touch()
if PF == 3: spin(M_QH, 8, 9, 2); touch()
if opt("rd", 0) == 1: spin(M_QH, 8, 9, 2)
if opt("rd", 0) == 2: spin(M_Q, 8, 9, 2)
if opt("rd", 0) == 3: spin(M_C0, 8, 9, 2)
for e_ in range(NSLOT): dma(e_)
if PF == 1: touch()
ST.stamp(slot=10); ST.n = 1
A("v_lshrrev_b32 v4, 5, v1")
A("v_bfe_u32 v5, v1, 2, 2")
A("v_bfe_u32 v6, v1, 4, 1")
A("v_and_b32 v7, 2, v5")
A("v_or_b32 v6, v6, v7")
A("v_lshlrev_b32 v6, 5, v6")
A("v_and_b32 v7, 3, v1")
A("v_lshl_add_u32 v6, v7, 3, v6")
A("v_lshl_add_u32 v6, v5, 7, v6")
A("v_add_u32 v6, s63, v6")
A("v_lshl_add_u32 v%d, v4, 10, v6" % VW0)
A("v_xor_b32 v%d, 64, v%d" % (VW1, VW0))
A("v_lshl_add_u32 v%d, v4, 9, v6" % VP0)
A("v_xor_b32 v%d, 64, v%d" % (VP1, VP0))
A("v_and_b32 v5, 31, v1")
for m in range(4):
    A("v_or_b32 v6, %d, v4" % (2 * m))
    A("v_xor_b32 v6, v6, v5")
    A("v_lshlrev_b32 v6, 4, v6")
    A("v_lshl_add_u32 v6, v4, 9, v6")
    A("v_add_u32 v%d, %d, v6" % (VX + m, X0))
for e_ in range(2):
    A.wait_vm("E%d" % e_)
    for a in range(2):
        A.lds("ds_read_b64_tr_b16 %s, v%d offset:%d" % (v(PK + e_ * 8 + a * 4, 2), VP0 + a, e_ * 2048), "t")
        A.lds("ds_read_b64_tr_b16 %s, v%d offset:%d" % (v(PK + e_ * 8 + a * 4 + 2, 2), VP0 + a, e_ * 2048 + 1024), "t")
    A.wait_lg0()
    d = 56 + 2 * e_
    A.vmem("buffer_store_dwordx4 %s, v2, s[36:39], s%d offen sc1" % (v(PK + e_ * 8, 4), d), "TS")
    A("s_add_u32 s%d, s%d, %d" % (d, d, NKS * 1024))
    A.vmem("buffer_store_dwordx4 %s, v2, s[36:39], s%d offen sc1" % (v(PK + e_ * 8 + 4, 4), d), "TS")
    dma(e_ + NSLOT)
ST.stamp()
A("s_mul_i32 s52, s26, %d" % (2 * NKS))
A("s_lshl_b32 s53, s59, 2")
A("s_add_u32 s52, s52, s53")
A("s_lshl_b32 s52, s52, 10")
A("s_add_u32 s52, s52, 0x%x" % AF)
A("s_add_u32 s53, s52, %d" % (NKS * 1024))
A("s_cmp_eq_u32 s59, 21")
A("s_cselect_b32 s54, 0x%x, s52" % HUGE)
A("s_cselect_b32 s55, 0x%x, s53" % HUGE)
A("s_cmp_eq_u32 s61, 2")
A("s_cbranch_scc1 %s" % ("G_F1IDLE" if EC else "G_F1DONE"))
spin(M_XN if RAW else (M_F[0 if ALL else 3], M_QH, M_Q, M_C0)[opt("gq", 2)], 11 if not RAW and opt("gq", 2) == 0 else 8, 4, 2)
if not RAW and not ALL and opt("gq", 2) == 1: spin(M_F[3], 11, 4)
ST.stamp()
def reads(s_):
    p = s_ & 1
    e_ = s_ + 2
    A.wait_vm("E%d" % e_)
    off = (e_ % NSLOT) * 2048
    for a in range(2):
        A.lds("ds_read_b64_tr_b16 %s, v%d offset:%d" % (v(WF[p][a], 2), VW0 + a, off), "r%d" % s_)
        A.lds("ds_read_b64_tr_b16 %s, v%d offset:%d" % (v(WF[p][a] + 2, 2), VW0 + a, off + 512), "r%d" % s_)
    for t in range(2):
        A.lds("ds_read_b128 %s, v%d offset:%d" % (v(XF[p][t], 4), VX + (s_ & 3), xo(s_, t)), "r%d" % s_)
if opt("gp1", 3) != 3: A("s_setprio %d" % opt("gp1", 3))
_mf = mfma
if opt("nof1", 0): mfma = lambda *a: "s_nop 0"
reads(0)
tdone = False
for s_ in range(32):
    p = s_ & 1
    A.wait_lg("r%d" % s_)
    pc = lambda: A("s_nop %d" % opt("pace1", 0)) if opt("pace1", 0) else None
    A(mfma(ACC[0][0], WF[p][0], XF[p][0], "0" if s_ == 0 else None))
    if s_ + 2 + NSLOT < 34: dma(s_ + 2 + NSLOT)
    pc()
    A(mfma(ACC[0][1], WF[p][0], XF[p][1], "0" if s_ == 0 else None))
    if s_ + 1 < 32: reads(s_ + 1)
    if TF and not A.has_vm("TS") and not tdone: bump(M_T, 0); tdone = True
    if TF > 1 and s_ == 30: A.lds("ds_read_b32 v144, v3 offset:%d" % (M_LOC - MISC), "r31")
    if EC and s_ == 15: bump(M_F1H, 0)
    if EC and s_ == 31: bump(M_F1, 0)
    pc()
    A(mfma(ACC[1][0], WF[p][1], XF[p][0], "0" if s_ == 0 else None))
    pc()
    A(mfma(ACC[1][1], WF[p][1], XF[p][1], "0" if s_ == 0 else None))
    pc()
mfma = _mf
ST.stamp()
if opt("gp1", 3) != 3: A("s_setprio 3")
if TF > 1:
    A("v_readfirstlane_b32 s30, v144")
    A("s_nop 7")
    A("s_cmp_eq_u32 s30, 1")
    A("s_cbranch_scc0 G_HFAR")
else: A("s_nop 9")
for sc in (("", " sc1") if TF > 1 else (" sc1",)):
    if TF > 1 and sc: A("G_HFAR:")
    for a in range(2):
        for t in range(2):
            b = PK + (2 * a + t) * 8
            for i in range(8): A("v_cvt_pk_bf16_f32 v%d, v%d, v%d" % (b + i, ACC[a][t] + 2 * i, ACC[a][t] + 2 * i + 1))
            for i in range(8): A("v_pk_max_i16 v%d, v%d, 0" % (b + i, b + i))
            A("buffer_store_dwordx4 %s, v2, s[36:39], s%d offen offset:%d%s" % (v(b, 4), 52 + 2 * a + t, a * 2048, sc))
            A("buffer_store_dwordx4 %s, v2, s[36:39], s%d offen offset:%d%s" % (v(b + 4, 4), 52 + 2 * a + t, a * 2048 + 1024, sc))
    if not sc: A("s_branch G_JOIN")
A("G_F1DONE:")
A.vm = []; A.lg = []
if STAMP: ST.n = 4
if EC:
    A("s_branch G_JOIN")
    A("G_F1IDLE:")
    if TF:
        A("s_waitcnt vmcnt(0)")
        bump(M_T, 4)
    bump(M_F1H, 4)
bump(M_F1, 4)
A("s_branch G_JOIN")

A("G3_START:")
ST.n = 1
A("s_load_dword s60, s[24:25], 0x%x" % EPOCH)
A("s_and_b32 s52, s27, 1")
A("s_cmp_eq_u32 s52, 0")
A("s_cselect_b32 s40, s8, s10")
A("s_cselect_b32 s41, s9, s11")
A("s_mov_b32 s42, 0x4000")
A("s_mov_b32 s43, 0x00020000")
for i in range(4):
    A("s_mov_b32 m0, %d" % (WIMG + i * 4096))
    A("s_mov_b32 s53, %d" % (i * 4096))
    for k in range(4):
        A.vmem("buffer_load_dwordx4 v2, s[40:43], s53 offen offset:%d lds" % (k * 1024), "w")
GW, GX, GA, GC, GS = 4, 68, 132, 136, 140
A("v_lshrrev_b32 v150, 4, v1")
A("v_and_b32 v151, 15, v1")
if GXL:
    assert not RAW
    A("v_and_b32 v152, 3, v1")
    A("v_xor_b32 v152, v152, v150")
    A("v_lshlrev_b32 v152, 4, v152")
    A("v_lshrrev_b32 v153, 2, v1")
    A("v_lshl_add_u32 v152, v153, 10, v152")
else:
    A("v_lshlrev_b32 v152, 10, v151")
    A("v_lshl_add_u32 v152, v150, 4, v152")
A("s_lshr_b32 s54, s27, 1")
A("s_lshl_b32 s55, s54, 14")
A("s_lshl_b32 s53, s26, 16")
A("s_add_u32 s53, s53, s55")
for i in range(16):
    if GXL:
        A("s_mov_b32 m0, %d" % (Z0 + i * 960))
        A("s_nop 0")
        A.vmem("buffer_load_dwordx4 v152, s[32:35], s53 offen offset:%d lds" % (64 * i), "x%d" % i)
    else:
        A.vmem("buffer_load_dwordx4 %s, v152, s[32:35], s53 offen offset:%d" % (v(GX + 4 * i, 4), 64 * i), "x%d" % i)
A("s_barrier")
A("s_waitcnt lgkmcnt(0)")
A("s_mul_i32 s60, s60, 0x9E3779B1")
A("s_add_u32 s60, s60, 0x7F4A7C15")
A("v_mov_b32 v153, s60")
A("ds_write_b32 v3, v153 offset:%d" % (M_TAG - MISC))
if RAW: bump(M_F[3], 154)
A("v_bfe_u32 v153, v1, 2, 2")
if GXL:
    A("v_xor_b32 v152, v153, v150")
    A("v_lshlrev_b32 v152, 4, v152")
    A("v_lshl_add_u32 v152, v151, 6, v152")
    A("v_add_u32 v152, %d, v152" % Z0)
A("v_lshl_add_u32 v153, v150, 3, v153")
A("v_lshlrev_b32 v153, 5, v153")
A("v_and_b32 v154, 3, v1")
A("v_lshl_add_u32 v153, v154, 3, v153")
A("v_add_u32 v153, %d, v153" % WIMG)
for i in range(4): A("v_mov_b32 v%d, 0x3f803f80" % (GS + i))
A.wait_vm("w")
for i in range(16):
    A("ds_read_b64_tr_b16 %s, v153 offset:%d" % (v(GW + 4 * i, 2), i * 1024))
    A("ds_read_b64_tr_b16 %s, v153 offset:%d" % (v(GW + 4 * i + 2, 2), i * 1024 + 128))
    if i == 6 or i == 13: A("s_waitcnt lgkmcnt(0)")
A("s_waitcnt lgkmcnt(0)")
if not RAW: bump(M_X if ALL else M_F[0], 154)
if not GXL: bump(M_W, 154)
if opt("g3p", 3) != 3: A("s_setprio %d" % opt("g3p", 3))
ST.stamp()
A("s_lshr_b32 s57, s54, 1")
A("s_lshl_b32 s56, s57, 5")
A("s_add_u32 s56, s56, s26")
A("s_lshl_b32 s59, s56, 2")
A("s_and_b32 s57, s27, 3")
A("s_add_u32 s59, s59, s57")
A("s_lshl_b32 s63, s59, 10")
A("s_add_u32 s63, s63, 0x%x" % KVL)
A("s_cmp_lt_u32 s56, %d" % (8 * LLT))
A("s_cselect_b32 s63, s63, 0x%x" % HUGE)
A("s_lshl_b32 s59, s59, %d" % KS)
A("s_add_u32 s59, s59, 0x%x" % KVFLAG)
A("s_lshl_b32 s56, s56, 11")
A("s_add_u32 s56, s56, 0x%x" % KVF)
A("s_and_b32 s57, s54, 1")
A("s_lshl_b32 s58, s54, 7")
A("s_add_u32 s58, s58, %d" % M_ST)
A("s_cmp_eq_u32 s52, 0")
A("s_cbranch_scc0 G3_V")
vm_save = list(A.vm)
for kind in range(2):
    A.vm = list(vm_save)
    if kind == 1: A("G3_V:")
    A.lg = []
    for i in range(16):
        if GXL and i % 8 == 0:
            A.wait_vm("x%d" % (i + 7))
            if i: A.wait_lg("gx1")
            for z in range(i, i + 8): A.lds("ds_read_b128 %s, v152 offset:%d" % (v(GX + 4 * z, 4), z * 1024), "gx%d" % z)
            if i: bump(M_W, 154)
        c0 = "0" if i == 0 else None
        A(mfma16(GC, GW + 4 * i, GS, c0) if kind == 0 else mfma16(GC, GS, GW + 4 * i, c0))
    if kind == 0:
        A("v_lshlrev_b32 v154, 3, v151")
        A("v_add_u32 v154, s58, v154")
        A("v_lshrrev_b32 v155, 1, v150")
        A("v_lshlrev_b32 v155, 9, v155")
        A("v_lshl_add_u32 v155, v151, 4, v155")
        A("v_and_b32 v156, 1, v150")
        A("v_lshl_add_u32 v155, v156, 3, v155")
        A("s_lshl_b32 s57, s57, 8")
        A("s_add_u32 s56, s56, s57")
    else:
        A("v_lshlrev_b32 v154, 5, v150")
        A("v_add_u32 v154, s58, v154")
        A("v_lshrrev_b32 v155, 1, v150" if SM else "v_and_b32 v155, 1, v150")
        A("v_lshlrev_b32 v155, 9, v155")
        A("v_lshl_add_u32 v155, v151, 4, v155")
        A("v_and_b32 v156, 1, v150" if SM else "v_lshrrev_b32 v156, 1, v150")
        A("v_lshl_add_u32 v155, v156, 3, v155")
        A("s_lshl_b32 s57, s57, 8")
        A("s_sub_u32 s56, s56, s57")
        A("s_add_u32 s56, s56, %d" % (1024 + 256))
    A("v_and_b32 v157, 255, v155")
    A("v_add_u32 v157, v157, v155")
    for i in range(16):
        if not GXL: A.wait_vm("x%d" % i)
        elif A.has_lg("gx%d" % i): A.wait_lg("gx%d" % i)
        c0 = "0" if i == 0 else None
        A(mfma16(GA, GW + 4 * i, GX + 4 * i, c0) if kind == 0 else mfma16(GA, GX + 4 * i, GW + 4 * i, c0))
    L = A.label("STS")
    A("s_mov_b32 s31, 0x40000")
    A("%s:" % L)
    if kind == 0:
        A("ds_read_b64 %s, v154" % v(GS, 2))
    else:
        A("ds_read_b128 %s, v154" % v(GS, 4))
        A("ds_read_b128 %s, v154 offset:16" % v(GS + 4, 4))
    A("s_sub_u32 s31, s31, 1")
    A("s_cbranch_scc1 %s_X" % L)
    A("s_waitcnt lgkmcnt(0)")
    if kind == 0:
        A("v_cmp_eq_u32 vcc, 0, v%d" % (GS + 1))
    else:
        A("v_min_u32 v156, v%d, v%d" % (GS + 1, GS + 3))
        A("v_min3_u32 v156, v%d, v%d, v156" % (GS + 5, GS + 7))
        A("v_cmp_eq_u32 vcc, 0, v156")
    A("s_cmp_eq_u64 vcc, 0")
    if opt("sts", 0):
        A("s_cbranch_scc1 %s_X" % L)
        A("s_sleep %d" % opt("sts", 0))
        A("s_branch %s" % L)
    else:
        A("s_cbranch_scc0 %s" % L)
    A("%s_X:" % L)
    A("s_waitcnt lgkmcnt(0)")
    if kind == 0:
        for i in range(2): A("v_mul_f32 v%d, 0x%x, v%d" % (GS + i, f2u(0.25 * 1.4426950408889634), GS + i))
    for i in range(4):
        o = 0 if kind == 0 else 2 * i
        A("v_mul_f32 v%d, v%d, v%d" % (GA + i, GA + i, GS + o + 1))
        A("v_fma_f32 v%d, -v%d, v%d, v%d" % (GA + i, GS + o, GC + i, GA + i))
    A("v_cvt_pk_bf16_f32 v%d, v%d, v%d" % (GA, GA, GA + 1))
    A("v_cvt_pk_bf16_f32 v%d, v%d, v%d" % (GA + 1, GA + 2, GA + 3))
    if kind == 0: A("s_branch G3_PUB")
A("G3_PUB:")
if opt("g3p", 3) != 3: A("s_setprio 3")
A("v_mov_b32 v%d, s60" % (GA + 2))
A("v_mov_b32 v%d, s60" % (GA + 3))
A("buffer_store_dwordx4 %s, v157, s[36:39], s63 offen sc1" % v(GA, 4))
A("buffer_store_dwordx2 %s, v155, s[36:39], s56 offen sc1" % v(GA, 2))
ST.stamp()
A("s_mov_b32 s58, 0x%x" % KVFLAG)
A("v_lshlrev_b32 v6, %d, v1" % KS)
A("s_and_b32 s57, s2, %d" % (KR - 1))
A("s_lshl_b32 s57, s57, %d" % (8 + KS))
A("v_add_u32 v6, s57, v6")
A("v_mov_b32 v4, s60")
A("v_lshlrev_b32 v5, %d, v1" % (8 + KS))
A("s_mov_b64 exec, 0x%x" % ((1 << KR) - 1) if KR < 32 else "s_mov_b64 exec, -1" if KR == 64 else "s_mov_b32 exec_hi, 0")
A("s_waitcnt vmcnt(0)")
A("buffer_store_dword v4, v5, s[36:39], s59 offen sc1")
A("s_mov_b64 exec, -1")
ST.stamp()
A("@WARM3")
if opt("pd", 0) == 1: spin(M_QH, 8, 4)
if opt("pd", 0) == 2: spin(M_Q, 8, 4)
if opt("pd", 0) == 3: spin(M_C0, 8, 4)
for c_ in ((32, 64) if LLT == 1 else (64,)):
    A("s_mov_b32 s58, 0x%x" % (KVFLAG + (c_ << KS)))
    gpoll(6, "s58", 4, 1, "s60", opt("ksleep", 2))
ST.stamp(slot=10); ST.n = 4
spin(M_Q, 8, 4)
for i in range(4 * LLT, 16):
    A("s_mov_b32 m0, %d" % (i * 4096))
    A("s_mov_b32 s53, 0x%x" % (KVF + i * 4096))
    for k in range(4):
        A("buffer_load_dwordx4 v2, s[36:39], s53 offen offset:%d @LD lds" % (k * 1024))
if OL:
    A("v_mov_b64 v[8:9], -1")
    A("v_mov_b64 v[10:11], -1")
    A("s_mul_i32 s53, s26, %d" % (2 * NKS))
    A("s_lshl_b32 s57, s27, 2")
    A("s_add_u32 s53, s53, s57")
    A("s_lshl_b32 s53, s53, 10")
    A("s_add_u32 s53, s53, 0x%x" % (AF + 86 * 1024))
    A("s_add_u32 s57, s53, %d" % (NKS * 1024))
    for i in range(8):
        A("buffer_store_dwordx4 v[8:11], v2, s[36:39], s%d offen offset:%d sc1" % ((53, 57)[i >> 2], (i & 3) * 1024))
    A("s_waitcnt vmcnt(8)")
else:
    A("s_waitcnt vmcnt(0)")
bump(M_C1, 4)
for c_ in (2, 3):
    A("s_mov_b32 s58, 0x%x" % (KVFLAG + ((64 * c_) << KS)))
    gpoll(6, "s58", 4, 1, "s60", opt("ksleep", 2))
bump(M_KV, 4)
def flag_addr():
    A("s_lshl_b32 s52, s26, 3")
    A("v_add_u32 v4, s52, v1")
    A("v_subrev_u32 v5, 8, v1")
    A("v_lshlrev_b32 v5, 3, v5")
    A("v_add_u32 v5, s27, v5")
    A("v_mov_b32 v6, s29")
    A("v_cmp_gt_u32 vcc, 40, v1")
    A("s_nop 1")
    A("v_cndmask_b32 v5, v6, v5, vcc")
    A("v_cmp_gt_u32 vcc, 8, v1")
    A("s_nop 1")
    A("v_cndmask_b32 v5, v5, v4, vcc")
    A("v_lshlrev_b32 v5, %d, v5" % HS)
def loc_check(tag):
    A("v_cmp_ne_u32 vcc, s63, v7")
    A("v_cmp_ne_u32 s[64:65], %s, v6" % tag)
    A("s_or_b64 vcc, vcc, s[64:65]")
    A("s_and_b32 s30, vcc_lo, 0xff")
    A("s_cselect_b32 s30, 0, %d" % (0 if opt("noloc", 0) else 1))
    A("v_mov_b32 v4, s30")
    A("ds_write_b32 v3, v4 offset:%d" % (M_LOC - MISC))
if TF:
    A("s_getreg_b32 s63, hwreg(HW_REG_XCC_ID, 0, 4)")
    A("s_lshl_b32 s57, s29, %d" % HS)
    A("s_add_u32 s57, s57, 0x%x" % TFLAG)
    spin(M_T, 3, 4, 2)
    A("v_mov_b32 v4, s60")
    A("v_mov_b32 v5, s63")
    A("v_mov_b32 v6, 0")
    A("s_mov_b64 exec, 1")
    A("buffer_store_dwordx2 v[4:5], v6, s[36:39], s57 offen sc1")
    A("s_mov_b64 exec, -1")
    A("s_nop 0")
if EC:
    spin(M_F1H, 3, 4, 2)
    for i in range(8):
        o_ = 65536 + xo((i & 3) * 4, i >> 2)
        A("s_mov_b32 m0, %d" % o_)
        A("s_mov_b32 s53, 0x%x" % (KVF + o_))
        for k in range(4):
            A("buffer_load_dwordx4 v2, s[36:39], s53 offen offset:%d @LD lds" % (k * 1024))
    A("s_waitcnt vmcnt(%d)" % (0 if XL else 16))
    bump(M_C2, 4)
if TF:
    flag_addr()
    A("s_mov_b32 s58, 0x%x" % TFLAG)
    gpoll(5, "s58", 6, 2, "s60", opt("tsleep", 4))
    loc_check("s60")
    if opt("wpf", 1):
        A("s_mul_i32 s52, s27, %d" % (2 * NKS * 1024))
        A("s_and_b32 s53, s26, 3")
        A("s_mul_i32 s53, s53, %d" % (59 * 1024))
        A("s_add_u32 s52, s52, s53")
        A("s_add_u32 s52, s52, 0x%x" % WT)
        A("v_lshlrev_b32 v5, 7, v1")
        A("v_min_u32 v6, %d, v5" % (23 * 128))
        for i in range(8):
            A("buffer_load_dword v%d, v%d, s[36:39], s52 offen @LD" % (8 + i, 6 if i == 7 else 5))
            if i < 7: A("s_add_u32 s52, s52, 8192")

A("G_JOIN:")
A.vm = []; A.lg = []
spin(M_F1, 3, 4)
spin(M_KV, 1, 4)
read_tag(61, 4)
if not TF: A("s_getreg_b32 s63, hwreg(HW_REG_XCC_ID, 0, 4)")
ST.stamp(slot=13); ST.n = 4
A("s_lshl_b32 s52, s62, %d" % (12 if EC else 14))
for i in range(2 if EC else 4):
    o_ = 65536 + xo(16, i) if EC else 65536 + i * 4096
    A("s_add_u32 m0, s52, %d" % o_)
    A("s_add_u32 s53, s52, 0x%x" % (KVF + o_))
    for k in range(4):
        A("buffer_load_dwordx4 v2, s[36:39], s53 offen offset:%d @LD lds" % (k * 1024))
ST.stamp(slot=11)
if TF:
    A("s_cmp_eq_u32 s62, 3")
    A("s_cbranch_scc1 G_NOFLAG")
A("s_waitcnt vmcnt(%d)" % (8 if EC else 16))
ST.stamp(slot=12); ST.n = 4
A("v_mov_b32 v4, 1")
A("s_mov_b64 exec, 1")
A("ds_add_rtn_u32 v5, v3, v4 offset:%d" % (M_H - MISC))
A("s_mov_b64 exec, -1")
if TF > 1: A("ds_read_b32 v6, v3 offset:%d" % (M_LOC - MISC))
A("s_lshl_b32 s57, s29, %d" % HS)
A("s_add_u32 s57, s57, 0x%x" % HFLAG)
A("s_waitcnt lgkmcnt(0)")
A("v_readfirstlane_b32 s30, v5")
A("s_cmp_eq_u32 s30, %d" % (2 if TF else 3))
A("s_cbranch_scc0 G_NOFLAG")
if TF > 1:
    A("v_readfirstlane_b32 s30, v6")
    A("v_mov_b32 v4, s61")
    A("v_mov_b32 v5, 0")
    A("s_mov_b64 exec, 1")
    A("s_cmp_eq_u32 s30, 1")
    A("s_cbranch_scc0 G_FFAR")
    A("buffer_store_dword v4, v5, s[36:39], s57 offen")
    A("s_branch G_FDONE")
    A("G_FFAR:")
    A("buffer_store_dword v4, v5, s[36:39], s57 offen sc1")
    A("G_FDONE:")
    A("s_mov_b64 exec, -1")
elif OL and not TF:
    A("v_mov_b32 v4, s61")
    A("v_mov_b32 v5, s63")
    A("v_mov_b32 v6, 0")
    A("s_mov_b64 exec, 1")
    A("buffer_store_dwordx2 v[4:5], v6, s[36:39], s57 offen sc1")
    A("s_mov_b64 exec, -1")
    A("s_nop 0")
else:
    flag_store("s57", "s61", 4)
A("G_NOFLAG:")
if TF:
    A("s_lshl_b32 s52, s26, 3")
    A("v_and_b32 v5, 7, v1")
    A("v_add_u32 v5, s52, v5")
    A("v_lshlrev_b32 v5, %d, v5" % HS)
else: flag_addr()
A("s_mul_i32 s52, s27, %d" % (2 * NKS * 1024))
A("s_add_u32 s52, s52, 0x%x" % WT)
A("s_mul_i32 s53, s26, %d" % (2 * NKS * 1024))
A("s_add_u32 s53, s53, 0x%x" % AF)
A("v_add_u32 v164, s52, v2")
A("v_add_u32 v165, %d, v164" % (NKS * 1024))
A("v_add_u32 v166, s53, v2")
A("v_add_u32 v167, %d, v166" % (NKS * 1024))
N0 = opt("n0", 0)
if N0:
    N3 = 86 - 3 * N0
    assert (N3 - N0) % 6 == 0
    TL = opt("tl", 6 + (N0 - 1) % 6)
    R0 = (N0 - 1 - TL) // 6
    assert 1 + 6 * R0 + TL == N0 and R0 >= 1
    A("s_lshl_b32 s54, s62, 10")
    A("s_cmp_eq_u32 s62, 3")
    A("s_cselect_b32 s54, %d, s54" % (3 * N0 * 1024))
    A("s_cselect_b32 s55, 1, 3")
    A("s_cselect_b32 s60, %d, %d" % (R0 + (N3 - N0) // 6, R0))
    A("s_lshl_b32 s55, s55, 10")
else:
    A("s_lshl_b32 s54, s62, 10")
    A("s_cmp_lt_u32 s62, 2")
    A("s_cselect_b32 s55, 0, 0x%x" % HUGE)
A("s_waitcnt vmcnt(0)")
bump(M_C23, 4)
A("s_mov_b32 s58, 0x%x" % HFLAG)
ST.stamp()
A("s_cmp_eq_u32 s62, 3")
A("s_cbranch_scc0 G_HW")
if OL and not TF:
    gpoll(5, "s58", 6, 2, "s61", opt("hsleep", 8))
    loc_check("s61")
else:
    gpoll(5, "s58", 4, 1, "s61", opt("hsleep", 8))
bump(M_HOK, 4)
A("G_HW:")
spin(M_HOK, 1, 4, opt("hks", 4))
ST.stamp()
NST, SB, NI = 6, 68, 22
WP = opt("wp", 0)
if N0: NI = 7 + TL
SH = (-(NI - NST)) % NST if WP else 0
def loads(i):
    st = SB + ((i + SH) % NST) * 16
    if i == NI - 1 and not N0: A("s_add_u32 s54, s54, s55")
    for q in range(4):
        A.vmem("buffer_load_dwordx4 %s, v%d, s[36:39], s54 offen @LD" % (v(st + 4 * q, 4), 164 + q), "L%d" % i)
    if i < NI - 1 or (N0 and i <= 12): A("s_add_u32 s54, s54, %s" % ("s55" if N0 else "4096"))
WR, OR_ = 68, 104
fr = [(i, a) for i in range(8) for a in range(2)]
def wo_addr():
    A("s_lshr_b32 s57, s62, 1")
    A("s_lshl_b32 s57, s57, 12")
    A("s_and_b32 s56, s62, 1")
    A("s_lshl_b32 s56, s56, 10")
    A("s_add_u32 s57, s57, s56")
    A("s_add_u32 s40, s57, %d" % (86 * 1024))
    for i in range(1, 4): A("s_add_u32 s%d, s40, %d" % (40 + i, 8192 * i))
    A("s_mul_i32 s56, s62, 7168")
    A("s_add_u32 s56, s56, %d" % Z0)
def wo_load(n):
    i, a = fr[n]
    if n < 9:
        A.vmem("buffer_load_dwordx4 %s, v%d, s[36:39], s%d offen offset:%d @LD" % (v(WR + 4 * n, 4), 164 + a, 40 + (i & 3), (i >> 2) * 2048), "wo")
    else:
        A("s_add_u32 m0, s56, 0x%x" % (((n - 9) * 1024 - 2048) & 0xffffffff))
        A("s_nop 0")
        A.vmem("buffer_load_dwordx4 v%d, s[36:39], s%d offen offset:2048 @LD lds" % (164 + a, 40 + (i & 3)), "wo")
if opt("gp2", 3) != 3: A("s_setprio %d" % opt("gp2", 3))
if opt("nof2", 0): mfma = lambda *a: "s_nop 0"
if WP: wo_addr()
for i in range(NST): loads(i)
for i in range(NI):
    st = SB + ((i + SH) % NST) * 16
    if N0 and i == 1: A("G_F2L:")
    A.wait_vm("L%d" % i)
    for a in range(2):
        for b in range(2):
            A(mfma(ACC[a][b], st + 4 * a, st + 8 + 4 * b, "0" if i == 0 else None))
            if opt("pace2", 0): A("s_nop %d" % opt("pace2", 0))
    if i + NST < NI: loads(i + NST)
    elif WP:
        for n in ((9, 10, 11, 12, 0, 1, 2, 3), (13, 14, 15, 4, 5, 6, 7), (8,), (), (), ())[i + NST - NI]: wo_load(n)
    if N0 and i == 6:
        A("s_sub_u32 s60, s60, 1")
        A("s_cmp_lg_u32 s60, 0")
        A("s_cbranch_scc1 G_F2L")
mfma = _mf
if opt("gp2", 3) != 3: A("s_setprio %d" % opt("gp3", 3))
if OL:
    if not WP:
        wo_addr()
        for n in range(16): wo_load(n)
    for i in range(4): A("s_add_u32 s%d, s%d, s53" % (44 + i, 40 + i))
    if OL == 4:
        for i in range(4): A("s_add_u32 s%d, s%d, %d" % (48 + i, 44 + i, NKS * 1024))
        def oload(i):
            for t in range(2):
                A.vmem("buffer_load_dwordx4 %s, v2, s[36:39], s%d offen offset:%d sc1" % (v(OR_ + 8 * i + 4 * t, 4), 44 + 4 * t + (i & 3), (i >> 2) * 2048), "o%d" % i)
        def ocheck(i):
            r = OR_ + 8 * i
            A("v_max3_u32 v0, v%d, v%d, v%d" % (r, r + 1, r + 2))
            A("v_max3_u32 v0, v%d, v%d, v0" % (r + 3, r + 4))
            A("v_max3_u32 v0, v%d, v%d, v0" % (r + 5, r + 6))
            A("v_max_u32 v0, v%d, v0" % (r + 7))
            A("v_cmp_eq_u32 vcc, -1, v0")
        A("s_mov_b32 s58, 0x8000")
        A("s_mov_b32 s57, 0xff")
        A("s_mov_b32 s59, 0")
        A("v_add_u32 v1, s56, v2")
        ST.stamp()
        spin(M_O, opt("ow", 4), 0, opt("ows", 2))
        A.wait_vm0()
        ST.stamp()
        for i in range(4): oload(i)
        spin(M_O, opt("ow2", 8), 0, 1)
        if opt("od", 0): A("s_sleep %d" % opt("od", 0))
        if opt("ors", 0): ST.stamp(slot=15); ST.n = 8
        for i in range(4, 8): oload(i)
        A.wait_vm("o0")
        ocheck(0)
        A("s_cbranch_vccz G_OV0")
        A("G_OREF:")
        A("s_sub_u32 s58, s58, 1")
        if not opt("onb", 0): A("s_waitcnt vmcnt(0)")
        A("s_cbranch_scc1 G_OEND")
        vm_s = list(A.vm)
        A("s_and_b32 s30, s57, 15")
        A("s_cbranch_scc0 G_ORN3")
        for i in range(8):
            A("s_bitcmp1_b32 s57, %d" % i)
            A("s_cbranch_scc0 G_ORN%d" % i)
            if opt("onb", 0): A("s_waitcnt vmcnt(%d)" % (2 * (7 - i) + 2))
            ocheck(i)
            A("s_bitset0_b32 s57, %d" % i)
            A("s_cbranch_vccz G_ORN%d" % i)
            A("s_bitset1_b32 s57, %d" % i)
            oload(i)
            A("G_ORN%d:" % i)
        A.vm = vm_s
        A("s_bitcmp1_b32 s57, s59")
        if opt("onb", 0) and "oth" in OPT:
            A("s_cbranch_scc0 G_ODIS")
            A("s_waitcnt vmcnt(%d)" % opt("oth", 0))
            A("s_branch G_OREF")
            A("G_ODIS:")
        else: A("s_cbranch_scc1 G_OREF")
        for i in range(7, 0, -1):
            A("s_cmp_eq_u32 s59, %d" % i)
            A("s_cbranch_scc1 G_OV%d" % i)
        wreg = {fr[n]: WR + 4 * n for n in range(9)}
        nxt = 9
        for i in range(8):
            A("G_OV%d:" % i)
            ex = [[], [], [], []]
            if i == 7:
                A("G_OEND:")
                ex = [["v_lshrrev_b32 v0, 4, v2", "ds_read_b32 v1, v3 offset:%d" % (M_O - MISC), "v_and_b32 v2, 31, v0", "s_nop 0"],
                      ["v_mul_u32_u24 v2, 272, v2", "v_lshrrev_b32 v0, 5, v0", "s_mul_i32 s52, s62, %d" % PW, "v_lshl_add_u32 v2, v0, 4, v2"],
                      ["v_add_u32 v2, s52, v2", "s_waitcnt lgkmcnt(0)", "v_readfirstlane_b32 s30, v1", "s_cmp_ge_u32 s30, 8"], ["s_cbranch_scc1 G_OW"]]
            else:
                ex[0] = ["s_bitset0_b32 s57, %d" % i, "s_mov_b32 s59, %d" % (i + 1), "s_mov_b64 vcc, 0", "s_bitcmp1_b32 s57, %d" % (i + 1)]
            if A.has_lg("w%d" % i): A.wait_lg("w%d" % i)
            if opt("ors", 0): ST.stamp(slot=(1, 2, 3, 4, 10, 11, 12, 14)[i]); ST.n = 8
            for a in range(2):
                for t in range(2):
                    A(mfma(ACC[a][t], wreg[(i, a)], OR_ + 8 * i + 4 * t))
                    for l in ex[2 * a + t]: A(l)
                    if t == 1 and nxt < 16:
                        wreg[fr[nxt]] = wreg[(i, a)]
                        A.lds("ds_read_b128 %s, v1 offset:%d" % (v(wreg[(i, a)], 4), (nxt - 9) * 1024), "w%d" % fr[nxt][0])
                        nxt += 1
                    if i < 7 and 2 * a + t == opt("cpos", 2):
                        A("s_cbranch_scc0 G_OK%d" % i)
                        A.wait_vm("o%d" % (i + 1))
                        ocheck(i + 1)
                        A("G_OK%d:" % i)
            if i < 7: A("s_cbranch_vccnz G_OREF")
        spin(M_O, 8, 1)
        A("G_OW:")
        A.vm = []; A.lg = []
        if STAMP: A("s_sub_u32 s96, 0x8000, s58")
    elif OL == 3:
        for i in range(4): A("s_add_u32 s%d, s%d, %d" % (48 + i, 44 + i, NKS * 1024))
        def oload(i):
            for t in range(2):
                A("buffer_load_dwordx4 %s, v2, s[36:39], s%d offen offset:%d sc1" % (v(OR_ + 8 * i + 4 * t, 4), 44 + 4 * t + (i & 3), (i >> 2) * 2048))
        if opt("oinit", 0):
            A("s_waitcnt vmcnt(0)")
            for i in range(32): A("v_mov_b64 %s, -1" % v(OR_ + 2 * i, 2))
        else:
            for i in range(8): oload(i)
        A("s_mov_b32 s58, 0x8000")
        A("v_add_u32 v1, s56, v2")
        ST.stamp()
        wreg = {fr[n]: WR + 4 * n for n in range(9)}
        nxt = 9
        for h_ in range(2):
            keep = list(A.lg)
            spin(M_O, opt("ow", 3) if h_ == 0 else opt("ow2", 6), 0, opt("ows", 2))
            if h_ == 0:
                A("s_waitcnt vmcnt(0)")
                ST.stamp()
            A("s_mov_b32 s57, 0x%x" % (0xf << (4 * h_)))
            A("s_mov_b32 s59, %d" % (4 * h_))
            A("G_OS%d:" % h_)
            A("s_sub_u32 s58, s58, 1")
            if opt("osync", 0): A("s_waitcnt vmcnt(0)")
            A("s_cbranch_scc1 G_OEND")
            if opt("osleep", 0): A("s_sleep %d" % opt("osleep", 0))
            for i in range(4 * h_, 4 * h_ + 4):
                r = OR_ + 8 * i
                A("s_bitcmp1_b32 s57, %d" % i)
                A("s_cbranch_scc0 G_ON%d" % i)
                A("v_cmp_eq_u32 vcc, -1, v%d" % (r + 7))
                A("s_cbranch_vccnz G_OR%d" % i)
                A("v_max3_u32 v0, v%d, v%d, v%d" % (r, r + 1, r + 2))
                A("v_max3_u32 v0, v%d, v%d, v0" % (r + 3, r + 4))
                A("v_max3_u32 v0, v%d, v%d, v0" % (r + 5, r + 6))
                A("v_cmp_eq_u32 vcc, -1, v0")
                A("s_bitset0_b32 s57, %d" % i)
                A("s_cbranch_vccz G_ON%d" % i)
                A("s_bitset1_b32 s57, %d" % i)
                A("G_OR%d:" % i)
                A("s_waitcnt vmcnt(%d)" % opt("oth", 14))
                oload(i)
                A("G_ON%d:" % i)
            A("s_bitcmp1_b32 s57, s59")
            A("s_cbranch_scc1 G_OS%d" % h_)
            for i in range(4 * h_ + 3, 4 * h_, -1):
                A("s_cmp_eq_u32 s59, %d" % i)
                A("s_cbranch_scc1 G_OV%d" % i)
            for i in range(4 * h_, 4 * h_ + 4):
                A("G_OV%d:" % i)
                ex = [[], [], [], []]
                if i == 7:
                    A("G_OEND:")
                    ex = [["v_lshrrev_b32 v0, 4, v2", "ds_read_b32 v1, v3 offset:%d" % (M_O - MISC), "v_and_b32 v2, 31, v0", "s_nop 0"],
                          ["v_mul_u32_u24 v2, 272, v2", "v_lshrrev_b32 v0, 5, v0", "s_mul_i32 s52, s62, %d" % PW, "v_lshl_add_u32 v2, v0, 4, v2"],
                          ["v_add_u32 v2, s52, v2", "s_waitcnt lgkmcnt(0)", "v_readfirstlane_b32 s30, v1", "s_cmp_ge_u32 s30, 8"], ["s_cbranch_scc1 G_OW"]]
                elif i != 3:
                    ex[2] = ["s_mov_b32 s59, %d" % (i + 1), "s_bitcmp1_b32 s57, %d" % (i + 1) if opt("osync", 0) else "s_cmp_lg_u32 s57, 0"]
                if A.has_lg("w%d" % i): A.wait_lg("w%d" % i)
                for a in range(2):
                    for t in range(2):
                        A(mfma(ACC[a][t], wreg[(i, a)], OR_ + 8 * i + 4 * t))
                        for l in ex[2 * a + t]: A(l)
                for a in range(2):
                    if nxt < 16:
                        wreg[fr[nxt]] = wreg[(i, a)]
                        A.lds("ds_read_b128 %s, v1 offset:%d" % (v(wreg[(i, a)], 4), (nxt - 9) * 1024), "w%d" % fr[nxt][0])
                        nxt += 1
                if i not in (3, 7): A("s_cbranch_scc1 G_OS%d" % h_)
        spin(M_O, 8, 1)
        A("G_OW:")
        A.vm = []; A.lg = []
        if STAMP: A("s_sub_u32 s96, 0x8000, s58")
    elif OL == 2:
        for i in range(4): A("s_add_u32 s%d, s%d, %d" % (48 + i, 44 + i, NKS * 1024))
        A("v_and_b32 v0, 3, v1")
        A("v_lshlrev_b32 v0, 13, v0")
        A("v_bfe_u32 v104, v1, 2, 1")
        A("v_lshl_add_u32 v0, v104, 11, v0")
        A("v_bfe_u32 v104, v1, 3, 1")
        A("v_mul_u32_u24 v104, %d, v104" % (NKS * 1024))
        A("v_add3_u32 v1, v0, v104, %d" % opt("po", 60))
        A("s_mov_b32 s57, 0")
        A("s_mov_b32 s60, 0")
        A("s_mov_b32 s58, 0x8000")
        ST.stamp()
        spin(M_O, opt("ow", 8), 0, 4)
        A("s_waitcnt vmcnt(0)")
        A("v_add_u32 v3, s56, v2")
        ST.stamp()
        def oload(i):
            for t in range(2):
                A("buffer_load_dwordx4 %s, v2, s[36:39], s%d offen offset:%d sc1" % (v(OR_ + 8 * i + 4 * t, 4), 44 + 4 * t + (i & 3), (i >> 2) * 2048))
        A("s_branch G_OB0")
        A("G_OG:")
        A("s_sub_u32 s58, s58, 1")
        A("s_waitcnt vmcnt(0)")
        A("s_cbranch_scc0 G_ODIS")
        A("s_branch G_OEND")
        A("G_OF:")
        A("s_mov_b32 s60, s57")
        A("s_cmp_eq_u32 s57, 0xff")
        A("s_cbranch_scc1 G_OG")
        A("s_mov_b64 exec, 0xffff")
        A("buffer_load_dword v0, v1, s[36:39], s44 offen offset:960 sc1")
        A("s_sub_u32 s58, s58, 1")
        if opt("osleep", 0): A("s_sleep %d" % opt("osleep", 0))
        A("s_waitcnt vmcnt(0)")
        A("s_cbranch_scc1 G_OEND")
        A("v_cmp_ne_u32 vcc, -1, v0")
        A("s_mov_b64 exec, -1")
        A("s_lshr_b32 s30, vcc_lo, 8")
        A("s_and_b32 s30, s30, vcc_lo")
        A("s_andn2_b32 s30, s30, s57")
        A("s_cbranch_scc0 G_ODIS")
        A("s_or_b32 s57, s57, s30")
        for i in range(1, 8):
            A("s_bitcmp1_b32 s30, %d" % i)
            A("s_cbranch_scc0 G_ORN%d" % i)
            oload(i)
            A("G_ORN%d:" % i)
        A("G_ODIS:")
        if opt("ors", 0):
            for n_, sl in enumerate((1, 2, 3, 4, 10, 11, 12, 14)):
                A("s_cmp_eq_u32 s58, 0x%x" % (0x7fff - n_))
                A("s_cbranch_scc0 G_OS%d" % n_)
                ST.stamp(slot=sl)
                A("s_lshl_b32 s31, s57, 8")
                A("s_or_b32 s31, s31, s59")
                A("s_waitcnt lgkmcnt(0)")
                A("s_and_b32 s%d, s%d, 0xffff" % (70 + 2 * sl, 70 + 2 * sl))
                A("s_lshl_b32 s31, s31, 16")
                A("s_or_b32 s%d, s%d, s31" % (70 + 2 * sl, 70 + 2 * sl))
                A("G_OS%d:" % n_)
            ST.n = 8
        for i in range(7, 0, -1):
            A("s_cmp_eq_u32 s59, %d" % i)
            A("s_cbranch_scc1 G_OC%d" % i)
        A("s_branch G_OC0")
        wreg = {fr[n]: WR + 4 * n for n in range(9)}
        nxt = 9
        for i in range(8):
            r = OR_ + 8 * i
            A("G_ON%d:" % i)
            A("s_bitcmp1_b32 s57, %d" % i)
            A("s_cbranch_scc1 G_OF")
            A("s_bitset1_b32 s57, %d" % i)
            A("G_OM%d:" % i)
            oload(i)
            A("s_branch G_OF")
            A("G_OB%d:" % i)
            A("s_mov_b32 s59, %d" % i)
            A("s_bitcmp1_b32 s60, %d" % i)
            A("s_cbranch_scc0 G_ON%d" % i)
            A("G_OC%d:" % i)
            A("v_max3_u32 v0, v%d, v%d, v%d" % (r, r + 3, r + 7))
            A("v_cmp_eq_u32 vcc, -1, v0")
            A("v_max3_u32 v0, v%d, v%d, v%d" % (r + 1, r + 2, r + 4))
            A("s_cbranch_vccnz G_OM%d" % i)
            A("v_max3_u32 v0, v%d, v%d, v0" % (r + 5, r + 6))
            A("v_cmp_eq_u32 vcc, -1, v0")
            A("s_cbranch_vccnz G_OM%d" % i)
            ex = [[], [], [], []]
            if i == 7:
                A("G_OEND:")
                A("s_mov_b64 exec, -1")
                ex = [["v_mov_b32 v3, %d" % MISC, "v_lshrrev_b32 v0, 4, v2", "ds_read_b32 v1, v3 offset:%d" % (M_O - MISC), "v_and_b32 v2, 31, v0"],
                      ["v_mul_u32_u24 v2, 272, v2", "v_lshrrev_b32 v0, 5, v0", "s_mul_i32 s52, s62, %d" % PW, "v_lshl_add_u32 v2, v0, 4, v2"],
                      ["v_add_u32 v2, s52, v2", "s_waitcnt lgkmcnt(0)", "v_readfirstlane_b32 s30, v1", "s_cmp_ge_u32 s30, 8"], ["s_cbranch_scc1 G_OW"]]
            if A.has_lg("w%d" % i): A.wait_lg("w%d" % i)
            for a in range(2):
                for t in range(2):
                    A(mfma(ACC[a][t], wreg[(i, a)], OR_ + 8 * i + 4 * t))
                    for l in ex[2 * a + t]: A(l)
            for a in range(2):
                if nxt < 16:
                    wreg[fr[nxt]] = wreg[(i, a)]
                    A.lds("ds_read_b128 %s, v3 offset:%d" % (v(wreg[(i, a)], 4), (nxt - 9) * 1024), "w%d" % fr[nxt][0])
                    nxt += 1
            if i < 7: A("s_branch G_OB%d" % (i + 1))
        spin(M_O, 8, 1)
        A("G_OW:")
        A.vm = []; A.lg = []
        if STAMP: A("s_sub_u32 s96, 0x8000, s58")
    else:
        A("v_add_u32 v1, %d, v2" % (NKS * 1024))
        A("s_mov_b32 s57, 0xff")
        A("s_mov_b32 s58, 0x2000")
        ST.stamp()
        spin(M_O, opt("ow", 8), 0, 4)
        A("s_waitcnt vmcnt(0)")
        A("v_add_u32 v3, s56, v2")
        ST.stamp()
        def oload(i, tag=None):
            for t in range(2):
                A.vmem("buffer_load_dwordx4 %s, v%d, s[36:39], s%d offen offset:%d sc1" % (v(OR_ + 8 * i + 4 * t, 4), 2 - t, 44 + (i & 3), (i >> 2) * 2048), tag)
        def ocheck(i):
            r = OR_ + 8 * i
            A("v_max3_u32 v0, v%d, v%d, v%d" % (r, r + 1, r + 2))
            A("v_max3_u32 v0, v%d, v%d, v0" % (r + 3, r + 4))
            A("v_max3_u32 v0, v%d, v%d, v0" % (r + 5, r + 6))
            A("v_max_u32 v0, v%d, v0" % (r + 7))
            A("v_cmp_eq_u32 vcc, -1, v0")
        for i in range(8): oload(i, "o%d" % i)
        A("s_branch G_OB0")
        A("G_OREF:")
        A("s_waitcnt vmcnt(0)")
        A("s_sub_u32 s58, s58, 1")
        A("s_cselect_b32 s57, 0, s57")
        vm_s = list(A.vm)
        for i in range(8):
            A("s_bitcmp1_b32 s57, %d" % i)
            A("s_cbranch_scc0 G_ORN%d" % i)
            ocheck(i)
            A("s_bitset0_b32 s57, %d" % i)
            A("s_cbranch_vccz G_ORN%d" % i)
            A("s_bitset1_b32 s57, %d" % i)
            oload(i)
            A("G_ORN%d:" % i)
        A.vm = vm_s
        A("s_bitcmp1_b32 s57, s59")
        if opt("osleep", 0):
            A("s_cbranch_scc0 G_ODIS")
            A("s_sleep %d" % opt("osleep", 0))
            A("s_branch G_OREF")
            A("G_ODIS:")
        else:
            A("s_cbranch_scc1 G_OREF")
        for i in range(7, 0, -1):
            A("s_cmp_eq_u32 s59, %d" % i)
            A("s_cbranch_scc1 G_OV%d" % i)
        A("s_branch G_OV0")
        wreg = {fr[n]: WR + 4 * n for n in range(9)}
        nxt = 9
        for i in range(8):
            A("G_OB%d:" % i)
            A("s_bitcmp1_b32 s57, %d" % i)
            A("s_cbranch_scc0 G_OV%d" % i)
            A.wait_vm("o%d" % i)
            ocheck(i)
            A("s_mov_b32 s59, %d" % i)
            A("s_cbranch_vccnz G_OREF")
            A("s_bitset0_b32 s57, %d" % i)
            A("G_OV%d:" % i)
            if A.has_lg("w%d" % i): A.wait_lg("w%d" % i)
            for a in range(2):
                for t in range(2):
                    A(mfma(ACC[a][t], wreg[(i, a)], OR_ + 8 * i + 4 * t))
            for a in range(2):
                if nxt < 16:
                    wreg[fr[nxt]] = wreg[(i, a)]
                    A.lds("ds_read_b128 %s, v3 offset:%d" % (v(wreg[(i, a)], 4), (nxt - 9) * 1024), "w%d" % fr[nxt][0])
                    nxt += 1
        A.vm = []; A.lg = []
        if STAMP: A("s_sub_u32 s96, 0x2000, s58")
if not OL:
    A("s_lshl_b32 s54, s62, 13")
    A("s_add_u32 s54, s54, %d" % (86 * 1024))
    WR, OR_ = 68, 104
    fr = [(i, a) for i in range(8) for a in range(2)]
    for n, (i, a) in enumerate(fr[:9]):
        if i == 4: A("s_add_u32 s54, s54, 4096")
        A("buffer_load_dwordx4 %s, v%d, s[36:39], s54 offen offset:%d @LD" % (v(WR + 4 * n, 4), 164 + a, (i & 3) * 1024))
    A("s_mul_i32 s56, s62, 7168")
    A("s_add_u32 s56, s56, %d" % Z0)
    for n, (i, a) in enumerate(fr[9:]):
        A("s_add_u32 m0, s56, 0x%x" % (((n - (i & 3)) * 1024) & 0xffffffff))
        A("s_nop 0")
        A("buffer_load_dwordx4 v%d, s[36:39], s54 offen offset:%d @LD lds" % (164 + a, (i & 3) * 1024))
    ST.stamp()
    spin(M_O, opt("ow", 8), 0, 4)
    A("v_add_u32 v3, s56, v2")
    A("v_and_b32 v0, 15, v1")
    A("v_lshlrev_b32 v0, %d, v0" % OS)
    A("s_lshl_b32 s57, s26, %d" % (6 + OS))
    A("s_lshl_b32 s58, s62, %d" % (4 + OS))
    A("s_add_u32 s58, s58, s57")
    A("s_add_u32 s58, s58, 0x%x" % OFLAG)
    A("s_lshl_b32 s54, s62, 13")
    A("s_add_u32 s54, s54, s53")
    A("s_add_u32 s54, s54, %d" % (86 * 1024))
    A("s_add_u32 s55, s54, %d" % (NKS * 1024))
    A("s_add_u32 s56, s54, 4096")
    A("s_add_u32 s57, s55, 4096")
    gpoll(0, "s58", 1, 1, "s61", opt("osleep", 2))
    ST.stamp()
    for i in range(8):
        for t in range(2):
            A.vmem("buffer_load_dwordx4 %s, v2, s[36:39], s%d offen offset:%d @LD" % (v(OR_ + 8 * i + 4 * t, 4), 54 + t + 2 * (i >> 2), (i & 3) * 1024), "o%d" % i)
    wreg = {fr[n]: WR + 4 * n for n in range(9)}
    nxt = 9
    for i in range(8):
        A.wait_vm("o%d" % i)
        if A.has_lg("w%d" % i): A.wait_lg("w%d" % i)
        for a in range(2):
            for t in range(2):
                A(mfma(ACC[a][t], wreg[(i, a)], OR_ + 8 * i + 4 * t))
        for a in range(2):
            if nxt < 16:
                wreg[fr[nxt]] = wreg[(i, a)]
                A.lds("ds_read_b128 %s, v3 offset:%d" % (v(wreg[(i, a)], 4), (nxt - 9) * 1024), "w%d" % fr[nxt][0])
                nxt += 1
if OL >= 2:
    ST.stamp()
else:
    A("v_lshrrev_b32 v0, 4, v2")
    A("v_and_b32 v1, 31, v0")
    A("v_mul_u32_u24 v1, 272, v1")
    A("v_lshrrev_b32 v0, 5, v0")
    A("v_lshl_add_u32 v1, v0, 4, v1")
    A("s_mul_i32 s52, s62, %d" % PW)
    A("v_add_u32 v1, s52, v1")
    ST.stamp()
    A("s_barrier")
    A("s_nop 4")
for a in range(2):
    for b in range(2):
        for q in range(4):
            A("ds_write_b128 v%d, %s offset:%d" % (2 if OL >= 2 else 1, v(ACC[a][b] + 4 * q, 4), b * 8704 + a * 128 + q * 32))
A("s_waitcnt lgkmcnt(0)")
A("s_barrier")
A("s_cmp_eq_u32 s2, 0")
A("s_cselect_b32 s52, s62, 0")
A("s_cmp_eq_u32 s52, 3")
A("s_cbranch_scc0 G_END")
A("s_mov_b32 s52, 0x%x" % EPOCH)
flag_store("s52", "s61", 4)
A("G_END:")
A("s_waitcnt vmcnt(0)")
ST.stamp()
if STAMP:
    ST.flush(36, STOFF, 28, 4, nwaves=12)
A("DONE:")
A("s_endpgm")


import subprocess, re
def render(lines):
    out = HEADER + "; @launch grid=(256,1,1) block=(768,1,1) lds=%d\n" % LDS_BYTES
    out += ("\n".join(lines) + "\n").replace(" @LD", " sc1" if opt("ldsc", 0) else "")
    out += '.section .rodata,"a"\n' + kd(NAME, 168)
    return out
def is_insn(l): return l.startswith("    ") and not l.strip().startswith(";") and not l.strip().startswith("@")
def addresses(lines):
    tmp = []
    for i, l in enumerate(lines):
        if l.strip().startswith("@"): continue
        if is_insn(l): tmp.append("ZZ%d:" % i)
        tmp.append(l)
    open("_p.s", "w").write(render(tmp))
    r = subprocess.run(["clang", "-x", "assembler", "-target", "amdgcn-amd-amdhsa", "-mcpu=gfx950", "-c", "_p.s", "-o", "_p.o"], capture_output=True, text=True)
    assert r.returncode == 0, r.stderr[:3000]
    o = subprocess.run(["llvm-readelf", "-s", "-W", "_p.o"], capture_output=True, text=True).stdout
    return {int(m.group(2)): int(m.group(1), 16) for m in re.finditer(r"^\s*\d+: ([0-9a-f]+) .* ZZ(\d+)$", o, re.M)}
lines = list(A.lines)
WSP = opt("warm", 0)
if WSP:
    ad = addresses(lines)
    lab = {l[:-1]: i for i, l in enumerate(lines) if l.endswith(":")}
    nxt = lambda i: min(k for k in ad if k >= i)
    forced = [nxt(lab[n]) for n in ("G_START", "G3_START", "G_JOIN")]
    lo, hi = lab["A_LOOP"] - 2, lines.index("    @LOOPEND")
    pads, last = [], opt("warm0", 256)
    idx = sorted(ad)
    for n, i in enumerate(idx):
        a_ = ad[i]
        if i in forced: pads.append(i); last = a_; continue
        if lo <= i <= hi: continue
        nx = [k for k in idx[n + 1:n + 200] if not lo <= k <= hi]
        if nx and ad[nx[0]] - last > WSP and i > lines.index("    @W0"):
            pads.append(i); last = a_
    reg = lambda i: "A" if i < lab["G_START"] else "G" if i < lab["G3_START"] else "K" if i < lab["G_JOIN"] else "J"
    by = {r_: [i for i in pads if reg(i) == r_] for r_ in "AGKJ"}
    na = len([i for i in by["A"] if i < lab["A_LOOP"]])
    order = by["A"][:na] + by["K"][1:] + by["G"][1:]
    ph1 = {8: [by["G"][0]], 11: [by["K"][0]]}
    for w in (0, 1, 2, 3, 4, 5, 9, 10, 6, 7): ph1[w] = [order.pop(0)]
    n2 = opt("wn2", 0)
    late = by["J"] + by["A"][na:]
    order += late[:n2]
    ph2 = {w: [] for w in (8, 9, 10)}
    for n, i in enumerate(order): ph2[8 + n % 3].append(i)
    ph3 = {11: late[n2:]}
    tgt = {}
    for ph, ret in ((ph1, "WRET1"), (ph2, "WRET2"), (ph3, "WRET3")):
        for w, ch in ph.items():
            for n, i in enumerate(ch): tgt[i] = "WP%d" % ch[n + 1] if n + 1 < len(ch) else ret
    def disp(ph, ret, ws):
        o = ["    s_mov_b64 exec, 0"]
        for w in ws:
            if ph.get(w): o += ["    s_cmp_eq_u32 s28, %d" % w, "    s_cbranch_scc1 WP%d" % ph[w][0]]
        return o + ["%s:" % ret, "    s_mov_b64 exec, -1"]
    new = []
    for i, l in enumerate(lines):
        if l == "    @WARM1": new += disp(ph1, "WRET1", (11, 8, 0, 1, 2, 3, 4, 5, 9, 10, 6, 7)); continue
        if l == "    @WARM2": new += disp(ph2, "WRET2", (8, 9, 10)); continue
        if l == "    @WARM3": new += disp(ph3, "WRET3", (11,)); continue
        if l in ("    @W0", "    @LOOPEND"): continue
        if i in tgt: new += ["WP%d:" % i, "    s_cbranch_execz %s" % tgt[i]]
        new.append(l)
    lines = new
    print("pads", [(reg(i), hex(ad[i])) for i in pads])
    print("ph1", {w: [hex(ad[i]) for i in c] for w, c in ph1.items()}, "ph2", {w: [hex(ad[i]) for i in c] for w, c in ph2.items()}, "ph3", {w: [hex(ad[i]) for i in c] for w, c in ph3.items()})
else:
    lines = [l for l in lines if not l.strip().startswith("@")]
open(sys.argv[1], "w").write(render(lines))
```

```python
import sys, struct
from asmlib import *
def f2u(x): return struct.unpack("<I", struct.pack("<f", x))[0]

OPT = dict(a.split("=") if "=" in a else (a, "1") for a in sys.argv[2:])
STAMP = "stamp" in OPT
def opt(k, d): return type(d)(OPT.get(k, d))

NAME = "parallel_sum__grouped_kv_mqa__dense_activation_relu__prompt_kernel"
KS, HS, OS = opt("ks", 7), opt("hs", 7), opt("os", 7)
EPOCH, KVFLAG, HFLAG, OFLAG = 0x0, 0xC00000, 0xB80000, 0xB00000
KR = opt("kr", 1)
KVF, AF, WT, STOFF = 0x10000, 0x100000, 0x900000, 0xE00000
KVL = 0x40000
LLP = opt('llp', 1)
LLT = opt("llt", 2)
WS_BYTES = 0x2000000 if "dumpxn" in OPT else 0x1000000
NKS = 118
HUGE = 0x7f000000
Y0, X0, Z0 = 0, 65536, 131072
NSLOT = 5
RING = NSLOT * 2048
MISC = Z0 + 3 * RING
M_W, M_Q, M_X, M_C0, M_C1, M_C23, M_F1, M_H, M_TAG, M_KV, M_HOK, M_O, M_QH, M_LOC, M_F1H, M_C2 = [MISC + 4 * i for i in range(16)]
EC = opt('ec', 0)
BAL = opt('bal', 0)
OL = opt('ol', 0)
M_ST = MISC + 64
M_F = [MISC + 576 + 4 * i for i in range(4)]
M_XN = MISC + 592
M_T = MISC + 596
M_TOK = MISC + 600
TF = opt("tf", 0)
TFLAG = 0xB40000
RAW = opt("raw", 0)
GXL = opt("gxl", 1)
ALL = opt("np", 12) == 32 and not RAW
FT = [11, 3, 11, 12] if RAW else [11, 3, 3, 3] if ALL else [12, 3, 11, 11]
WIMG = Z0 if RAW else X0 + 16384
XL = opt("xl2", 0)
assert not (XL and RAW) and (EC or not XL)
def xo(blk, t=0):
    return (blk >> 4) * 32768 + t * 16384 + (blk & 15) * 1024 if XL else blk * 1024 + t * 32768
LDS_BYTES = 163840
PW = 17408
SC = " sc1"

A = Asm()
A('.amdgcn_target "amdgcn-amd-amdhsa--gfx950"')
A(".text")
kernel_begin(A, NAME)
A("s_cmp_ge_u32 s2, 256")
A("s_cbranch_scc1 DONE")
ST = Stamps2(A, STAMP)
CK = opt("ck", 0)
if CK:
    _st = ST.stamp
    ST.stamp = lambda *a, **k: None
def ck(k):
    if CK:
        _st(slot=2 * k); _st(cy=True, slot=2 * k + 1)
ST.stamp()
ck(0)
A("s_load_dwordx16 s[4:19], s[0:1], 0")
A("s_load_dwordx4 s[20:23], s[0:1], 64")
A("s_load_dwordx2 s[24:25], s[0:1], 80")
A("s_and_b32 s26, s2, 7")
A("s_lshl_b32 s26, s26, 2")
A("s_lshr_b32 s27, s2, 3")
A("s_and_b32 s27, s27, 3")
A("s_add_u32 s26, s26, s27")
A("s_lshr_b32 s27, s2, 5")
if opt("jx", 0): A("s_xor_b32 s27, s27, %d" % opt("jx", 0))
A("v_lshrrev_b32 v1, 6, v0")
A("v_mov_b32 v3, %d" % MISC)
A("v_readfirstlane_b32 s28, v1")
A("v_and_b32 v1, 63, v0")
A("v_lshlrev_b32 v2, 4, v1")
A("s_lshl_b32 s29, s26, 3")
A("s_add_u32 s29, s29, s27")
A("v_lshrrev_b32 v4, 3, v1")
A("v_and_b32 v5, 7, v1")
A("v_lshlrev_b32 v6, 10, v4")
A("v_lshl_add_u32 v124, v5, 4, v6")
A("s_lshl_b32 s48, s26, 16")
A("s_lshl_b32 s49, s28, 13")
A("s_add_u32 s48, s48, s49")
KROT = opt("krot", 1)
A("s_lshl_b32 s49, s26, 5" if KROT else "s_mov_b32 s49, 0")
A("s_and_b32 s50, s49, 0x60")
A("v_xor_b32 v100, s50, v124")
A("s_and_b32 s49, s49, 0x380")
A("s_or_b32 s49, s49, s48")
A("s_cmp_eq_u32 s28, 11")
A("s_cbranch_scc0 NOINIT")
for i in range(4): A("v_mov_b32 v%d, 0" % (4 + i))
A("v_add_u32 v8, %d, v2" % MISC)
A("ds_write_b128 v8, v[4:7]")
A("NOINIT:")
A("@WARM1")
A("s_waitcnt lgkmcnt(0)")
ST.stamp(slot=9); ST.n = 1
srd(A, 32, 4, 2048 * 1024)
srd(A, 36, 24, WS_BYTES)
A("s_cmp_ge_u32 s28, 8")
A("s_cbranch_scc1 G_START")

def spin(word, val, tv, sleep=1):
    L = A.label("SP")
    A("s_mov_b32 s31, 0x40000")
    A("%s:" % L)
    A("ds_read_b32 v%d, v3 offset:%d" % (tv, word - MISC))
    A("s_sub_u32 s31, s31, 1")
    A("s_waitcnt lgkmcnt(0)")
    A("v_readfirstlane_b32 s30, v%d" % tv)
    A("s_cbranch_scc1 %s_X" % L)
    A("s_cmp_ge_u32 s30, %d" % val)
    A("s_cbranch_scc1 %s_X" % L)
    A("s_sleep %d" % sleep)
    A("s_branch %s" % L)
    A("%s_X:" % L)
    A.lg = []
def peek(word, tv, tag):
    A.lds("ds_read_b32 v%d, v3 offset:%d" % (tv, word - MISC), tag)
def gate(word, val, tv, tag):
    L = A.label("GT")
    if A.has_lg(tag): A.wait_lg(tag)
    A("v_readfirstlane_b32 s30, v%d" % tv)
    A("s_cmp_ge_u32 s30, %d" % val)
    A("s_cbranch_scc1 %s" % L)
    keep = list(A.lg)
    spin(word, val, tv)
    A.lg = keep
    A("%s:" % L)
def bump(word, tv):
    A("v_mov_b32 v%d, 1" % tv)
    A("s_mov_b64 exec, 1")
    A.lds("ds_add_u32 v3, v%d offset:%d" % (tv, word - MISC), "bump")
    A("s_mov_b64 exec, -1")
def gpoll(av, soff, tv, n, tag, sleep=2):
    L = A.label("GP")
    A("s_mov_b32 s31, 0x1000")
    A("%s:" % L)
    A("buffer_load_dword%s %s, v%d, s[36:39], %s offen sc1" % ("x%d" % n if n > 1 else "", v(tv, n), av, soff))
    A("s_sub_u32 s31, s31, 1")
    A("s_cbranch_scc1 %s_X" % L)
    A("s_waitcnt vmcnt(0)")
    if n == 4:
        for i in range(4): A("v_xor_b32 v%d, %s, v%d" % (tv + i, tag, tv + i))
        A("v_or3_b32 v%d, v%d, v%d, v%d" % (tv, tv, tv + 1, tv + 2))
        A("v_or_b32 v%d, v%d, v%d" % (tv, tv, tv + 3))
        A("v_cmp_ne_u32 vcc, 0, v%d" % tv)
    else:
        A("v_cmp_ne_u32 vcc, %s, v%d" % (tag, tv))
    A("s_cmp_eq_u64 vcc, 0")
    A("s_cbranch_scc1 %s_X" % L)
    A("s_sleep %d" % sleep)
    A("s_branch %s" % L)
    A("%s_X:" % L)
    A("s_waitcnt vmcnt(0)")
    A.vm = []
def read_tag(dst, tv):
    A("ds_read_b32 v%d, v3 offset:%d" % (tv, M_TAG - MISC))
    A("s_waitcnt lgkmcnt(0)")
    A("v_readfirstlane_b32 s%d, v%d" % (dst, tv))
    A.lg = []
def flag_store(soff, tag, tv):
    A("v_mov_b32 v%d, %s" % (tv, tag))
    A("v_mov_b32 v%d, 0" % (tv + 1))
    A("s_mov_b64 exec, 1")
    A("buffer_store_dword v%d, v%d, s[36:39], %s offen sc1" % (tv, tv + 1, soff))
    A("s_mov_b64 exec, -1")
def mfma16(d, a, b, c=None):
    cs = v(d, 4) if c is None else c
    return "v_mfma_f32_16x16x32_bf16 %s, %s, %s, %s" % (v(d, 4), v(a, 4), v(b, 4), cs)

X, F, T0, XR, NM, VXW = 128, 4, 112, 104 + 16, 164, 163
for i in range(8):
    if not KROT:
        A.vmem("buffer_load_dwordx4 %s, v124, s[32:35], s48 offen offset:%d" % (v(X + 4 * i, 4), 128 * i), "x%d" % i)
        continue
    if i: A("s_xor_b32 s50, s49, %d" % (128 * i))
    A.vmem("buffer_load_dwordx4 %s, v100, s[32:35], s%d offen" % (v(X + 4 * i, 4), 50 if i else 49), "x%d" % i)
srd(A, 44, 20, 2048 * 1024)
A("s_lshr_b32 s50, s28, 1")
A("s_lshr_b32 s51, s27, 1")
if opt("pa0", 0): A("s_setprio %d" % opt("pa0", 0))
A("s_cmp_eq_u32 s50, s51")
A("s_cbranch_scc0 A_NOPRIO")
A("s_setprio %d" % opt("pao", 2))
A("A_NOPRIO:")
A("s_lshl_b32 s51, s27, 7")
A("s_add_u32 s48, s48, s51")
if not opt("xl", 0): A.vmem("buffer_load_dwordx4 %s, v124, s[32:35], s48 offen" % v(XR, 4), "xr")
A("s_barrier")
A("@W0")
A("s_lshr_b32 s50, s28, 2")
A("s_lshl_b32 s50, s50, %d" % (14 if XL else 15))
A("s_add_u32 s50, s50, %d" % X0)
A("s_and_b32 s51, s28, 3")
A("s_lshl_b32 s51, s51, 7")
A("s_add_u32 s50, s50, s51")
A("v_xor_b32 v9, v4, v5")
A("v_lshlrev_b32 v9, 4, v9")
A("v_lshl_add_u32 v9, v5, 9, v9")
A("v_add_u32 v%d, s50, v9" % VXW)
A("s_lshl_b32 s50, s28, 6")
A("s_add_u32 s50, s50, %d" % M_ST)
A("v_lshlrev_b32 v10, 3, v4")
A("v_add_u32 v10, s50, v10")
A("v_lshrrev_b32 v12, 4, v1")
A("v_and_b32 v13, 15, v1")
A("v_xor_b32 v160, v13, v12")
A("v_lshlrev_b32 v160, 4, v160")
A("v_lshl_add_u32 v160, v12, 9, v160")
A("s_and_b32 s50, s28, 1")
A("s_lshl_b32 s51, s50, %d" % (14 if XL else 15))
A("s_add_u32 s51, s51, %d" % X0)
A("v_add_u32 v160, s51, v160")
A("v_xor_b32 v161, 64, v160")
A("v_bfe_u32 v14, v1, 2, 2")
A("v_and_b32 v162, 2, v14")
A("v_and_b32 v15, 1, v12")
A("v_or_b32 v162, v162, v15")
A("s_lshr_b32 s51, s28, 1")
A("v_xor_b32 v162, s51, v162")
A("v_lshlrev_b32 v162, 5, v162")
A("v_lshl_add_u32 v14, v12, 3, v14")
A("v_lshl_add_u32 v162, v14, 7, v162")
A("v_and_b32 v15, 3, v1")
A("v_lshl_add_u32 v162, v15, 3, v162")
A("s_lshl_b32 s52, s50, 8")
A("s_add_u32 s52, s52, %d" % M_ST)
A("v_lshlrev_b32 v103, 3, v13")
A("v_add_u32 v103, s52, v103")
A("s_lshl_b32 s56, s26, 1")
A("s_add_u32 s56, s56, s50")
A("s_mul_i32 s56, s56, %d" % NKS)
A("s_lshl_b32 s57, s27, 2")
A("s_add_u32 s56, s56, s57")
A("s_add_u32 s56, s56, s51")
A("s_lshl_b32 s56, s56, 10")
A("s_add_u32 s56, s56, 0x%x" % (AF + 86 * 1024))
A("s_lshl_b32 s57, s29, 3")
A("s_add_u32 s57, s57, s28")
A("s_lshl_b32 s57, s57, %d" % OS)
A("s_add_u32 s57, s57, 0x%x" % OFLAG)
A("s_mov_b32 s58, 0xffff0000")
A("s_mov_b32 s59, 0xffff0000")
A("s_mov_b32 s60, 0")
A("s_mov_b32 s61, 0x%x" % f2u(-64.0))
A("s_lshl_b32 s64, s28, %d" % (10 + LLT))
A("v_lshrrev_b32 v126, 5, v1")
A("v_lshlrev_b32 v126, 9, v126")
A("v_and_b32 v127, 31, v1")
A("v_lshl_add_u32 v126, v127, 3, v126")
A("v_add_u32 v126, s64, v126")
A("v_add_u32 v127, s64, v2")
A("s_lshl_b32 s52, s28, %d" % (11 + LLT))
A("s_add_u32 s52, s52, 0x%x" % KVL)
A("s_add_u32 s53, s52, 4096")
A("s_mov_b32 s54, 0x3f803f80")
QA, QS, QD, CS = 104, 36, 4, 116
Q, K, V, P, C, S, O = 4, 8, [12, 20], 28, 36, [52, 68], 84
MX, TMP, K2 = 100, 101, 112
for i in range(4): A("v_mov_b32 v%d, 0" % (T0 + i))
for i in range(4): A("v_mov_b32 v%d, s54" % (P + i))
SM = opt("sm", 0)
IX = P + 7
def smf(d, a, b): return "v_smfmac_f32_32x32x32_bf16 %s, %s, %s, v%d" % (v(d, 16), v(a, 4), v(b, 8), IX)
if SM: A("v_mov_b32 v%d, 0xdddddddd" % IX)
else:
    A("v_mov_b64 %s, 0" % v(P + 4, 2))
    A("v_mov_b64 %s, 0" % v(P + 6, 2))
A("v_mov_b32 v102, v2")
A("v_mov_b32 v11, 1")
def bump1(word):
    A("s_mov_b64 exec, 1")
    A.lds("ds_add_u32 v3, v11 offset:%d" % (word - MISC), "bump")
    A("s_mov_b64 exec, -1")
for i in range(8):
    A.wait_vm("x%d" % i)
    if i == 0: ST.stamp()
    if i == 7: ST.stamp(slot=12); ST.n = 2
    if RAW:
        A("ds_write_b128 v%d, %s offset:%d" % (VXW, v(X + 4 * i, 4), i * 4096))
        if i == 3: bump1(M_F[0])
        if i == 7: bump1(M_F[2])
    for k in range(4):
        r = X + 4 * i + k
        A("v_dot2c_f32_bf16 v%d, s54, v%d" % (T0 + (k & 1), r))
        A("v_dot2c_f32_bf16 v%d, v%d, v%d" % (T0 + 2 + (k & 1), r, r))
if ALL: peek(M_X, TMP, "fw")
A("s_nop 1")
A("v_add_f32 v%d, v%d, v%d" % (T0, T0, T0 + 1))
A("v_add_f32 v%d, v%d, v%d" % (T0 + 2, T0 + 2, T0 + 3))
for mode in ["quad_perm:[1,0,3,2]", "quad_perm:[2,3,0,1]", "row_half_mirror"]:
    A("s_nop 0")
    A("v_add_f32_dpp v%d, v%d, v%d %s row_mask:0xf bank_mask:0xf" % (T0, T0, T0, mode))
    A("v_add_f32_dpp v%d, v%d, v%d %s row_mask:0xf bank_mask:0xf" % (T0 + 2, T0 + 2, T0 + 2, mode))
def rb(r):
    A("v_cvt_pk_bf16_f32 v%d, v%d, v%d" % (r, r, r))
    A("v_lshlrev_b32 v%d, 16, v%d" % (r, r))
M_, V_ = T0, T0 + 2
A("v_mul_f32 v%d, 0x%x, v%d" % (M_, f2u(1.0 / 512), M_))
A("v_mul_f32 v%d, 0x%x, v%d" % (V_, f2u(1.0 / 512), V_))
A("v_fma_f32 v%d, -v%d, v%d, v%d" % (V_, M_, M_, V_))
A("v_max_f32 v%d, 0, v%d" % (V_, V_))
rb(V_)
A("v_add_f32 v%d, 0x%x, v%d" % (V_, f2u(1e-5), V_))
rb(V_)
A("v_sqrt_f32 v%d, v%d" % (V_, V_))
rb(M_)
rb(V_)
A("v_rcp_f32 v%d, v%d" % (M_ + 1, V_))
A("s_nop 0")
A("v_mul_f32 v%d, v%d, v%d" % (M_, M_, M_ + 1))
A.lds("ds_write_b64 v10, %s" % v(M_, 2), "st")
if RAW: bump1(M_F[3])
if ALL: gate(M_X, 1, TMP, "fw")
A("s_setprio %d" % opt("ap", 0))
ST.stamp()
LLR = ([O + 4 * i for i in range(4)] + [V[0] + 4 * i for i in range(4)])[:4 * LLT]
if ALL: LLR = [X + 4 * i for i in range(4 * LLT)]
def ll_loads(sel=None):
    for i, r in enumerate(LLR):
        if sel is None or i in sel: A("buffer_load_dwordx3 %s, v2, s[36:39], s%d offen offset:%d sc1" % (v(r, 3), 52 + i // 4, (i & 3) * 1024))
def ll_check(t):
    A("s_waitcnt vmcnt(0)")
    for r in LLR: A("v_xor_b32 v%d, v125, v%d" % (r + 3, r + 2))
    z = [r + 3 for r in LLR]
    A("v_or3_b32 v%d, v%d, v%d, v%d" % (z[0], z[0], z[1], z[2]))
    if LLT == 2:
        A("v_or3_b32 v%d, v%d, v%d, v%d" % (z[3], z[3], z[4], z[5]))
        A("v_or3_b32 v%d, v%d, v%d, v%d" % (z[0], z[0], z[6], z[7]))
    A("v_or_b32 v%d, v%d, v%d" % (z[0], z[0], z[3]))
    A("v_cmp_ne_u32 vcc, 0, v%d" % z[0])
norm = ["v_mov_b32 v%d, v%d" % (NM, M_ + 1), "v_mov_b32 v%d, v%d" % (NM + 1, M_ + 1),
        "v_sub_f32 v%d, 0, v%d" % (NM + 2, M_), "v_sub_f32 v%d, 0, v%d" % (NM + 3, M_)]
FN, NP = opt("fn", 6), opt("np", 12)
cut = 4
for i in range(33):
    f0, f1 = F + 2 * (i & 1), F + 2 * ((i - 1) & 1)
    if i == NP: cut = len(norm)
    if i < 32:
        norm.append("v_lshlrev_b32 v%d, 16, v%d" % (f0, X + i))
        norm.append("v_and_b32 v%d, 0xffff0000, v%d" % (f0 + 1, X + i))
    else:
        norm.append("s_nop 0")
    if i > 0: norm.append("v_cvt_pk_bf16_f32 v%d, v%d, v%d" % (X + i - 1, f1, f1 + 1))
    if i < NP: norm.append("v_pk_fma_f32 %s, %s, %s, %s" % (v(f0, 2), v(f0, 2), v(NM, 2), v(NM + 2, 2)))
    elif i < 32:
        for z in range(2): norm.append("v_fma_f32 v%d, v%d, v%d, v%d" % (f0 + z, f0 + z, NM, NM + 2))
    if not RAW and i > 0 and i % 4 == 0:
        norm.append("ds_write_b128 v%d, %s offset:%d" % (VXW, v(X + i - 4, 4), xo(i - 4)))
        if i in (16, 24, 32) and not ALL: norm.append(("bump", M_F[{16: 0, 24: 2, 32: 3}[i]]))
        if i == 32 and ALL: norm.append(("bump", M_F[0])); cut = len(norm)
        if i == 16: cut = max(cut, len(norm))
bumped = set()
def emit(l):
    if isinstance(l, tuple): bump1(l[1]); bumped.add(l[1])
    elif l.startswith("ds_"): A.lds(l, "xw")
    else: A(l)
for l in norm[:cut]: emit(l)
norm = norm[cut:]
if not RAW: ST.stamp(slot=2)
if ALL:
    A("s_mov_b32 s31, 0x40000")
    A("A_F0:")
    A("ds_read_b128 %s, v3 offset:%d" % (v(F, 4), M_F[0] - MISC))
    A("s_sub_u32 s31, s31, 1")
    A("s_waitcnt lgkmcnt(0)")
    A("v_readfirstlane_b32 s30, v%d" % F)
    A("s_cbranch_scc1 A_F0X")
    A("s_cmp_ge_u32 s30, %d" % FT[0])
    A("s_cbranch_scc1 A_F0X")
    A("s_sleep 1")
    A("s_branch A_F0")
    A("A_F0X:")
    A.lg = []
else: spin(M_F[0], FT[0], TMP)
if "pa2" in OPT: A("s_setprio %d" % opt("pa2", 0))
ST.stamp(slot=9); ST.n = 3
ck(1)
if opt("qc", 0): ST.stamp(cy=True, slot=14); ST.n = 3
def qreads(s_):
    b = QS + (s_ % QD) * 12
    A.lds("ds_read_b64_tr_b16 %s, v162 offset:%d" % (v(b, 2), s_ * 4096), "q%d" % s_)
    A.lds("ds_read_b64_tr_b16 %s, v162 offset:%d" % (v(b + 2, 2), s_ * 4096 + 512), "q%d" % s_)
    A.lds("ds_read_b128 %s, v%d offset:%d" % (v(b + 4, 4), 160 + (s_ & 1), xo(2 * s_)), "q%d" % s_)
    A.lds("ds_read_b128 %s, v%d offset:%d" % (v(b + 8, 4), 160 + (s_ & 1), xo(2 * s_) + 256), "q%d" % s_)
def init_list():
    L = ["v_mov_b64 %s, 0" % v(O + 2 * i, 2) for i in range(7)]
    L += ["v_and_b32 v%d, 27, v1" % V[0], "v_cmp_eq_u32 vcc, 0, v%d" % V[0], "v_mov_b32 v%d, s54" % (V[0] + 1), "v_mov_b64 %s, 0" % v(O + 14, 2),
          "v_cndmask_b32 v%d, 0, v%d, vcc" % (V[0], V[0] + 1), "v_mov_b32 v%d, v%d" % (V[0] + 1, V[0])]
    L += ["v_mov_b64 %s, %s" % (v(V[0] + 2 * i, 2), v(V[0], 2)) for i in range(1, 8)]
    return L
def init_regs():
    for l in init_list() + ([] if SM else ["v_mov_b64 %s, 0" % v(P + 4, 2), "v_mov_b64 %s, 0" % v(P + 6, 2)]): A(l)
QST = 112
if ALL: norm = init_list(); FN = 2
for s_ in range(QD - 1):
    if s_ == 2 and not ALL: peek(M_F[1], TMP, "f1")
    qreads(s_)
for s_ in range(16):
    if A.has_lg("q%d" % s_): A.wait_lg("q%d" % s_)
    n_ = s_ + QD - 1
    if n_ < 16:
        if n_ % 4 == 0 and n_ >= 8 and not RAW and not ALL:
            while M_F[n_ // 4] not in bumped: emit(norm.pop(0)); print("late fill", n_)
        if n_ % 4 == 0 and KROT: gate(M_F[n_ // 4], FT[n_ // 4], F + n_ // 4 if ALL else TMP, "f%d" % (n_ // 4))
        if n_ % 4 == 2 and n_ < 12 and not ALL: peek(M_F[n_ // 4 + 1], TMP, "f%d" % (n_ // 4 + 1))
        qreads(n_)
        if n_ == 12:
            A.lds("ds_read_b32 v125, v3 offset:%d" % (M_TAG - MISC), "q12")
        if n_ == 13 and RAW:
            A.lds("ds_read_b64 %s, v103" % v(QST, 2), "q13")
            A.lds("ds_read_b64 %s, v103 offset:128" % v(QST + 2, 2), "q13")
        if n_ == 7: bump1(M_QH)
        if n_ == 15: bump1(M_Q); peek(M_QH, TMP, "q15")
    lps = opt("lps", 8)
    if s_ >= LLP: ll_loads(range((s_ - LLP) * lps, (s_ - LLP + 1) * lps))
    b = QS + (s_ % QD) * 12
    now, norm = norm[:FN], norm[FN:]
    f3 = (FN + 2) // 3 if RAW else 0
    f2 = 2 * f3 if RAW else (len(now) + 1) // 2
    if RAW: A(mfma16(CS, b, P, "0" if s_ == 0 else None))
    for l in now[:f3]: emit(l)
    A(mfma16(QA, b, b + 4, "0" if s_ == 0 else None))
    for l in now[f3:f2]: emit(l)
    A(mfma16(QA + 4, b, b + 8, "0" if s_ == 0 else None))
    for l in now[f2:]: emit(l)
    left = len(now) + len(norm)
    if s_ == 15: ST.stamp(slot=13); ST.n = 3
ll_loads(range(max(0, 16 - LLP) * lps, 8))
for l in norm: A(l)
if left < 7: A("s_nop %d" % (6 - left))
A("v_readfirstlane_b32 s55, v125")
for h_ in range(2 if RAW else 0):
    for i in range(4): A("v_mul_f32 v%d, v%d, v%d" % (NM + i if h_ == 0 else CS + i, QST + 2 * h_, CS + i))
for h_ in range(2 if RAW else 0):
    for i in range(4): A("v_fma_f32 v%d, v%d, v%d, -v%d" % (QA + 4 * h_ + i, QA + 4 * h_ + i, QST + 2 * h_ + 1, NM + i if h_ == 0 else CS + i))
for i in range(4): A("v_cvt_pk_bf16_f32 v%d, v%d, v%d" % (Q + i, QA + 2 * i, QA + 2 * i + 1))
A("s_mov_b32 s31, 0x1000")
A("s_nop 0")
A("v_permlane16_swap_b32 v%d, v%d" % (Q, Q + 2))
A("v_permlane16_swap_b32 v%d, v%d" % (Q + 1, Q + 3))
ST.stamp(slot=3)
if opt("qc", 0): ST.stamp(cy=True, slot=15); ST.n = 3
A("A_LLW:")
ll_check(0)
A("s_cbranch_vccz A_LLOK")
A("s_sub_u32 s31, s31, 1")
A("s_cbranch_scc1 A_LLOK")
if opt("lls", 0): A("s_sleep %d" % opt("lls", 0))
ll_loads()
A("s_branch A_LLW")
A("A_LLOK:")
A.vm = []
ST.stamp(slot=4)
gate(M_QH, 8, TMP, "q15")
for i, r in enumerate(LLR):
    t_, kind, u = i >> 2, i & 1, (i >> 1) & 1
    A("ds_write_b64 v126, %s offset:%d" % (v(r, 2), t_ * 2048 + (u * 256 if kind == 0 else 1024 + (1 - u) * 256)))
bump1(M_C0)
A("ds_read_b128 %s, v127" % v(K, 4))
if LLT == 2: A("ds_read_b128 %s, v127 offset:2048" % v(K2, 4))
ST.stamp(slot=10)
if not ALL:
    for l in init_list(): A(l)
A("s_waitcnt lgkmcnt(0)")
A(mfma(S[0], K, Q, "0"))
if LLT == 2: A(mfma(S[1], K2, Q, "0"))
A.lg = []
spin(M_C0, 8, TMP)
ST.stamp(slot=11); ST.n = 5
A("ds_read_b128 %s, v102" % v(K, 4))
A("s_nop 2")
A("v_max3_f32 v%d, v%d, v%d, v%d" % (MX, S[0], S[0] + 1, S[0] + 2))
A("v_max3_f32 v%d, v%d, v%d, v%d" % (TMP, S[0] + 3, S[0] + 4, S[0] + 5))
for i in range(5):
    A("v_max3_f32 v%d, v%d, v%d, v%d" % ((MX, TMP)[i & 1], S[0] + 6 + 2 * i, S[0] + 7 + 2 * i, (MX, TMP)[i & 1]))
for i in range(8 if LLT == 2 else 0):
    A("v_max3_f32 v%d, v%d, v%d, v%d" % ((MX, TMP)[i & 1], S[1] + 2 * i, S[1] + 2 * i + 1, (MX, TMP)[i & 1]))
A("v_max_f32 v%d, v%d, v%d" % (MX, MX, TMP))
A("A_GO:")
A("v_mov_b32 v%d, v%d" % (TMP, MX))
A("s_mov_b64 exec, s[58:59]")
A("ds_read_b128 %s, v102 offset:1024" % v(V[0], 4))
A("ds_read_b128 %s, v102 offset:768" % v(V[0] + 4, 4))
A("s_mov_b64 exec, -1")
A("v_permlane32_swap_b32 v%d, v%d" % (MX, TMP))
A("s_nop 1")
A("v_max_f32 v%d, v%d, v%d" % (MX, MX, TMP))
A("v_sub_f32 v%d, s61, v%d" % (C, MX))
A("v_sub_f32 v%d, s61, v%d" % (C + 1, MX))
for i in range(1, 8): A("v_mov_b64 %s, %s" % (v(C + 2 * i, 2), v(C, 2)))
A("s_waitcnt lgkmcnt(2)")
A(mfma(S[0], K, Q, C))
A("ds_read_b128 %s, v102 offset:2048" % v(K, 4))
for i in range(4 if SM else 0): A("v_mov_b64 %s, 0" % v(S[1] + 8 + 2 * i, 2))
S0 = 4 * LLT - 1
if EC:
    SEG = [(S0, None, 2), (15 - S0, (M_C1, 1), None), (8 if XL else 4, (M_C2, 1), None), (opt("p1", 4), (M_C23, 4), None), (opt("p2", 7), None, opt("q2", 1)), (opt("p3", 2), None, opt("q3", 0))]
else:
    SEG = [(S0, None, 2), (15 - S0, (M_C1, 1), None), (opt("p1", 8), (M_C23, 4), None), (opt("p2", 7), None, 1), (opt("p3", 2), None, 0)]
SEG = [x for x in SEG if x[0]]
assert sum(x[0] for x in SEG) == 32
if opt("xl", 0): A("buffer_load_dwordx4 %s, v124, s[32:35], s48 offen" % v(XR, 4))
if opt("ot", 0): A("buffer_load_dword v127, v124, s[44:47], s48 offen")
U2 = opt("u2", 0)
assert not U2 or (SM and SEG[0][0] & 1)
A("s_mov_b32 s62, %d" % ((SEG[0][0] + 1) // 2 if U2 else SEG[0][0]))
A("s_mov_b32 s63, 0")
A("s_setprio %d" % SEG[0][2])
ST.stamp()
if not opt("qc", 0): ST.stamp(cy=True, slot=14)
ST.n = 6
ck(2)
if not RAW:
    A("s_cmp_lt_u32 s28, 4")
    A("s_nop %d" % (2 if SM else 6))
    if BAL: A("s_cbranch_scc1 A_LOOPX%s" % ("M" if U2 else ""))
    if U2: A("s_branch A_LOOPM")
else:
    A("s_cmp_eq_u32 s60, 64")
    A("s_nop 4")
    A("s_cbranch_scc1 A_LOOP")
if not RAW: pass
elif opt("pp", 1):
    A("s_cmp_lt_u32 s28, 4")
    A("s_cbranch_scc1 A_PEEL")
    A("s_setprio 3")
    A("A_PEEL:")
else: A("s_nop 1")
def body(name, marks, peel=False):
    if not peel:
        A(".p2align 6")
        A("%s:" % name)
    n = [0]
    def E(x):
        if n[0] % 32 in marks: A("s_setprio %d" % marks[n[0] % 32])
        n[0] += 1
        A(x)
    for p in ((2, 3, 0, 1) if U2 else (0, 1)):
        if U2 and p == 0: A("%sM:" % name)
        Sc, Sn, Vc, Vp = S[p & 1], S[1 - (p & 1)], V[p & 1], V[1 - (p & 1)]
        e = lambda i: E("v_exp_f32 v%d, v%d" % (Sc + i, Sc + i))
        c = lambda i: A("v_cvt_pk_bf16_f32 v%d, v%d, v%d" % (P + i, Sc + 2 * i, Sc + 2 * i + 1))
        if SM:
            for i in range(16):
                if i == opt("sma", 2):
                    A(smf(O, Vp + 4, Sn + 8))
                    A("s_mov_b64 exec, s[58:59]")
                    A("ds_read_b128 %s, v102 offset:%d" % (v(Vp, 4), (p + 1) * 2048 + 1024))
                    A("ds_read_b128 %s, v102 offset:%d" % (v(Vp + 4, 4), (p + 1) * 2048 + 768))
                    A("s_mov_b64 exec, -1")
                if i == opt("smb", 6):
                    A("s_waitcnt lgkmcnt(2)")
                    A(mfma(Sn, K, Q, C))
                    A("ds_read_b128 %s, v102 offset:%d" % (v(K, 4), (p + 2) * 2048))
                if i == opt("smc", 12): A(smf(O, Vc, Sc))
                if i == 14 and p == 3: A("v_add_u32 v102, 8192, v102")
                if i == 14 and p == 1:
                    if not U2: A("v_add_u32 v102, 4096, v102")
                    A("s_sub_u32 s62, s62, 1")
                    A("s_cmp_lg_u32 s62, 0")
                e(i)
            continue
        w = lambda i: A("ds_write_b128 v%d, %s offset:%d" % (VXW, v(X + 16 * p + 4 * i, 4), (4 * p + i) * 4096)) if peel else None
        A("s_waitcnt lgkmcnt(%d)" % (4 if peel and p else 0))
        A(mfma(Sn, K, Q, C))
        A("ds_read_b128 %s, v102 offset:%d" % (v(K, 4), (p + 2) * 2048))
        e(0); e(1); e(2); e(3); c(0); e(4)
        A(mfma(O, Vp + 4, P + 4))
        A("s_mov_b64 exec, s[58:59]")
        A("ds_read_b128 %s, v102 offset:%d" % (v(Vp, 4), (p + 1) * 2048 + 1024))
        A("ds_read_b128 %s, v102 offset:%d" % (v(Vp + 4, 4), (p + 1) * 2048 + 768))
        A("s_mov_b64 exec, -1")
        e(5); w(0); c(1); e(6); w(1); e(7); c(2); e(8); w(2); c(3); e(9); w(3); e(10)
        if peel and p: bump(M_XN, TMP); A("s_setprio %d" % SEG[0][2])
        A(mfma(O, Vc, P))
        e(11); c(4); e(12); e(13); c(5); e(14); e(15)
        if p == 1:
            A("v_add_u32 v102, 4096, v102")
            A("s_sub_u32 s62, s62, 1")
            A("s_cmp_lt_u32 s28, 4" if peel else "s_cmp_lg_u32 s62, 0")
        c(6); c(7)
    if not peel: A("s_cbranch_scc1 %s" % name)
    elif BAL: A("s_cbranch_scc1 A_LOOPX")
if RAW: body("A_PEEL", {}, True)
A.lg = []
body("A_LOOP", {})
if BAL:
    A("s_branch A_SEGS")
    body("A_LOOPX", {0: 3, BAL: 1})
    A("@LOOPEND")
    A("A_SEGS:")
else:
    A("@LOOPEND")
A("s_add_u32 s63, s63, 1")
A("s_cmp_eq_u32 s63, %d" % len(SEG))
A("s_cbranch_scc1 A_SEG%d" % (len(SEG) - 1))
plain = False
for i, (n, chk, pr) in enumerate(SEG[1:], 1):
    A("s_cmp_eq_u32 s63, %d" % i)
    A("s_cbranch_scc0 A_SEG%d" % i)
    sg = opt("sg", 0)
    if i in (1, 2, 4): ck({1: 3, 2: 4, 4: 5}[i])
    if sg and chk and i - sg in (0, 1): ST.stamp(slot=(1, 9)[i - sg])
    if chk: spin(chk[0], chk[1], TMP)
    if sg and chk and i - sg in (0, 1): ST.stamp(slot=(12, 13)[i - sg]); ST.n = 6
    if sg and i - sg == 2: ST.stamp(slot=10); ST.n = 6
    if pr is not None: A("s_setprio %d" % pr); plain = True
    A("s_mov_b32 s62, %d" % ((n + 1) // 2 if U2 else n))
    mid = "M" if U2 and n & 1 else ""
    if mid: A("v_add_u32 v102, 4096, v102")
    if BAL and not plain:
        A("s_cmp_lt_u32 s28, 4")
        A("s_cbranch_scc1 A_LOOPX" + mid)
    A("s_branch A_LOOP" + mid)
    A("A_SEG%d:" % i)
if opt("fp", 0): A("s_setprio 3")
ck(6)
A(smf(O, V[1] + 4, S[1] + 8) if SM else mfma(O, V[1] + 4, P + 4))
ST.stamp()
if not opt("qc", 0): ST.stamp(cy=True, slot=15)
ST.n = 7
if opt("fc", 0):
    A("s_waitcnt vmcnt(0) lgkmcnt(0)")
    A("ds_read_b32 v103, v3 offset:%d" % (M_LOC - MISC))
    A("v_mov_b32 v%d, 0x%x" % (S[0] + 4, f2u(2.0 ** -100)))
    A("v_mov_b32 v%d, 0x%x" % (S[0] + 5, f2u(2.0 ** 125)))
    R = 8
    for i in range(4):
        A("v_lshlrev_b32 v%d, 16, v%d" % (S[1] + 2 * i, XR + i))
        A("v_and_b32 v%d, 0xffff0000, v%d" % (S[1] + 2 * i + 1, XR + i))
    A("s_nop 0")
    o_ = lambda i: "|v%d|" % (O + 8 + i)
    A("v_rcp_f32 v%d, v%d" % (MX, O))
    A("v_maximum3_f32 v%d, %s, %s, %s" % (S[0], o_(0), o_(1), o_(2)))
    A("v_minimum3_f32 v%d, %s, %s, %s" % (S[0] + 1, o_(0), o_(1), o_(2)))
    A("v_maximum3_f32 v%d, %s, %s, %s" % (S[0] + 2, o_(3), o_(4), o_(5)))
    A("v_minimum3_f32 v%d, %s, %s, %s" % (S[0] + 3, o_(3), o_(4), o_(5)))
    A("v_maximum3_f32 v%d, %s, %s, v%d" % (S[0], o_(6), o_(7), S[0]))
    A("v_minimum3_f32 v%d, %s, %s, v%d" % (S[0] + 1, o_(6), o_(7), S[0] + 1))
    A("v_maximum3_f32 v%d, v%d, v%d, v%d" % (S[0], O, S[0] + 2, S[0]))
    A("v_minimum3_f32 v%d, v%d, v%d, v%d" % (S[0] + 1, O, S[0] + 3, S[0] + 1))
    A("v_cmp_lt_f32 s[64:65], v%d, v%d" % (S[0], S[0] + 5))
    A("v_cmp_gt_f32 vcc, v%d, v%d" % (S[0] + 1, S[0] + 4))
    for i in range(8): A("v_mul_f32 v%d, v%d, v%d" % (O + 8 + i, O + 8 + i, MX))
    A("s_and_b64 s[64:65], s[64:65], vcc")
    A("s_waitcnt lgkmcnt(0)")
    A("v_readfirstlane_b32 s30, v103")
    for i in range(4): A("v_cvt_pk_bf16_f32 v%d, v%d, v%d" % (P + i, O + 8 + 2 * i, O + 9 + 2 * i))
    A("s_cmp_eq_u64 s[64:65], -1")
    A("s_cbranch_scc1 A_FIN")
    A("s_cmp_eq_u32 s60, 64")
    A("s_cbranch_scc1 A_FIN")
else:
    A("s_waitcnt vmcnt(0) lgkmcnt(0)")
    if OL: A("ds_read_b32 v103, v3 offset:%d" % (M_LOC - MISC))
    A("v_mov_b32 v%d, 0x108" % TMP)
    A("s_cmp_eq_u32 s60, 64")
    A("s_nop 9")
    A("v_rcp_f32 v%d, v%d" % (MX, O))
    A("s_cbranch_scc1 A_FIN")
    A("v_mul_f32 v%d, 4.0, v%d" % (S[0], O))
    A("v_cmp_class_f32 s[64:65], v%d, v%d" % (S[0], TMP))
    for i in range(8):
        A("v_mul_f32 v%d, 0x%x, v%d" % (S[0] + 1 + i, f2u(2.0 ** -26), O + 8 + i))
        A("v_cmp_class_f32 vcc, v%d, v%d" % (S[0] + 1 + i, TMP))
        A("s_and_b64 s[64:65], s[64:65], vcc")
    A("s_cmp_eq_u64 s[64:65], -1")
    A("s_cbranch_scc1 A_FIN")
A("s_mov_b32 s60, 64")
A("s_mov_b32 s61, 0")
A("v_mov_b32 v102, v2")
A("v_mov_b32 v%d, 0xff800000" % MX)
A("s_mov_b32 s62, 64")
A("A_PRE:")
A("ds_read_b128 %s, v102" % v(K, 4))
A("v_add_u32 v102, 2048, v102")
A("s_waitcnt lgkmcnt(0)")
A(mfma(S[0], K, Q, "0"))
A("s_nop 12")
for i in range(8):
    A("v_max3_f32 v%d, v%d, v%d, v%d" % (MX, S[0] + 2 * i, S[0] + 2 * i + 1, MX))
A("s_sub_u32 s62, s62, 1")
A("s_cmp_lg_u32 s62, 0")
A("s_cbranch_scc1 A_PRE")
init_regs()
A("v_mov_b32 v102, v2")
A("ds_read_b128 %s, v102" % v(K, 4))
A("s_branch A_GO")
A("A_FIN:")
if not opt("fc", 0):
    if OL:
        A("s_waitcnt lgkmcnt(0)")
        A("v_readfirstlane_b32 s30, v103")
    for i in range(8): A("v_mul_f32 v%d, v%d, v%d" % (O + 8 + i, O + 8 + i, MX))
    for i in range(4): A("v_cvt_pk_bf16_f32 v%d, v%d, v%d" % (P + i, O + 8 + 2 * i, O + 9 + 2 * i))
if OL:
    A("s_cmp_eq_u32 s30, 1")
    A("s_cbranch_scc1 A_OLOC")
    A("buffer_store_dwordx4 %s, v2, s[36:39], s56 offen sc1" % v(P, 4))
    A("s_branch A_ODONE")
    A("A_OLOC:")
    A("buffer_store_dwordx4 %s, v2, s[36:39], s56 offen" % v(P, 4))
    A("A_ODONE:")
else:
    A("buffer_store_dwordx4 %s, v2, s[36:39], s56 offen sc1" % v(P, 4))
if opt("owt", 0):
    A("s_cmp_lt_u32 s28, 4")
    A("s_cselect_b32 s30, 17, 1")
    A("v_mov_b32 v6, s30")
    A("s_mov_b64 exec, 1")
    A.lds("ds_add_u32 v3, v6 offset:%d" % (M_O - MISC), "bump")
    A("s_mov_b64 exec, -1")
else: bump(M_O, 6)
A("s_mul_i32 s50, s28, %d" % (8 * 272))
A("v_lshrrev_b32 v4, 3, v1")
A("v_mul_u32_u24 v4, 272, v4")
A("v_and_b32 v5, 7, v1")
A("v_lshl_add_u32 v4, v5, 5, v4")
A("v_add_u32 v4, s50, v4")
R = S[1] if opt("fc", 0) else 8
for i in range(0 if opt("fc", 0) else 4):
    A("v_lshlrev_b32 v%d, 16, v%d" % (R + 2 * i, XR + i))
    A("v_and_b32 v%d, 0xffff0000, v%d" % (R + 2 * i + 1, XR + i))
if not OL:
    A("s_waitcnt vmcnt(0)")
    flag_store("s57", "s55", 6)
ST.stamp()
if OL < 2: A("s_barrier")
A("s_barrier")
for p in range(4):
    for hh in range(2):
        A("ds_read_b128 %s, v4 offset:%d" % (v(16 + p * 8 + hh * 4, 4), p * PW + hh * 16))
for p in range(4):
    A("s_waitcnt lgkmcnt(%d)" % (6 - 2 * p))
    for i in range(4):
        A("v_pk_add_f32 %s, %s, %s" % (v(R + 2 * i, 2), v(R + 2 * i, 2), v(16 + p * 8 + 2 * i, 2)))
for i in range(4): A("v_cvt_pk_bf16_f32 v%d, v%d, v%d" % (XR + i, R + 2 * i, R + 2 * i + 1))
A("buffer_store_dwordx4 %s, v124, s[44:47], s48 offen" % v(XR, 4))
if STAMP:
    A("s_waitcnt vmcnt(0)")
    ST.stamp()
    ck(7)
    ST.flush(36, STOFF, 28, 4, nwaves=12)
A("s_endpgm")
A.vm = []; A.lg = []

A("G_START:")
A("s_setprio 3")
A("s_sub_u32 s62, s28, 8")
A("s_cmp_eq_u32 s62, 3")
A("s_cbranch_scc1 G3_START")
ST.n = 1
ACC = [[4, 20], [36, 52]]
WF = [[68, 72], [76, 80]]
XF = [[84, 88], [92, 96]]
VD1, VD2, VT1, VT2, VW0, VW1, VP0, VP1, VX = 100, 101, 102, 103, 104, 105, 106, 107, 108
PK = 112
srd(A, 40, 16, 512 * 2752)
srd(A, 48, 12, 512 * 1024)
A("s_lshl_b32 s52, s62, 5")
A("s_add_u32 s52, s52, s26")
A("s_cmp_lt_u32 s52, 86")
A("s_cselect_b32 s44, s18, s12")
A("s_cselect_b32 s45, s19, s13")
A("s_mov_b32 s46, 0x%x" % (512 * 1024))
A("s_cselect_b32 s46, 0x%x, s46" % (1376 * 1024))
A("s_mov_b32 s47, 0x00020000")
A("s_cselect_b32 s53, 0, 86")
A("s_sub_u32 s53, s52, s53")
A("s_lshl_b32 s53, s53, 14")
A("s_lshl_b32 s54, s27, 7")
A("s_add_u32 s53, s53, s54")
A("s_mul_i32 s55, s27, %d" % (2 * NKS))
A("s_add_u32 s56, s55, s52")
A("s_lshl_b32 s56, s56, 10")
A("s_add_u32 s56, s56, 0x%x" % WT)
A("s_add_u32 s57, s26, 10")
A("s_lshl_b32 s57, s57, 14")
A("s_add_u32 s57, s57, s54")
A("s_add_u32 s58, s55, s26")
A("s_lshl_b32 s58, s58, 10")
A("s_add_u32 s58, s58, 0x%x" % (WT + 96 * 1024))
A("s_cmp_lt_u32 s26, 22")
A("s_cselect_b32 s59, s62, 0")
A("s_cmp_eq_u32 s59, 2")
A("s_cselect_b32 s57, s57, 0x%x" % HUGE)
A("s_cselect_b32 s58, s58, 0x%x" % HUGE)
A("s_mul_i32 s59, s27, 3")
A("s_lshl_b32 s60, s27, 1")
A("s_add_u32 s60, s60, 6")
A("s_cmp_lt_u32 s27, 6")
A("s_cselect_b32 s59, s59, s60")
A("s_cselect_b32 s61, 0, s62")
A("s_add_u32 s59, s59, s62")
A("s_lshl_b32 s60, s59, 7")
A("s_cmp_eq_u32 s61, 2")
A("s_cselect_b32 s60, 0x%x, s60" % HUGE)
A("s_mul_i32 s63, s62, %d" % RING)
A("s_add_u32 s63, s63, %d" % Z0)
A("v_lshrrev_b32 v4, 3, v1")
A("v_and_b32 v5, 2, v4")
A("v_lshlrev_b32 v5, 1, v5")
A("v_and_b32 v6, 7, v1")
A("v_xor_b32 v5, v5, v6")
A("v_lshlrev_b32 v5, 4, v5")
A("v_lshl_add_u32 v%d, v4, 10, v5" % VT1)
A("v_add_u32 v%d, %d, v%d" % (VT2, 8192 - 1024, VT1))
A("v_mul_u32_u24 v%d, 2752, v4" % VD1)
A("v_add_u32 v%d, v%d, v5" % (VD1, VD1))
A("v_add_u32 v%d, %d, v%d" % (VD2, 8 * 2752 - 1024, VD1))
def dma(e):
    A("s_add_u32 m0, s63, %d" % ((e % NSLOT) * 2048))
    if e == 0: sr, so, a, b = 44, "s53", VT1, VT2
    elif e == 1: sr, so, a, b = 48, "s57", VT1, VT2
    else: sr, so, a, b = 40, "s3", VD1, VD2
    if e >= 2:
        if KROT:
            A("s_xor_b32 s3, s26, %d" % (e - 2))
            A("s_mul_i32 s3, s3, %d" % (16 * 2752))
            A("s_add_u32 s3, s3, s60")
        else: A("s_add_u32 s3, s60, %d" % ((e - 2) * 16 * 2752))
    else: A("s_nop 0")
    A.vmem("buffer_load_dwordx4 v%d, %s, %s offen lds" % (a, s(sr, 4), so), "E%d" % e)
    A.vmem("buffer_load_dwordx4 v%d, %s, %s offen offset:1024 lds" % (b, s(sr, 4), so), "E%d" % e)
A("s_barrier")
srd(A, 64, 6, 512 * 1024)
A("v_and_b32 v7, 2, v4")
A("s_and_b32 s30, s62, 1")
A("v_or_b32 v7, s30, v7")
A("v_lshlrev_b32 v7, 1, v7")
A("v_xor_b32 v7, v7, v6")
A("v_lshlrev_b32 v7, 4, v7")
A("v_lshl_add_u32 v7, v4, 10, v7")
A("v_xor_b32 v8, 32, v7")
A("s_lshl_b32 s30, s62, 13")
A("s_add_u32 s30, s30, s54")
A("s_lshl_b32 s31, s62, 10")
A("s_lshl_b32 s69, s26, 14")
A("s_lshl_b32 s68, s26, 11")
for i in range(22):
    if i == 21:
        A("s_cmp_eq_u32 s62, 0")
        A("s_cbranch_scc0 G_WQD")
    if KROT: A("s_add_u32 m0, s31, %d" % (Y0 + i * 3072))
    else:
        A("s_xor_b32 m0, s31, s68")
        A("s_add_u32 s31, s31, 3072")
    A("s_xor_b32 s3, s30, s69")
    A.vmem("buffer_load_dwordx4 v%d, s[64:67], s3 offen lds" % (7 + (i & 1)), "wq")
    A("s_add_u32 s30, s30, %d" % (3 * 8192))
A("G_WQD:")
if not opt("w2l", 0): A("@WARM2")
for h_, n_ in enumerate((16, 10, 5, 0) if KROT else (0,)):
    A("s_waitcnt vmcnt(%d)" % n_)
    bump(M_F[h_], 9)
    if h_ == 0: ST.stamp(slot=14)
if opt("w2l", 0): A("@WARM2")
A.vm = []
spin(M_W, 1, 9)
def touch():
    A("s_and_b32 s30, s29, 31")
    A("s_mul_i32 s30, s30, %d" % (16 * 2752))
    A("s_lshl_b32 s31, s62, 14")
    A("s_add_u32 s30, s30, s31")
    A("s_add_u32 s31, s30, 8192")
    A("v_lshlrev_b32 v9, 7, v1")
    A.vmem("buffer_load_dword v10, v9, s[40:43], s30 offen", "pf")
    A.vmem("buffer_load_dword v11, v9, s[40:43], s31 offen", "pf")
PF = opt("pf", 0)
if PF == 2: touch()
if PF == 3: spin(M_QH, 8, 9, 2); touch()
if opt("rd", 0) == 1: spin(M_QH, 8, 9, 2)
if opt("rd", 0) == 2: spin(M_Q, 8, 9, 2)
if opt("rd", 0) == 3: spin(M_C0, 8, 9, 2)
for e_ in range(NSLOT): dma(e_)
if PF == 1: touch()
ST.stamp(slot=10); ST.n = 1
A("v_lshrrev_b32 v4, 5, v1")
A("v_bfe_u32 v5, v1, 2, 2")
A("v_bfe_u32 v6, v1, 4, 1")
A("v_and_b32 v7, 2, v5")
A("v_or_b32 v6, v6, v7")
A("v_lshlrev_b32 v6, 5, v6")
A("v_and_b32 v7, 3, v1")
A("v_lshl_add_u32 v6, v7, 3, v6")
A("v_lshl_add_u32 v6, v5, 7, v6")
A("v_add_u32 v6, s63, v6")
A("v_lshl_add_u32 v%d, v4, 10, v6" % VW0)
A("v_xor_b32 v%d, 64, v%d" % (VW1, VW0))
A("v_lshl_add_u32 v%d, v4, 9, v6" % VP0)
A("v_xor_b32 v%d, 64, v%d" % (VP1, VP0))
A("v_and_b32 v5, 31, v1")
for m in range(4):
    A("v_or_b32 v6, %d, v4" % (2 * m))
    A("v_xor_b32 v6, v6, v5")
    A("v_lshlrev_b32 v6, 4, v6")
    A("v_lshl_add_u32 v6, v4, 9, v6")
    A("v_add_u32 v%d, %d, v6" % (VX + m, X0))
for e_ in range(2):
    A.wait_vm("E%d" % e_)
    for a in range(2):
        A.lds("ds_read_b64_tr_b16 %s, v%d offset:%d" % (v(PK + e_ * 8 + a * 4, 2), VP0 + a, e_ * 2048), "t")
        A.lds("ds_read_b64_tr_b16 %s, v%d offset:%d" % (v(PK + e_ * 8 + a * 4 + 2, 2), VP0 + a, e_ * 2048 + 1024), "t")
    A.wait_lg0()
    d = 56 + 2 * e_
    A.vmem("buffer_store_dwordx4 %s, v2, s[36:39], s%d offen sc1" % (v(PK + e_ * 8, 4), d), "TS")
    A("s_add_u32 s%d, s%d, %d" % (d, d, NKS * 1024))
    A.vmem("buffer_store_dwordx4 %s, v2, s[36:39], s%d offen sc1" % (v(PK + e_ * 8 + 4, 4), d), "TS")
    dma(e_ + NSLOT)
ST.stamp()
A("s_mul_i32 s52, s26, %d" % (2 * NKS))
A("s_lshl_b32 s53, s59, 2")
A("s_add_u32 s52, s52, s53")
A("s_lshl_b32 s52, s52, 10")
A("s_add_u32 s52, s52, 0x%x" % AF)
A("s_add_u32 s53, s52, %d" % (NKS * 1024))
A("s_cmp_eq_u32 s59, 21")
A("s_cselect_b32 s54, 0x%x, s52" % HUGE)
A("s_cselect_b32 s55, 0x%x, s53" % HUGE)
A("s_cmp_eq_u32 s61, 2")
A("s_cbranch_scc1 %s" % ("G_F1IDLE" if EC else "G_F1DONE"))
spin(M_XN if RAW else (M_F[0 if ALL else 3], M_QH, M_Q, M_C0)[opt("gq", 2)], 11 if not RAW and opt("gq", 2) == 0 else 8, 4, 2)
if not RAW and not ALL and opt("gq", 2) == 1: spin(M_F[3], 11, 4)
ST.stamp()
def reads(s_):
    p = s_ & 1
    e_ = s_ + 2
    A.wait_vm("E%d" % e_)
    off = (e_ % NSLOT) * 2048
    for a in range(2):
        A.lds("ds_read_b64_tr_b16 %s, v%d offset:%d" % (v(WF[p][a], 2), VW0 + a, off), "r%d" % s_)
        A.lds("ds_read_b64_tr_b16 %s, v%d offset:%d" % (v(WF[p][a] + 2, 2), VW0 + a, off + 512), "r%d" % s_)
    for t in range(2):
        A.lds("ds_read_b128 %s, v%d offset:%d" % (v(XF[p][t], 4), VX + (s_ & 3), xo(s_, t)), "r%d" % s_)
if opt("gp1", 3) != 3: A("s_setprio %d" % opt("gp1", 3))
_mf = mfma
if opt("nof1", 0): mfma = lambda *a: "s_nop 0"
reads(0)
tdone = False
for s_ in range(32):
    p = s_ & 1
    A.wait_lg("r%d" % s_)
    pc = lambda: A("s_nop %d" % opt("pace1", 0)) if opt("pace1", 0) else None
    A(mfma(ACC[0][0], WF[p][0], XF[p][0], "0" if s_ == 0 else None))
    if s_ + 2 + NSLOT < 34: dma(s_ + 2 + NSLOT)
    pc()
    A(mfma(ACC[0][1], WF[p][0], XF[p][1], "0" if s_ == 0 else None))
    if s_ + 1 < 32: reads(s_ + 1)
    if TF and not A.has_vm("TS") and not tdone: bump(M_T, 0); tdone = True
    if TF > 1 and s_ == 30: A.lds("ds_read_b32 v144, v3 offset:%d" % (M_LOC - MISC), "r31")
    if EC and s_ == 15: bump(M_F1H, 0)
    if EC and s_ == 31: bump(M_F1, 0)
    pc()
    A(mfma(ACC[1][0], WF[p][1], XF[p][0], "0" if s_ == 0 else None))
    pc()
    A(mfma(ACC[1][1], WF[p][1], XF[p][1], "0" if s_ == 0 else None))
    pc()
mfma = _mf
ST.stamp()
if opt("gp1", 3) != 3: A("s_setprio 3")
if TF > 1:
    A("v_readfirstlane_b32 s30, v144")
    A("s_nop 7")
    A("s_cmp_eq_u32 s30, 1")
    A("s_cbranch_scc0 G_HFAR")
else: A("s_nop 9")
for sc in (("", " sc1") if TF > 1 else (" sc1",)):
    if TF > 1 and sc: A("G_HFAR:")
    for a in range(2):
        for t in range(2):
            b = PK + (2 * a + t) * 8
            for i in range(8): A("v_cvt_pk_bf16_f32 v%d, v%d, v%d" % (b + i, ACC[a][t] + 2 * i, ACC[a][t] + 2 * i + 1))
            for i in range(8): A("v_pk_max_i16 v%d, v%d, 0" % (b + i, b + i))
            A("buffer_store_dwordx4 %s, v2, s[36:39], s%d offen offset:%d%s" % (v(b, 4), 52 + 2 * a + t, a * 2048, sc))
            A("buffer_store_dwordx4 %s, v2, s[36:39], s%d offen offset:%d%s" % (v(b + 4, 4), 52 + 2 * a + t, a * 2048 + 1024, sc))
    if not sc: A("s_branch G_JOIN")
A("G_F1DONE:")
A.vm = []; A.lg = []
if STAMP: ST.n = 4
if EC:
    A("s_branch G_JOIN")
    A("G_F1IDLE:")
    if TF:
        A("s_waitcnt vmcnt(0)")
        bump(M_T, 4)
    bump(M_F1H, 4)
bump(M_F1, 4)
A("s_branch G_JOIN")

A("G3_START:")
ST.n = 1
A("s_load_dword s60, s[24:25], 0x%x" % EPOCH)
A("s_and_b32 s52, s27, 1")
A("s_cmp_eq_u32 s52, 0")
A("s_cselect_b32 s40, s8, s10")
A("s_cselect_b32 s41, s9, s11")
A("s_mov_b32 s42, 0x4000")
A("s_mov_b32 s43, 0x00020000")
for i in range(4):
    A("s_mov_b32 m0, %d" % (WIMG + i * 4096))
    A("s_mov_b32 s53, %d" % (i * 4096))
    for k in range(4):
        A.vmem("buffer_load_dwordx4 v2, s[40:43], s53 offen offset:%d lds" % (k * 1024), "w")
GW, GX, GA, GC, GS = 4, 68, 132, 136, 140
A("v_lshrrev_b32 v150, 4, v1")
A("v_and_b32 v151, 15, v1")
if GXL:
    assert not RAW
    A("v_and_b32 v152, 3, v1")
    A("v_xor_b32 v152, v152, v150")
    A("v_lshlrev_b32 v152, 4, v152")
    A("v_lshrrev_b32 v153, 2, v1")
    A("v_lshl_add_u32 v152, v153, 10, v152")
else:
    A("v_lshlrev_b32 v152, 10, v151")
    A("v_lshl_add_u32 v152, v150, 4, v152")
A("s_lshr_b32 s54, s27, 1")
A("s_lshl_b32 s55, s54, 14")
A("s_lshl_b32 s53, s26, 16")
A("s_add_u32 s53, s53, s55")
for i in range(16):
    if GXL:
        A("s_mov_b32 m0, %d" % (Z0 + i * 960))
        A("s_nop 0")
        A.vmem("buffer_load_dwordx4 v152, s[32:35], s53 offen offset:%d lds" % (64 * i), "x%d" % i)
    else:
        A.vmem("buffer_load_dwordx4 %s, v152, s[32:35], s53 offen offset:%d" % (v(GX + 4 * i, 4), 64 * i), "x%d" % i)
A("s_barrier")
A("s_waitcnt lgkmcnt(0)")
A("s_mul_i32 s60, s60, 0x9E3779B1")
A("s_add_u32 s60, s60, 0x7F4A7C15")
A("v_mov_b32 v153, s60")
A("ds_write_b32 v3, v153 offset:%d" % (M_TAG - MISC))
if RAW: bump(M_F[3], 154)
A("v_bfe_u32 v153, v1, 2, 2")
if GXL:
    A("v_xor_b32 v152, v153, v150")
    A("v_lshlrev_b32 v152, 4, v152")
    A("v_lshl_add_u32 v152, v151, 6, v152")
    A("v_add_u32 v152, %d, v152" % Z0)
A("v_lshl_add_u32 v153, v150, 3, v153")
A("v_lshlrev_b32 v153, 5, v153")
A("v_and_b32 v154, 3, v1")
A("v_lshl_add_u32 v153, v154, 3, v153")
A("v_add_u32 v153, %d, v153" % WIMG)
for i in range(4): A("v_mov_b32 v%d, 0x3f803f80" % (GS + i))
A.wait_vm("w")
for i in range(16):
    A("ds_read_b64_tr_b16 %s, v153 offset:%d" % (v(GW + 4 * i, 2), i * 1024))
    A("ds_read_b64_tr_b16 %s, v153 offset:%d" % (v(GW + 4 * i + 2, 2), i * 1024 + 128))
    if i == 6 or i == 13: A("s_waitcnt lgkmcnt(0)")
A("s_waitcnt lgkmcnt(0)")
if not RAW: bump(M_X if ALL else M_F[0], 154)
if not GXL: bump(M_W, 154)
if opt("g3p", 3) != 3: A("s_setprio %d" % opt("g3p", 3))
ST.stamp()
A("s_lshr_b32 s57, s54, 1")
A("s_lshl_b32 s56, s57, 5")
A("s_add_u32 s56, s56, s26")
A("s_lshl_b32 s59, s56, 2")
A("s_and_b32 s57, s27, 3")
A("s_add_u32 s59, s59, s57")
A("s_lshl_b32 s63, s59, 10")
A("s_add_u32 s63, s63, 0x%x" % KVL)
A("s_cmp_lt_u32 s56, %d" % (8 * LLT))
A("s_cselect_b32 s63, s63, 0x%x" % HUGE)
A("s_lshl_b32 s59, s59, %d" % KS)
A("s_add_u32 s59, s59, 0x%x" % KVFLAG)
A("s_lshl_b32 s56, s56, 11")
A("s_add_u32 s56, s56, 0x%x" % KVF)
A("s_and_b32 s57, s54, 1")
A("s_lshl_b32 s58, s54, 7")
A("s_add_u32 s58, s58, %d" % M_ST)
A("s_cmp_eq_u32 s52, 0")
A("s_cbranch_scc0 G3_V")
vm_save = list(A.vm)
for kind in range(2):
    A.vm = list(vm_save)
    if kind == 1: A("G3_V:")
    A.lg = []
    for i in range(16):
        if GXL and i % 8 == 0:
            A.wait_vm("x%d" % (i + 7))
            if i: A.wait_lg("gx1")
            for z in range(i, i + 8): A.lds("ds_read_b128 %s, v152 offset:%d" % (v(GX + 4 * z, 4), z * 1024), "gx%d" % z)
            if i: bump(M_W, 154)
        c0 = "0" if i == 0 else None
        A(mfma16(GC, GW + 4 * i, GS, c0) if kind == 0 else mfma16(GC, GS, GW + 4 * i, c0))
    if kind == 0:
        A("v_lshlrev_b32 v154, 3, v151")
        A("v_add_u32 v154, s58, v154")
        A("v_lshrrev_b32 v155, 1, v150")
        A("v_lshlrev_b32 v155, 9, v155")
        A("v_lshl_add_u32 v155, v151, 4, v155")
        A("v_and_b32 v156, 1, v150")
        A("v_lshl_add_u32 v155, v156, 3, v155")
        A("s_lshl_b32 s57, s57, 8")
        A("s_add_u32 s56, s56, s57")
    else:
        A("v_lshlrev_b32 v154, 5, v150")
        A("v_add_u32 v154, s58, v154")
        A("v_lshrrev_b32 v155, 1, v150" if SM else "v_and_b32 v155, 1, v150")
        A("v_lshlrev_b32 v155, 9, v155")
        A("v_lshl_add_u32 v155, v151, 4, v155")
        A("v_and_b32 v156, 1, v150" if SM else "v_lshrrev_b32 v156, 1, v150")
        A("v_lshl_add_u32 v155, v156, 3, v155")
        A("s_lshl_b32 s57, s57, 8")
        A("s_sub_u32 s56, s56, s57")
        A("s_add_u32 s56, s56, %d" % (1024 + 256))
    A("v_and_b32 v157, 255, v155")
    A("v_add_u32 v157, v157, v155")
    for i in range(16):
        if not GXL: A.wait_vm("x%d" % i)
        elif A.has_lg("gx%d" % i): A.wait_lg("gx%d" % i)
        c0 = "0" if i == 0 else None
        A(mfma16(GA, GW + 4 * i, GX + 4 * i, c0) if kind == 0 else mfma16(GA, GX + 4 * i, GW + 4 * i, c0))
    L = A.label("STS")
    A("s_mov_b32 s31, 0x40000")
    A("%s:" % L)
    if kind == 0:
        A("ds_read_b64 %s, v154" % v(GS, 2))
    else:
        A("ds_read_b128 %s, v154" % v(GS, 4))
        A("ds_read_b128 %s, v154 offset:16" % v(GS + 4, 4))
    A("s_sub_u32 s31, s31, 1")
    A("s_cbranch_scc1 %s_X" % L)
    A("s_waitcnt lgkmcnt(0)")
    if kind == 0:
        A("v_cmp_eq_u32 vcc, 0, v%d" % (GS + 1))
    else:
        A("v_min_u32 v156, v%d, v%d" % (GS + 1, GS + 3))
        A("v_min3_u32 v156, v%d, v%d, v156" % (GS + 5, GS + 7))
        A("v_cmp_eq_u32 vcc, 0, v156")
    A("s_cmp_eq_u64 vcc, 0")
    if opt("sts", 0):
        A("s_cbranch_scc1 %s_X" % L)
        A("s_sleep %d" % opt("sts", 0))
        A("s_branch %s" % L)
    else:
        A("s_cbranch_scc0 %s" % L)
    A("%s_X:" % L)
    A("s_waitcnt lgkmcnt(0)")
    if kind == 0:
        for i in range(2): A("v_mul_f32 v%d, 0x%x, v%d" % (GS + i, f2u(0.25 * 1.4426950408889634), GS + i))
    for i in range(4):
        o = 0 if kind == 0 else 2 * i
        A("v_mul_f32 v%d, v%d, v%d" % (GA + i, GA + i, GS + o + 1))
        A("v_fma_f32 v%d, -v%d, v%d, v%d" % (GA + i, GS + o, GC + i, GA + i))
    A("v_cvt_pk_bf16_f32 v%d, v%d, v%d" % (GA, GA, GA + 1))
    A("v_cvt_pk_bf16_f32 v%d, v%d, v%d" % (GA + 1, GA + 2, GA + 3))
    if kind == 0: A("s_branch G3_PUB")
A("G3_PUB:")
if opt("g3p", 3) != 3: A("s_setprio 3")
A("v_mov_b32 v%d, s60" % (GA + 2))
A("v_mov_b32 v%d, s60" % (GA + 3))
A("buffer_store_dwordx4 %s, v157, s[36:39], s63 offen sc1" % v(GA, 4))
A("buffer_store_dwordx2 %s, v155, s[36:39], s56 offen sc1" % v(GA, 2))
ST.stamp()
A("s_mov_b32 s58, 0x%x" % KVFLAG)
A("v_lshlrev_b32 v6, %d, v1" % KS)
A("s_and_b32 s57, s2, %d" % (KR - 1))
A("s_lshl_b32 s57, s57, %d" % (8 + KS))
A("v_add_u32 v6, s57, v6")
A("v_mov_b32 v4, s60")
A("v_lshlrev_b32 v5, %d, v1" % (8 + KS))
A("s_mov_b64 exec, 0x%x" % ((1 << KR) - 1) if KR < 32 else "s_mov_b64 exec, -1" if KR == 64 else "s_mov_b32 exec_hi, 0")
A("s_waitcnt vmcnt(0)")
A("buffer_store_dword v4, v5, s[36:39], s59 offen sc1")
A("s_mov_b64 exec, -1")
ST.stamp()
A("@WARM3")
if opt("pd", 0) == 1: spin(M_QH, 8, 4)
if opt("pd", 0) == 2: spin(M_Q, 8, 4)
if opt("pd", 0) == 3: spin(M_C0, 8, 4)
for c_ in ((32, 64) if LLT == 1 else (64,)):
    A("s_mov_b32 s58, 0x%x" % (KVFLAG + (c_ << KS)))
    gpoll(6, "s58", 4, 1, "s60", opt("ksleep", 2))
ST.stamp(slot=10); ST.n = 4
spin(M_Q, 8, 4)
for i in range(4 * LLT, 16):
    A("s_mov_b32 m0, %d" % (i * 4096))
    A("s_mov_b32 s53, 0x%x" % (KVF + i * 4096))
    for k in range(4):
        A("buffer_load_dwordx4 v2, s[36:39], s53 offen offset:%d @LD lds" % (k * 1024))
if OL:
    A("v_mov_b64 v[8:9], -1")
    A("v_mov_b64 v[10:11], -1")
    A("s_mul_i32 s53, s26, %d" % (2 * NKS))
    A("s_lshl_b32 s57, s27, 2")
    A("s_add_u32 s53, s53, s57")
    A("s_lshl_b32 s53, s53, 10")
    A("s_add_u32 s53, s53, 0x%x" % (AF + 86 * 1024))
    A("s_add_u32 s57, s53, %d" % (NKS * 1024))
    for i in range(8):
        A("buffer_store_dwordx4 v[8:11], v2, s[36:39], s%d offen offset:%d sc1" % ((53, 57)[i >> 2], (i & 3) * 1024))
    A("s_waitcnt vmcnt(8)")
else:
    A("s_waitcnt vmcnt(0)")
bump(M_C1, 4)
for c_ in (2, 3):
    A("s_mov_b32 s58, 0x%x" % (KVFLAG + ((64 * c_) << KS)))
    gpoll(6, "s58", 4, 1, "s60", opt("ksleep", 2))
bump(M_KV, 4)
def flag_addr():
    A("s_lshl_b32 s52, s26, 3")
    A("v_add_u32 v4, s52, v1")
    A("v_subrev_u32 v5, 8, v1")
    A("v_lshlrev_b32 v5, 3, v5")
    A("v_add_u32 v5, s27, v5")
    A("v_mov_b32 v6, s29")
    A("v_cmp_gt_u32 vcc, 40, v1")
    A("s_nop 1")
    A("v_cndmask_b32 v5, v6, v5, vcc")
    A("v_cmp_gt_u32 vcc, 8, v1")
    A("s_nop 1")
    A("v_cndmask_b32 v5, v5, v4, vcc")
    A("v_lshlrev_b32 v5, %d, v5" % HS)
def loc_check(tag):
    A("v_cmp_ne_u32 vcc, s63, v7")
    A("v_cmp_ne_u32 s[64:65], %s, v6" % tag)
    A("s_or_b64 vcc, vcc, s[64:65]")
    A("s_and_b32 s30, vcc_lo, 0xff")
    A("s_cselect_b32 s30, 0, %d" % (0 if opt("noloc", 0) else 1))
    A("v_mov_b32 v4, s30")
    A("ds_write_b32 v3, v4 offset:%d" % (M_LOC - MISC))
if TF:
    A("s_getreg_b32 s63, hwreg(HW_REG_XCC_ID, 0, 4)")
    A("s_lshl_b32 s57, s29, %d" % HS)
    A("s_add_u32 s57, s57, 0x%x" % TFLAG)
    spin(M_T, 3, 4, 2)
    A("v_mov_b32 v4, s60")
    A("v_mov_b32 v5, s63")
    A("v_mov_b32 v6, 0")
    A("s_mov_b64 exec, 1")
    A("buffer_store_dwordx2 v[4:5], v6, s[36:39], s57 offen sc1")
    A("s_mov_b64 exec, -1")
    A("s_nop 0")
if EC:
    spin(M_F1H, 3, 4, 2)
    for i in range(8):
        o_ = 65536 + xo((i & 3) * 4, i >> 2)
        A("s_mov_b32 m0, %d" % o_)
        A("s_mov_b32 s53, 0x%x" % (KVF + o_))
        for k in range(4):
            A("buffer_load_dwordx4 v2, s[36:39], s53 offen offset:%d @LD lds" % (k * 1024))
    A("s_waitcnt vmcnt(%d)" % (0 if XL else 16))
    bump(M_C2, 4)
if TF:
    flag_addr()
    A("s_mov_b32 s58, 0x%x" % TFLAG)
    gpoll(5, "s58", 6, 2, "s60", opt("tsleep", 4))
    loc_check("s60")
    if opt("wl", 0): bump(M_TOK, 4)
    if opt("wpf", 1):
        A("s_mul_i32 s52, s27, %d" % (2 * NKS * 1024))
        A("s_and_b32 s53, s26, 3")
        A("s_mul_i32 s53, s53, %d" % (59 * 1024))
        A("s_add_u32 s52, s52, s53")
        A("s_add_u32 s52, s52, 0x%x" % WT)
        A("v_lshlrev_b32 v5, 7, v1")
        A("v_min_u32 v6, %d, v5" % (23 * 128))
        for i in range(8):
            A("buffer_load_dword v%d, v%d, s[36:39], s52 offen @LD" % (8 + i, 6 if i == 7 else 5))
            if i < 7: A("s_add_u32 s52, s52, 8192")

A("G_JOIN:")
A.vm = []; A.lg = []
spin(M_F1, 3, 4)
spin(M_KV, 1, 4)
read_tag(61, 4)
if not TF: A("s_getreg_b32 s63, hwreg(HW_REG_XCC_ID, 0, 4)")
ST.stamp(slot=13); ST.n = 4
A("s_lshl_b32 s52, s62, %d" % (12 if EC else 14))
for i in range(2 if EC else 4):
    o_ = 65536 + xo(16, i) if EC else 65536 + i * 4096
    A("s_add_u32 m0, s52, %d" % o_)
    A("s_add_u32 s53, s52, 0x%x" % (KVF + o_))
    for k in range(4):
        A("buffer_load_dwordx4 v2, s[36:39], s53 offen offset:%d @LD lds" % (k * 1024))
ST.stamp(slot=11)
if TF:
    A("s_cmp_eq_u32 s62, 3")
    A("s_cbranch_scc1 G_NOFLAG")
A("s_waitcnt vmcnt(%d)" % (8 if EC else 16))
ST.stamp(slot=12); ST.n = 4
A("v_mov_b32 v4, 1")
A("s_mov_b64 exec, 1")
A("ds_add_rtn_u32 v5, v3, v4 offset:%d" % (M_H - MISC))
A("s_mov_b64 exec, -1")
if TF > 1: A("ds_read_b32 v6, v3 offset:%d" % (M_LOC - MISC))
A("s_lshl_b32 s57, s29, %d" % HS)
A("s_add_u32 s57, s57, 0x%x" % HFLAG)
A("s_waitcnt lgkmcnt(0)")
A("v_readfirstlane_b32 s30, v5")
A("s_cmp_eq_u32 s30, %d" % (2 if TF else 3))
A("s_cbranch_scc0 G_NOFLAG")
if TF > 1:
    A("v_readfirstlane_b32 s30, v6")
    A("v_mov_b32 v4, s61")
    A("v_mov_b32 v5, 0")
    A("s_mov_b64 exec, 1")
    A("s_cmp_eq_u32 s30, 1")
    A("s_cbranch_scc0 G_FFAR")
    A("buffer_store_dword v4, v5, s[36:39], s57 offen")
    A("s_branch G_FDONE")
    A("G_FFAR:")
    A("buffer_store_dword v4, v5, s[36:39], s57 offen sc1")
    A("G_FDONE:")
    A("s_mov_b64 exec, -1")
elif OL and not TF:
    A("v_mov_b32 v4, s61")
    A("v_mov_b32 v5, s63")
    A("v_mov_b32 v6, 0")
    A("s_mov_b64 exec, 1")
    A("buffer_store_dwordx2 v[4:5], v6, s[36:39], s57 offen sc1")
    A("s_mov_b64 exec, -1")
    A("s_nop 0")
else:
    flag_store("s57", "s61", 4)
A("G_NOFLAG:")
if TF:
    A("s_lshl_b32 s52, s26, 3")
    A("v_and_b32 v5, 7, v1")
    A("v_add_u32 v5, s52, v5")
    A("v_lshlrev_b32 v5, %d, v5" % HS)
else: flag_addr()
A("s_mul_i32 s52, s27, %d" % (2 * NKS * 1024))
A("s_add_u32 s52, s52, 0x%x" % WT)
A("s_mul_i32 s53, s26, %d" % (2 * NKS * 1024))
A("s_add_u32 s53, s53, 0x%x" % AF)
A("v_add_u32 v164, s52, v2")
A("v_add_u32 v165, %d, v164" % (NKS * 1024))
A("v_add_u32 v166, s53, v2")
A("v_add_u32 v167, %d, v166" % (NKS * 1024))
N0 = opt("n0", 0)
if N0:
    N3 = 86 - 3 * N0
    assert (N3 - N0) % 6 == 0
    PE = 6 if opt("wl", 0) else 1
    TL = 6 + (N0 - PE) % 6
    R0 = (N0 - PE - TL) // 6
    assert PE + 6 * R0 + TL == N0 and R0 >= 0
    A("s_lshl_b32 s54, s62, 10")
    A("s_cmp_eq_u32 s62, 3")
    A("s_cselect_b32 s54, %d, s54" % (3 * N0 * 1024))
    A("s_cselect_b32 s55, 1, 3")
    A("s_cselect_b32 s60, %d, %d" % (R0 + (N3 - N0) // 6, R0))
    A("s_lshl_b32 s55, s55, 10")
else:
    A("s_lshl_b32 s54, s62, 10")
    A("s_cmp_lt_u32 s62, 2")
    A("s_cselect_b32 s55, 0, 0x%x" % HUGE)
A("s_waitcnt vmcnt(0)")
bump(M_C23, 4)
NST, SB, NI = 6, 68, 22
WP = opt("wp", 0)
if N0: NI = PE + 6 + TL
WL = opt("wl", 0)
assert TF or not WL
SH = (-(NI - NST)) % NST if WP else 0
def loads(i, qs=(0, 1, 2, 3), so=54):
    st = SB + ((i + SH) % NST) * 16
    if i == NI - 1 and not N0: A("s_add_u32 s54, s54, s55")
    for q in qs:
        A.vmem("buffer_load_dwordx4 %s, v%d, s[36:39], s%d offen @LD" % (v(st + 4 * q, 4), 164 + q, so), "L%d" % i)
    if i < NI - 1 or N0: A("s_add_u32 s%d, s%d, %s" % (so, so, "s55" if N0 else "4096"))
WR, OR_ = 68, 104
fr = [(i, a) for i in range(8) for a in range(2)]
def wo_addr():
    A("s_lshr_b32 s57, s62, 1")
    A("s_lshl_b32 s57, s57, 12")
    A("s_and_b32 s56, s62, 1")
    A("s_lshl_b32 s56, s56, 10")
    A("s_add_u32 s57, s57, s56")
    A("s_add_u32 s40, s57, %d" % (86 * 1024))
    for i in range(1, 4): A("s_add_u32 s%d, s40, %d" % (40 + i, 8192 * i))
    A("s_mul_i32 s56, s62, 7168")
    A("s_add_u32 s56, s56, %d" % Z0)
def wo_load(n):
    i, a = fr[n]
    if n < 9:
        A.vmem("buffer_load_dwordx4 %s, v%d, s[36:39], s%d offen offset:%d @LD" % (v(WR + 4 * n, 4), 164 + a, 40 + (i & 3), (i >> 2) * 2048), "wo")
    else:
        A("s_add_u32 m0, s56, 0x%x" % (((n - 9) * 1024 - 2048) & 0xffffffff))
        A("s_nop 0")
        A.vmem("buffer_load_dwordx4 v%d, s[36:39], s%d offen offset:2048 @LD lds" % (164 + a, 40 + (i & 3)), "wo")
if WL:
    spin(M_TOK, 1, 4)
    A("s_mov_b32 s59, s54")
    for i in range(NST): loads(i, (0, 1), 59)
A("s_mov_b32 s58, 0x%x" % HFLAG)
ST.stamp()
vm_w = list(A.vm)
A("s_cmp_eq_u32 s62, 3")
A("s_cbranch_scc0 G_HW")
if OL and not TF:
    gpoll(5, "s58", 6, 2, "s61", opt("hsleep", 8))
    loc_check("s61")
else:
    gpoll(5, "s58", 4, 1, "s61", opt("hsleep", 8))
bump(M_HOK, 4)
A("G_HW:")
spin(M_HOK, 1, 4, opt("hks", 4))
ST.stamp()
if opt("gp2", 3) != 3: A("s_setprio %d" % opt("gp2", 3))
if opt("nof2", 0): mfma = lambda *a: "s_nop 0"
if WP: wo_addr()
A.vm = vm_w
for i in range(NST): loads(i, (2, 3) if WL else (0, 1, 2, 3))
for i in range(NI):
    st = SB + ((i + SH) % NST) * 16
    if N0 and i == PE:
        if R0 == 0:
            A("s_cmp_eq_u32 s60, 0")
            A("s_cbranch_scc1 G_F2T")
        A("G_F2L:")
    A.wait_vm("L%d" % i)
    for a in range(2):
        for b in range(2):
            A(mfma(ACC[a][b], st + 4 * a, st + 8 + 4 * b, "0" if i == 0 else None))
            if opt("pace2", 0): A("s_nop %d" % opt("pace2", 0))
    if i + NST < NI: loads(i + NST)
    elif WP:
        for n in ((9, 10, 11, 12, 0, 1, 2, 3), (13, 14, 15, 4, 5, 6, 7), (8,), (), (), ())[i + NST - NI]: wo_load(n)
    if N0 and i == PE + 5:
        A("s_sub_u32 s60, s60, 1")
        A("s_cmp_lg_u32 s60, 0")
        A("s_cbranch_scc1 G_F2L")
        A("G_F2T:")
mfma = _mf
if opt("gp2", 3) != 3: A("s_setprio %d" % opt("gp3", 3))
if OL:
    if not WP:
        wo_addr()
        for n in range(16): wo_load(n)
    for i in range(4): A("s_add_u32 s%d, s%d, s53" % (44 + i, 40 + i))
    if OL >= 4:
        O5 = OL == 5
        OALL = 72 if opt('owt', 0) else 8
        for i in range(4): A("s_add_u32 s%d, s%d, %d" % (48 + i, 44 + i, NKS * 1024))
        def oload(i):
            for t in range(2):
                A.vmem("buffer_load_dwordx4 %s, v2, s[36:39], s%d offen offset:%d sc1" % (v(OR_ + 8 * i + 4 * t, 4), 44 + 4 * t + (i & 3), (i >> 2) * 2048), "o%d" % i)
        def ocheck(i):
            r = OR_ + 8 * i
            A("v_max3_u32 v0, v%d, v%d, v%d" % (r, r + 1, r + 2))
            A("v_max3_u32 v0, v%d, v%d, v0" % (r + 3, r + 4))
            A("v_max3_u32 v0, v%d, v%d, v0" % (r + 5, r + 6))
            A("v_max_u32 v0, v%d, v0" % (r + 7))
            A("v_cmp_eq_u32 vcc, -1, v0")
        A("s_mov_b32 s58, 0x8000")
        A("s_mov_b32 s57, 0xff")
        A("s_mov_b32 s59, 0")
        A("s_mov_b64 s[66:67], 0")
        A("v_add_u32 v1, s56, v2")
        ST.stamp()
        spin(M_O, opt("ow", 4), 0, opt("ows", 2))
        A.wait_vm0()
        ST.stamp()
        for i in range(4): oload(i)
        if O5:
            OW2 = opt("ow2", 8)
            vm_a = list(A.vm)
            A("s_cmp_ge_u32 s30, %d" % OW2)
            A("s_cbranch_scc1 G_OLATE")
            A("s_mov_b32 s57, 15")
            A("s_mov_b64 s[66:67], -1")
            if "ge" in OPT: A("s_setprio %d" % opt("ge", 0))
            if opt("opp", 0):
                A("s_waitcnt vmcnt(6)")
                ocheck(0)
                A("s_cbranch_vccz G_OV0")
            A("G_OP1:")
            A("s_sub_u32 s58, s58, 1")
            A("s_waitcnt vmcnt(0)")
            A("ds_read_b32 v164, v3 offset:%d" % (M_O - MISC))
            A("s_cbranch_scc1 G_OBI")
            A("G_OP2:")
            for i in range(4):
                A("s_bitcmp1_b32 s57, %d" % i)
                A("s_cbranch_scc0 G_OPN%d" % i)
                ocheck(i)
                A("s_bitset0_b32 s57, %d" % i)
                A("s_cbranch_vccz G_OPN%d" % i)
                A("s_bitset1_b32 s57, %d" % i)
                oload(i)
                A("G_OPN%d:" % i)
            A("s_bitcmp1_b32 s57, s59")
            A("s_cselect_b64 vcc, -1, 0")
            A("s_cmp_eq_u32 s66, 0")
            A("s_cbranch_scc1 G_ORX")
            A("G_OB:")
            A("s_waitcnt lgkmcnt(0)")
            A("v_readfirstlane_b32 s30, v164")
            A("s_cmp_ge_u32 s30, %d" % OW2)
            A("s_cbranch_scc1 G_OBI")
            A("s_cbranch_vccnz G_OP1")
            for i in range(4):
                A("s_cmp_eq_u32 s59, %d" % i)
                A("s_cbranch_scc1 G_OV%d" % i)
            spin(M_O, OW2, 0, 1)
            A("G_OBI:")
            if "ge" in OPT: A("s_setprio 3")
            A("s_waitcnt lgkmcnt(0)")
            if opt("ors", 0): ST.stamp(slot=15); ST.n = 8
            for i in range(4, 8): oload(i)
            A("s_mov_b64 s[66:67], 0")
            if not opt("opp", 0):
                A("s_bitcmp1_b32 s57, s59")
                A("s_cselect_b64 vcc, -1, 0")
            A("s_or_b32 s57, s57, 0xf0")
            A("s_cmp_lt_u32 s59, 4")
            A("s_cbranch_scc0 G_OB4")
            A("s_cbranch_vccz G_ODIS")
            A("s_waitcnt vmcnt(8)")
            A("s_branch G_OP2")
            A("G_OB4:")
            A("s_waitcnt vmcnt(6)")
            ocheck(4)
            A("s_cbranch_vccz G_OV4")
            A("s_branch G_OREF")
            A("G_OLATE:")
            A.vm = vm_a; A.lg = []
        else: spin(M_O, opt("ow2", 8), 0, 1)
        if opt("od", 0): A("s_sleep %d" % opt("od", 0))
        if opt("ors", 0): ST.stamp(slot=15); ST.n = 8
        for i in range(4, 8): oload(i)
        A.wait_vm("o0")
        ocheck(0)
        A("s_cbranch_vccz G_OV0")
        A("G_OREF:")
        A("s_sub_u32 s58, s58, 1")
        if not opt("onb", 0): A("s_waitcnt vmcnt(0)")
        A("s_cbranch_scc1 G_OEND")
        vm_s = list(A.vm)
        A("s_and_b32 s30, s57, 15")
        A("s_cbranch_scc0 G_ORN3")
        for i in range(8):
            A("s_bitcmp1_b32 s57, %d" % i)
            A("s_cbranch_scc0 G_ORN%d" % i)
            if opt("onb", 0): A("s_waitcnt vmcnt(%d)" % (2 * (7 - i) + (0 if O5 else 2)))
            ocheck(i)
            A("s_bitset0_b32 s57, %d" % i)
            A("s_cbranch_vccz G_ORN%d" % i)
            A("s_bitset1_b32 s57, %d" % i)
            oload(i)
            A("G_ORN%d:" % i)
        A.vm = vm_s
        A("G_ORX:")
        A("s_bitcmp1_b32 s57, s59")
        if opt("onb", 0) and "oth" in OPT:
            A("s_cbranch_scc0 G_ODIS")
            A("s_waitcnt vmcnt(%d)" % opt("oth", 0))
            A("s_branch G_OREF")
        else: A("s_cbranch_scc1 G_OREF")
        A("G_ODIS:")
        for i in range(7, 0, -1):
            A("s_cmp_eq_u32 s59, %d" % i)
            A("s_cbranch_scc1 G_OV%d" % i)
        wreg = {fr[n]: WR + 4 * n for n in range(9)}
        nxt = 9
        for i in range(8):
            A("G_OV%d:" % i)
            ex = [[], [], [], []]
            if i == 7:
                A("G_OEND:")
                ex = [["v_lshrrev_b32 v0, 4, v2", "ds_read_b32 v1, v3 offset:%d" % (M_O - MISC), "v_and_b32 v2, 31, v0", "s_nop 0"],
                      ["v_mul_u32_u24 v2, 272, v2", "v_lshrrev_b32 v0, 5, v0", "s_mul_i32 s52, s62, %d" % PW, "v_lshl_add_u32 v2, v0, 4, v2"],
                      ["v_add_u32 v2, s52, v2", "s_waitcnt lgkmcnt(0)", "v_readfirstlane_b32 s30, v1", "s_cmp_ge_u32 s30, %d" % OALL], ["s_cbranch_scc1 G_OW"]]
            else:
                ex[0] = ["s_bitset0_b32 s57, %d" % i, "s_mov_b32 s59, %d" % (i + 1), "s_mov_b64 vcc, 0", "s_bitcmp1_b32 s57, %d" % (i + 1)]
                if O5 and i < 4:
                    ex[1] = ["s_cmp_eq_u32 s66, 0", "s_cbranch_scc1 G_OQ%d" % i, "ds_read_b32 v164, v3 offset:%d" % (M_O - MISC), "G_OQ%d:" % i, ex[0].pop()]
                    if opt("opp", 0):
                        if i < 3: ex[1].insert(3, "s_waitcnt vmcnt(%d)" % (2 * (2 - i)))
                        ex[2], ex[1] = ex[1], []
            if A.has_lg("w%d" % i): A.wait_lg("w%d" % i)
            if opt("ors", 0): ST.stamp(slot=(1, 2, 3, 4, 10, 11, 12, 14)[i]); ST.n = 8
            for a in range(2):
                for t in range(2):
                    A(mfma(ACC[a][t], wreg[(i, a)], OR_ + 8 * i + 4 * t))
                    for l in ex[2 * a + t]: A(l)
                    if t == 1 and nxt < 16:
                        wreg[fr[nxt]] = wreg[(i, a)]
                        A.lds("ds_read_b128 %s, v1 offset:%d" % (v(wreg[(i, a)], 4), (nxt - 9) * 1024), "w%d" % fr[nxt][0])
                        nxt += 1
                    if i < 7 and 2 * a + t == opt("cpos", 2):
                        A("s_cbranch_scc0 G_OK%d" % i)
                        A.wait_vm("o%d" % (i + 1))
                        ocheck(i + 1)
                        A("G_OK%d:" % i)
            if O5 and i < 4:
                A("s_cmp_lg_u32 s66, 0")
                A("s_cbranch_scc1 G_OB")
            if i < 7: A("s_cbranch_vccnz G_OREF")
        spin(M_O, OALL, 1)
        A("G_OW:")
        A.vm = []; A.lg = []
        if STAMP: A("s_sub_u32 s96, 0x8000, s58")
    elif OL == 3:
        for i in range(4): A("s_add_u32 s%d, s%d, %d" % (48 + i, 44 + i, NKS * 1024))
        def oload(i):
            for t in range(2):
                A("buffer_load_dwordx4 %s, v2, s[36:39], s%d offen offset:%d sc1" % (v(OR_ + 8 * i + 4 * t, 4), 44 + 4 * t + (i & 3), (i >> 2) * 2048))
        if opt("oinit", 0):
            A("s_waitcnt vmcnt(0)")
            for i in range(32): A("v_mov_b64 %s, -1" % v(OR_ + 2 * i, 2))
        else:
            for i in range(8): oload(i)
        A("s_mov_b32 s58, 0x8000")
        A("v_add_u32 v1, s56, v2")
        ST.stamp()
        wreg = {fr[n]: WR + 4 * n for n in range(9)}
        nxt = 9
        for h_ in range(2):
            keep = list(A.lg)
            spin(M_O, opt("ow", 3) if h_ == 0 else opt("ow2", 6), 0, opt("ows", 2))
            if h_ == 0:
                A("s_waitcnt vmcnt(0)")
                ST.stamp()
            A("s_mov_b32 s57, 0x%x" % (0xf << (4 * h_)))
            A("s_mov_b32 s59, %d" % (4 * h_))
            A("G_OS%d:" % h_)
            A("s_sub_u32 s58, s58, 1")
            if opt("osync", 0): A("s_waitcnt vmcnt(0)")
            A("s_cbranch_scc1 G_OEND")
            if opt("osleep", 0): A("s_sleep %d" % opt("osleep", 0))
            for i in range(4 * h_, 4 * h_ + 4):
                r = OR_ + 8 * i
                A("s_bitcmp1_b32 s57, %d" % i)
                A("s_cbranch_scc0 G_ON%d" % i)
                A("v_cmp_eq_u32 vcc, -1, v%d" % (r + 7))
                A("s_cbranch_vccnz G_OR%d" % i)
                A("v_max3_u32 v0, v%d, v%d, v%d" % (r, r + 1, r + 2))
                A("v_max3_u32 v0, v%d, v%d, v0" % (r + 3, r + 4))
                A("v_max3_u32 v0, v%d, v%d, v0" % (r + 5, r + 6))
                A("v_cmp_eq_u32 vcc, -1, v0")
                A("s_bitset0_b32 s57, %d" % i)
                A("s_cbranch_vccz G_ON%d" % i)
                A("s_bitset1_b32 s57, %d" % i)
                A("G_OR%d:" % i)
                A("s_waitcnt vmcnt(%d)" % opt("oth", 14))
                oload(i)
                A("G_ON%d:" % i)
            A("s_bitcmp1_b32 s57, s59")
            A("s_cbranch_scc1 G_OS%d" % h_)
            for i in range(4 * h_ + 3, 4 * h_, -1):
                A("s_cmp_eq_u32 s59, %d" % i)
                A("s_cbranch_scc1 G_OV%d" % i)
            for i in range(4 * h_, 4 * h_ + 4):
                A("G_OV%d:" % i)
                ex = [[], [], [], []]
                if i == 7:
                    A("G_OEND:")
                    ex = [["v_lshrrev_b32 v0, 4, v2", "ds_read_b32 v1, v3 offset:%d" % (M_O - MISC), "v_and_b32 v2, 31, v0", "s_nop 0"],
                          ["v_mul_u32_u24 v2, 272, v2", "v_lshrrev_b32 v0, 5, v0", "s_mul_i32 s52, s62, %d" % PW, "v_lshl_add_u32 v2, v0, 4, v2"],
                          ["v_add_u32 v2, s52, v2", "s_waitcnt lgkmcnt(0)", "v_readfirstlane_b32 s30, v1", "s_cmp_ge_u32 s30, 8"], ["s_cbranch_scc1 G_OW"]]
                elif i != 3:
                    ex[2] = ["s_mov_b32 s59, %d" % (i + 1), "s_bitcmp1_b32 s57, %d" % (i + 1) if opt("osync", 0) else "s_cmp_lg_u32 s57, 0"]
                if A.has_lg("w%d" % i): A.wait_lg("w%d" % i)
                for a in range(2):
                    for t in range(2):
                        A(mfma(ACC[a][t], wreg[(i, a)], OR_ + 8 * i + 4 * t))
                        for l in ex[2 * a + t]: A(l)
                for a in range(2):
                    if nxt < 16:
                        wreg[fr[nxt]] = wreg[(i, a)]
                        A.lds("ds_read_b128 %s, v1 offset:%d" % (v(wreg[(i, a)], 4), (nxt - 9) * 1024), "w%d" % fr[nxt][0])
                        nxt += 1
                if i not in (3, 7): A("s_cbranch_scc1 G_OS%d" % h_)
        spin(M_O, 8, 1)
        A("G_OW:")
        A.vm = []; A.lg = []
        if STAMP: A("s_sub_u32 s96, 0x8000, s58")
    elif OL == 2:
        for i in range(4): A("s_add_u32 s%d, s%d, %d" % (48 + i, 44 + i, NKS * 1024))
        A("v_and_b32 v0, 3, v1")
        A("v_lshlrev_b32 v0, 13, v0")
        A("v_bfe_u32 v104, v1, 2, 1")
        A("v_lshl_add_u32 v0, v104, 11, v0")
        A("v_bfe_u32 v104, v1, 3, 1")
        A("v_mul_u32_u24 v104, %d, v104" % (NKS * 1024))
        A("v_add3_u32 v1, v0, v104, %d" % opt("po", 60))
        A("s_mov_b32 s57, 0")
        A("s_mov_b32 s60, 0")
        A("s_mov_b32 s58, 0x8000")
        ST.stamp()
        spin(M_O, opt("ow", 8), 0, 4)
        A("s_waitcnt vmcnt(0)")
        A("v_add_u32 v3, s56, v2")
        ST.stamp()
        def oload(i):
            for t in range(2):
                A("buffer_load_dwordx4 %s, v2, s[36:39], s%d offen offset:%d sc1" % (v(OR_ + 8 * i + 4 * t, 4), 44 + 4 * t + (i & 3), (i >> 2) * 2048))
        A("s_branch G_OB0")
        A("G_OG:")
        A("s_sub_u32 s58, s58, 1")
        A("s_waitcnt vmcnt(0)")
        A("s_cbranch_scc0 G_ODIS")
        A("s_branch G_OEND")
        A("G_OF:")
        A("s_mov_b32 s60, s57")
        A("s_cmp_eq_u32 s57, 0xff")
        A("s_cbranch_scc1 G_OG")
        A("s_mov_b64 exec, 0xffff")
        A("buffer_load_dword v0, v1, s[36:39], s44 offen offset:960 sc1")
        A("s_sub_u32 s58, s58, 1")
        if opt("osleep", 0): A("s_sleep %d" % opt("osleep", 0))
        A("s_waitcnt vmcnt(0)")
        A("s_cbranch_scc1 G_OEND")
        A("v_cmp_ne_u32 vcc, -1, v0")
        A("s_mov_b64 exec, -1")
        A("s_lshr_b32 s30, vcc_lo, 8")
        A("s_and_b32 s30, s30, vcc_lo")
        A("s_andn2_b32 s30, s30, s57")
        A("s_cbranch_scc0 G_ODIS")
        A("s_or_b32 s57, s57, s30")
        for i in range(1, 8):
            A("s_bitcmp1_b32 s30, %d" % i)
            A("s_cbranch_scc0 G_ORN%d" % i)
            oload(i)
            A("G_ORN%d:" % i)
        A("G_ODIS:")
        if opt("ors", 0):
            for n_, sl in enumerate((1, 2, 3, 4, 10, 11, 12, 14)):
                A("s_cmp_eq_u32 s58, 0x%x" % (0x7fff - n_))
                A("s_cbranch_scc0 G_OS%d" % n_)
                ST.stamp(slot=sl)
                A("s_lshl_b32 s31, s57, 8")
                A("s_or_b32 s31, s31, s59")
                A("s_waitcnt lgkmcnt(0)")
                A("s_and_b32 s%d, s%d, 0xffff" % (70 + 2 * sl, 70 + 2 * sl))
                A("s_lshl_b32 s31, s31, 16")
                A("s_or_b32 s%d, s%d, s31" % (70 + 2 * sl, 70 + 2 * sl))
                A("G_OS%d:" % n_)
            ST.n = 8
        for i in range(7, 0, -1):
            A("s_cmp_eq_u32 s59, %d" % i)
            A("s_cbranch_scc1 G_OC%d" % i)
        A("s_branch G_OC0")
        wreg = {fr[n]: WR + 4 * n for n in range(9)}
        nxt = 9
        for i in range(8):
            r = OR_ + 8 * i
            A("G_ON%d:" % i)
            A("s_bitcmp1_b32 s57, %d" % i)
            A("s_cbranch_scc1 G_OF")
            A("s_bitset1_b32 s57, %d" % i)
            A("G_OM%d:" % i)
            oload(i)
            A("s_branch G_OF")
            A("G_OB%d:" % i)
            A("s_mov_b32 s59, %d" % i)
            A("s_bitcmp1_b32 s60, %d" % i)
            A("s_cbranch_scc0 G_ON%d" % i)
            A("G_OC%d:" % i)
            A("v_max3_u32 v0, v%d, v%d, v%d" % (r, r + 3, r + 7))
            A("v_cmp_eq_u32 vcc, -1, v0")
            A("v_max3_u32 v0, v%d, v%d, v%d" % (r + 1, r + 2, r + 4))
            A("s_cbranch_vccnz G_OM%d" % i)
            A("v_max3_u32 v0, v%d, v%d, v0" % (r + 5, r + 6))
            A("v_cmp_eq_u32 vcc, -1, v0")
            A("s_cbranch_vccnz G_OM%d" % i)
            ex = [[], [], [], []]
            if i == 7:
                A("G_OEND:")
                A("s_mov_b64 exec, -1")
                ex = [["v_mov_b32 v3, %d" % MISC, "v_lshrrev_b32 v0, 4, v2", "ds_read_b32 v1, v3 offset:%d" % (M_O - MISC), "v_and_b32 v2, 31, v0"],
                      ["v_mul_u32_u24 v2, 272, v2", "v_lshrrev_b32 v0, 5, v0", "s_mul_i32 s52, s62, %d" % PW, "v_lshl_add_u32 v2, v0, 4, v2"],
                      ["v_add_u32 v2, s52, v2", "s_waitcnt lgkmcnt(0)", "v_readfirstlane_b32 s30, v1", "s_cmp_ge_u32 s30, 8"], ["s_cbranch_scc1 G_OW"]]
            if A.has_lg("w%d" % i): A.wait_lg("w%d" % i)
            for a in range(2):
                for t in range(2):
                    A(mfma(ACC[a][t], wreg[(i, a)], OR_ + 8 * i + 4 * t))
                    for l in ex[2 * a + t]: A(l)
            for a in range(2):
                if nxt < 16:
                    wreg[fr[nxt]] = wreg[(i, a)]
                    A.lds("ds_read_b128 %s, v3 offset:%d" % (v(wreg[(i, a)], 4), (nxt - 9) * 1024), "w%d" % fr[nxt][0])
                    nxt += 1
            if i < 7: A("s_branch G_OB%d" % (i + 1))
        spin(M_O, 8, 1)
        A("G_OW:")
        A.vm = []; A.lg = []
        if STAMP: A("s_sub_u32 s96, 0x8000, s58")
    else:
        A("v_add_u32 v1, %d, v2" % (NKS * 1024))
        A("s_mov_b32 s57, 0xff")
        A("s_mov_b32 s58, 0x2000")
        ST.stamp()
        spin(M_O, opt("ow", 8), 0, 4)
        A("s_waitcnt vmcnt(0)")
        A("v_add_u32 v3, s56, v2")
        ST.stamp()
        def oload(i, tag=None):
            for t in range(2):
                A.vmem("buffer_load_dwordx4 %s, v%d, s[36:39], s%d offen offset:%d sc1" % (v(OR_ + 8 * i + 4 * t, 4), 2 - t, 44 + (i & 3), (i >> 2) * 2048), tag)
        def ocheck(i):
            r = OR_ + 8 * i
            A("v_max3_u32 v0, v%d, v%d, v%d" % (r, r + 1, r + 2))
            A("v_max3_u32 v0, v%d, v%d, v0" % (r + 3, r + 4))
            A("v_max3_u32 v0, v%d, v%d, v0" % (r + 5, r + 6))
            A("v_max_u32 v0, v%d, v0" % (r + 7))
            A("v_cmp_eq_u32 vcc, -1, v0")
        for i in range(8): oload(i, "o%d" % i)
        A("s_branch G_OB0")
        A("G_OREF:")
        A("s_waitcnt vmcnt(0)")
        A("s_sub_u32 s58, s58, 1")
        A("s_cselect_b32 s57, 0, s57")
        vm_s = list(A.vm)
        for i in range(8):
            A("s_bitcmp1_b32 s57, %d" % i)
            A("s_cbranch_scc0 G_ORN%d" % i)
            ocheck(i)
            A("s_bitset0_b32 s57, %d" % i)
            A("s_cbranch_vccz G_ORN%d" % i)
            A("s_bitset1_b32 s57, %d" % i)
            oload(i)
            A("G_ORN%d:" % i)
        A.vm = vm_s
        A("s_bitcmp1_b32 s57, s59")
        if opt("osleep", 0):
            A("s_cbranch_scc0 G_ODIS")
            A("s_sleep %d" % opt("osleep", 0))
            A("s_branch G_OREF")
            A("G_ODIS:")
        else:
            A("s_cbranch_scc1 G_OREF")
        for i in range(7, 0, -1):
            A("s_cmp_eq_u32 s59, %d" % i)
            A("s_cbranch_scc1 G_OV%d" % i)
        A("s_branch G_OV0")
        wreg = {fr[n]: WR + 4 * n for n in range(9)}
        nxt = 9
        for i in range(8):
            A("G_OB%d:" % i)
            A("s_bitcmp1_b32 s57, %d" % i)
            A("s_cbranch_scc0 G_OV%d" % i)
            A.wait_vm("o%d" % i)
            ocheck(i)
            A("s_mov_b32 s59, %d" % i)
            A("s_cbranch_vccnz G_OREF")
            A("s_bitset0_b32 s57, %d" % i)
            A("G_OV%d:" % i)
            if A.has_lg("w%d" % i): A.wait_lg("w%d" % i)
            for a in range(2):
                for t in range(2):
                    A(mfma(ACC[a][t], wreg[(i, a)], OR_ + 8 * i + 4 * t))
            for a in range(2):
                if nxt < 16:
                    wreg[fr[nxt]] = wreg[(i, a)]
                    A.lds("ds_read_b128 %s, v3 offset:%d" % (v(wreg[(i, a)], 4), (nxt - 9) * 1024), "w%d" % fr[nxt][0])
                    nxt += 1
        A.vm = []; A.lg = []
        if STAMP: A("s_sub_u32 s96, 0x2000, s58")
if not OL:
    A("s_lshl_b32 s54, s62, 13")
    A("s_add_u32 s54, s54, %d" % (86 * 1024))
    WR, OR_ = 68, 104
    fr = [(i, a) for i in range(8) for a in range(2)]
    for n, (i, a) in enumerate(fr[:9]):
        if i == 4: A("s_add_u32 s54, s54, 4096")
        A("buffer_load_dwordx4 %s, v%d, s[36:39], s54 offen offset:%d @LD" % (v(WR + 4 * n, 4), 164 + a, (i & 3) * 1024))
    A("s_mul_i32 s56, s62, 7168")
    A("s_add_u32 s56, s56, %d" % Z0)
    for n, (i, a) in enumerate(fr[9:]):
        A("s_add_u32 m0, s56, 0x%x" % (((n - (i & 3)) * 1024) & 0xffffffff))
        A("s_nop 0")
        A("buffer_load_dwordx4 v%d, s[36:39], s54 offen offset:%d @LD lds" % (164 + a, (i & 3) * 1024))
    ST.stamp()
    spin(M_O, opt("ow", 8), 0, 4)
    A("v_add_u32 v3, s56, v2")
    A("v_and_b32 v0, 15, v1")
    A("v_lshlrev_b32 v0, %d, v0" % OS)
    A("s_lshl_b32 s57, s26, %d" % (6 + OS))
    A("s_lshl_b32 s58, s62, %d" % (4 + OS))
    A("s_add_u32 s58, s58, s57")
    A("s_add_u32 s58, s58, 0x%x" % OFLAG)
    A("s_lshl_b32 s54, s62, 13")
    A("s_add_u32 s54, s54, s53")
    A("s_add_u32 s54, s54, %d" % (86 * 1024))
    A("s_add_u32 s55, s54, %d" % (NKS * 1024))
    A("s_add_u32 s56, s54, 4096")
    A("s_add_u32 s57, s55, 4096")
    gpoll(0, "s58", 1, 1, "s61", opt("osleep", 2))
    ST.stamp()
    for i in range(8):
        for t in range(2):
            A.vmem("buffer_load_dwordx4 %s, v2, s[36:39], s%d offen offset:%d @LD" % (v(OR_ + 8 * i + 4 * t, 4), 54 + t + 2 * (i >> 2), (i & 3) * 1024), "o%d" % i)
    wreg = {fr[n]: WR + 4 * n for n in range(9)}
    nxt = 9
    for i in range(8):
        A.wait_vm("o%d" % i)
        if A.has_lg("w%d" % i): A.wait_lg("w%d" % i)
        for a in range(2):
            for t in range(2):
                A(mfma(ACC[a][t], wreg[(i, a)], OR_ + 8 * i + 4 * t))
        for a in range(2):
            if nxt < 16:
                wreg[fr[nxt]] = wreg[(i, a)]
                A.lds("ds_read_b128 %s, v3 offset:%d" % (v(wreg[(i, a)], 4), (nxt - 9) * 1024), "w%d" % fr[nxt][0])
                nxt += 1
if OL >= 2:
    ST.stamp()
else:
    A("v_lshrrev_b32 v0, 4, v2")
    A("v_and_b32 v1, 31, v0")
    A("v_mul_u32_u24 v1, 272, v1")
    A("v_lshrrev_b32 v0, 5, v0")
    A("v_lshl_add_u32 v1, v0, 4, v1")
    A("s_mul_i32 s52, s62, %d" % PW)
    A("v_add_u32 v1, s52, v1")
    ST.stamp()
    A("s_barrier")
    A("s_nop 4")
for a in range(2):
    for b in range(2):
        for q in range(4):
            A("ds_write_b128 v%d, %s offset:%d" % (2 if OL >= 2 else 1, v(ACC[a][b] + 4 * q, 4), b * 8704 + a * 128 + q * 32))
A("s_waitcnt lgkmcnt(0)")
A("s_barrier")
A("s_cmp_eq_u32 s2, 0")
A("s_cselect_b32 s52, s62, 0")
A("s_cmp_eq_u32 s52, 3")
A("s_cbranch_scc0 G_END")
A("s_mov_b32 s52, 0x%x" % EPOCH)
flag_store("s52", "s61", 4)
A("G_END:")
A("s_waitcnt vmcnt(0)")
ST.stamp()
if STAMP:
    ST.flush(36, STOFF, 28, 4, nwaves=12)
A("DONE:")
A("s_endpgm")


import subprocess, re
def render(lines):
    out = HEADER + "; @launch grid=(256,1,1) block=(768,1,1) lds=%d\n" % LDS_BYTES
    out += ("\n".join(lines) + "\n").replace(" @LD", " sc1" if opt("ldsc", 0) else "")
    out += '.section .rodata,"a"\n' + kd(NAME, 168)
    return out
def is_insn(l): return l.startswith("    ") and not l.strip().startswith(";") and not l.strip().startswith("@")
def addresses(lines):
    tmp = []
    for i, l in enumerate(lines):
        if l.strip().startswith("@"): continue
        if is_insn(l): tmp.append("ZZ%d:" % i)
        tmp.append(l)
    open("_p.s", "w").write(render(tmp))
    r = subprocess.run(["clang", "-x", "assembler", "-target", "amdgcn-amd-amdhsa", "-mcpu=gfx950", "-c", "_p.s", "-o", "_p.o"], capture_output=True, text=True)
    assert r.returncode == 0, r.stderr[:3000]
    o = subprocess.run(["llvm-readelf", "-s", "-W", "_p.o"], capture_output=True, text=True).stdout
    return {int(m.group(2)): int(m.group(1), 16) for m in re.finditer(r"^\s*\d+: ([0-9a-f]+) .* ZZ(\d+)$", o, re.M)}
lines = list(A.lines)
WSP = opt("warm", 0)
if WSP:
    ad = addresses(lines)
    lab = {l[:-1]: i for i, l in enumerate(lines) if l.endswith(":")}
    nxt = lambda i: min(k for k in ad if k >= i)
    forced = [nxt(lab[n]) for n in ("G_START", "G3_START", "G_JOIN")]
    lo, hi = lab["A_LOOP"] - 2, lines.index("    @LOOPEND")
    pads, last = [], opt("warm0", 256)
    idx = sorted(ad)
    for n, i in enumerate(idx):
        a_ = ad[i]
        if i in forced: pads.append(i); last = a_; continue
        if lo <= i <= hi: continue
        nx = [k for k in idx[n + 1:n + 200] if not lo <= k <= hi]
        if nx and ad[nx[0]] - last > WSP and i > lines.index("    @W0"):
            pads.append(i); last = a_
    reg = lambda i: "A" if i < lab["G_START"] else "G" if i < lab["G3_START"] else "K" if i < lab["G_JOIN"] else "J"
    by = {r_: [i for i in pads if reg(i) == r_] for r_ in "AGKJ"}
    na = len([i for i in by["A"] if i < lab["A_LOOP"]])
    order = by["A"][:na] + by["K"][1:] + by["G"][1:]
    ph1 = {8: [by["G"][0]], 11: [by["K"][0]]}
    for w in (0, 1, 2, 3, 4, 5, 9, 10, 6, 7): ph1[w] = [order.pop(0)]
    n2 = opt("wn2", 0)
    late = by["J"] + by["A"][na:]
    order += late[:n2]
    ph2 = {w: [] for w in (8, 9, 10)}
    for n, i in enumerate(order): ph2[8 + n % 3].append(i)
    ph3 = {11: late[n2:]}
    tgt = {}
    for ph, ret in ((ph1, "WRET1"), (ph2, "WRET2"), (ph3, "WRET3")):
        for w, ch in ph.items():
            for n, i in enumerate(ch): tgt[i] = "WP%d" % ch[n + 1] if n + 1 < len(ch) else ret
    def disp(ph, ret, ws):
        o = ["    s_mov_b64 exec, 0"]
        for w in ws:
            if ph.get(w): o += ["    s_cmp_eq_u32 s28, %d" % w, "    s_cbranch_scc1 WP%d" % ph[w][0]]
        return o + ["%s:" % ret, "    s_mov_b64 exec, -1"]
    new = []
    for i, l in enumerate(lines):
        if l == "    @WARM1": new += disp(ph1, "WRET1", (11, 8, 0, 1, 2, 3, 4, 5, 9, 10, 6, 7)); continue
        if l == "    @WARM2": new += disp(ph2, "WRET2", (8, 9, 10)); continue
        if l == "    @WARM3": new += disp(ph3, "WRET3", (11,)); continue
        if l in ("    @W0", "    @LOOPEND"): continue
        if i in tgt: new += ["WP%d:" % i, "    s_cbranch_execz %s" % tgt[i]]
        new.append(l)
    lines = new
    print("pads", [(reg(i), hex(ad[i])) for i in pads])
    print("ph1", {w: [hex(ad[i]) for i in c] for w, c in ph1.items()}, "ph2", {w: [hex(ad[i]) for i in c] for w, c in ph2.items()}, "ph3", {w: [hex(ad[i]) for i in c] for w, c in ph3.items()})
else:
    lines = [l for l in lines if not l.strip().startswith("@")]
open(sys.argv[1], "w").write(render(lines))
```

```python
import sys
from mb import *
gpu = os.path.exists('/dev/kfd')
def rnd(d, salt):
    return ["v_add_u32 v%d, 0x%x, v0" % (d, salt), "v_mul_lo_u32 v%d, v%d, s40" % (d, d), "v_lshrrev_b32 v160, 15, v%d" % d, "v_xor_b32 v%d, v160, v%d" % (d, d),
            "v_mul_lo_u32 v%d, v%d, s41" % (d, d), "v_lshrrev_b32 v160, 13, v%d" % d, "v_xor_b32 v%d, v160, v%d" % (d, d), "v_and_b32 v%d, 0x80ff80ff, v%d" % (d, d), "v_or_b32 v%d, 0x3f003f00, v%d" % (d, d)]
I = ["s_mov_b32 s40, 0x9E3779B1", "s_mov_b32 s41, 0x85EBCA6B"] + ["v_mov_b32 v%d, 0" % i for i in range(4, 160)]
I += ["v_and_b32 v3, 255, v0", "v_lshlrev_b32 v3, 4, v3"]
for blk in range(9):
    for i in range(4): I += rnd(4 + i, 1000003 * (blk * 4 + i + 1))
    I += ["ds_write_b128 v3, v[4:7] offset:%d" % (blk * 4096)]
for i in range(4): I += rnd(4 + i, 77777 * (i + 1)) + rnd(28 + i, 99991 * (i + 1))
I += ["v_mov_b32 v%d, 0xc1400000" % i for i in list(range(36, 52)) + list(range(116, 132))]
I += ["v_and_b32 v3, 63, v0", "v_lshlrev_b32 v3, 4, v3", "s_mov_b32 s58, 0xffff0000", "s_mov_b32 s59, 0xffff0000", "v_mov_b32 v35, 0xdddddddd", "s_waitcnt lgkmcnt(0)"]
def J(l): return "\n".join("    "+x for x in l)
init = J(I)
mf = lambda d, a, b, c: "v_mfma_f32_32x32x16_bf16 v[%d:%d], v[%d:%d], v[%d:%d], v[%d:%d]" % (d, d+15, a, a+3, b, b+3, c, c+15)
sm = lambda d, a, b: "v_smfmac_f32_32x32x32_bf16 v[%d:%d], v[%d:%d], v[%d:%d], v35" % (d, d+15, a, a+3, b, b+7)
rd = lambda r, o: "ds_read_b128 v[%d:%d], v3 offset:%d" % (r, r + 3, o)
S = (52, 68); V = (12, 20)
def one(p, n):
    Sc, Sn, Vc, Vp = S[p & 1], S[1 - (p & 1)], V[p & 1], V[1 - (p & 1)]
    L = []
    for i in range(16):
        if i == 2: L += [sm(84, Vp + 4, Sn + 8), "s_mov_b64 exec, s[58:59]", rd(Vp, ((p + 1) % n) * 2048 + 1024), rd(Vp + 4, ((p + 1) % n) * 2048 + 768), "s_mov_b64 exec, -1"]
        if i == 6: L += ["s_waitcnt lgkmcnt(2)", mf(Sn, 8, 4, 36), rd(8, ((p + 2) % n) * 2048)]
        if i == 10: L += [sm(84, Vc, Sc)]
        L.append("v_exp_f32 v%d, v%d" % (Sc + i, Sc + i))
    return L
def two(p, n):
    z, t = p & 1, p >> 1
    Sc, Sn = S[z], S[1 - z]
    Q, C, O = (4, 28), (36, 116), (84, 100)
    Vc = V[t & 1]; Vprev = V[((p - 1) >> 1) & 1]
    L = []
    for i in range(16):
        if i == 2:
            L += [sm(O[1 - z], Vprev + 4, Sn + 8)]
            if z == 0: L += ["s_mov_b64 exec, s[58:59]", rd(Vprev, ((t + 1) % n) * 2048 + 1024), rd(Vprev + 4, ((t + 1) % n) * 2048 + 768), "s_mov_b64 exec, -1"]
        if i == 6:
            if z == 1: L += ["s_waitcnt lgkmcnt(0)"]
            L += [mf(Sn, 8, Q[1 - z], C[1 - z])]
            if z == 0: L += [rd(8, ((t + 1) % n) * 2048)]
        if i == 10: L += [sm(O[z], Vc, Sc)]
        L.append("v_exp_f32 v%d, v%d" % (Sc + i, Sc + i))
    return L
T = {"one": J(sum([one(p, 16) for p in range(16)], [])), "two": J(sum([two(p, 8) for p in range(16)], []))}
for rep in range(2):
    for n in T:
        for it in (4, 250):
            run(n + "_%d" % it, T[n], init=init, gpu=gpu, lds=40960, blocks=(512,), unroll=1, iters=it, vgpr=168)
```

```python
import sys
from mb import *
import mb
gpu = os.path.exists('/dev/kfd')
def rnd(d, salt):
    return ["v_add_u32 v%d, 0x%x, v0" % (d, salt), "v_mul_lo_u32 v%d, v%d, s40" % (d, d), "v_lshrrev_b32 v160, 15, v%d" % d, "v_xor_b32 v%d, v160, v%d" % (d, d),
            "v_mul_lo_u32 v%d, v%d, s41" % (d, d), "v_lshrrev_b32 v160, 13, v%d" % d, "v_xor_b32 v%d, v160, v%d" % (d, d), "v_and_b32 v%d, 0x80ff80ff, v%d" % (d, d), "v_or_b32 v%d, 0x3f003f00, v%d" % (d, d)]
I = ["s_mov_b32 s40, 0x9E3779B1", "s_mov_b32 s41, 0x85EBCA6B"] + ["v_mov_b32 v%d, 0" % i for i in range(4, 160)]
I += ["v_and_b32 v3, 255, v0", "v_lshlrev_b32 v3, 4, v3"]
for blk in range(9):
    for i in range(4): I += rnd(4 + i, 1000003 * (blk * 4 + i + 1))
    I += ["ds_write_b128 v3, v[4:7] offset:%d" % (blk * 4096)]
for i in range(4): I += rnd(4 + i, 77777 * (i + 1)) + rnd(28 + i, 99991 * (i + 1))
I += ["v_mov_b32 v%d, 0xc1400000" % i for i in list(range(36, 52)) + list(range(116, 132))]
I += ["v_and_b32 v3, 63, v0", "v_lshlrev_b32 v3, 4, v3", "s_mov_b32 s58, 0xffff0000", "s_mov_b32 s59, 0xffff0000", "v_mov_b32 v35, 0xdddddddd", "s_waitcnt lgkmcnt(0)"]
def J(l): return "\n".join("    "+x for x in l)
init = J(I)
mf = lambda d, a, b, c: "v_mfma_f32_32x32x16_bf16 v[%d:%d], v[%d:%d], v[%d:%d], v[%d:%d]" % (d, d+15, a, a+3, b, b+3, c, c+15)
sm = lambda d, a, b: "v_smfmac_f32_32x32x32_bf16 v[%d:%d], v[%d:%d], v[%d:%d], v35" % (d, d+15, a, a+3, b, b+7)
rd = lambda r, o: "ds_read_b128 v[%d:%d], v3 offset:%d" % (r, r + 3, o)
S = (52, 68); V = (12, 20)
def one(p, n):
    Sc, Sn, Vc, Vp = S[p & 1], S[1 - (p & 1)], V[p & 1], V[1 - (p & 1)]
    L = []
    for i in range(16):
        if i == 2: L += [sm(84, Vp + 4, Sn + 8), "s_mov_b64 exec, s[58:59]", rd(Vp, ((p + 1) % n) * 2048 + 1024), rd(Vp + 4, ((p + 1) % n) * 2048 + 768), "s_mov_b64 exec, -1"]
        if i == 6: L += ["s_waitcnt lgkmcnt(2)", mf(Sn, 8, 4, 36), rd(8, ((p + 2) % n) * 2048)]
        if i == 10: L += [sm(84, Vc, Sc)]
        L.append("v_exp_f32 v%d, v%d" % (Sc + i, Sc + i))
    return L
def two(p, n):
    z, t = p & 1, p >> 1
    Sc, Sn = S[z], S[1 - z]
    Q, C, O = (4, 28), (36, 116), (84, 100)
    Vc = V[t & 1]; Vprev = V[((p - 1) >> 1) & 1]
    L = []
    for i in range(16):
        if i == 2:
            L += [sm(O[1 - z], Vprev + 4, Sn + 8)]
            if z == 0: L += ["s_mov_b64 exec, s[58:59]", rd(Vprev, ((t + 1) % n) * 2048 + 1024), rd(Vprev + 4, ((t + 1) % n) * 2048 + 768), "s_mov_b64 exec, -1"]
        if i == 6:
            if z == 1: L += ["s_waitcnt lgkmcnt(0)"]
            L += [mf(Sn, 8, Q[1 - z], C[1 - z])]
            if z == 0: L += [rd(8, ((t + 1) % n) * 2048)]
        if i == 10: L += [sm(O[z], Vc, Sc)]
        L.append("v_exp_f32 v%d, v%d" % (Sc + i, Sc + i))
    return L
T = {"one": J(sum([one(p, 16) for p in range(16)], [])), "two": J(sum([two(p, 8) for p in range(16)], []))}

def gpart(na, n, glob):
    L = ["v_readfirstlane_b32 s30, v0", "s_lshr_b32 s30, s30, 6", "s_cmp_ge_u32 s30, %d" % na, "s_cbranch_scc0 ASKIP", "s_mov_b32 s21, %d" % (n // 4), "s_mov_b32 s22, 0x100000", "s_lshl_b32 s23, s30, 16", "s_add_u32 s22, s22, s23", "s_barrier", "s_setprio 0"]
    def ld(st, k):
        if glob: return ["buffer_load_dwordx4 v[%d:%d], v3, s[8:11], s22 offen offset:%d" % (100 + st * 16 + 4 * q, 103 + st * 16 + 4 * q, q * 1024) for q in range(4)] + ["s_add_u32 s22, s22, 4096", "s_and_b32 s22, s22, 0x1fffff", "s_or_b32 s22, s22, 0x100000"]
        return [rd(100 + st * 16 + 4 * q, (k * 4 + q) * 1024) for q in range(4)]
    for st in range(3): L += ld(st, st)
    L += ["GL:"]
    for k in range(4):
        L += ["s_waitcnt %s(8)" % ("vmcnt" if glob else "lgkmcnt")]
        b = 100 + k * 16
        for a in range(2):
            for t in range(2): L += [mf(36 + 16 * (2 * a + t), b + 4 * a, b + 8 + 4 * t, 36 + 16 * (2 * a + t))]
        L += ld((k + 3) % 4, (k + 3) % 8)
    L += ["s_sub_u32 s21, s21, 1", "s_cmp_lg_u32 s21, 0", "s_cbranch_scc1 GL", "s_waitcnt vmcnt(0) lgkmcnt(0)", "s_endpgm", "ASKIP:", "s_setprio 3"]
    return "\n" + "\n".join(x if x.endswith(":") else "    " + x for x in L)
for rep in range(2):
  for glob in (0, 1):
    run("one_8w g%d" % glob, T["one"], init=init + gpart(8, 3700, glob), gpu=gpu, lds=40960, blocks=(768,), unroll=1, iters=250, vgpr=168)
    run("two_8w g%d" % glob, T["two"], init=init + gpart(8, 3700, glob), gpu=gpu, lds=40960, blocks=(768,), unroll=1, iters=250, vgpr=168)
    run("two_4w g%d" % glob, T["two"], init=init + gpart(4, 3700, glob), gpu=gpu, lds=40960, blocks=(512,), unroll=1, iters=500, vgpr=168)
```
